```python
import torch

def _softmax(x, axis=-1):
    return torch.softmax(x, dim=axis)
def _gelu(x):
    return torch.nn.functional.gelu(x, approximate="tanh")
def _silu(x):
    return torch.nn.functional.silu(x)
def _sigmoid(x):
    return torch.sigmoid(x)
def _layernorm(x, axis=-1, eps=1e-5):
    m = x.mean(dim=axis, keepdim=True)
    v = x.var(dim=axis, keepdim=True, unbiased=False)
    return (x - m) / torch.sqrt(v + eps)
def _scatter_add(tgt, idx, src, axis=0):
    return tgt.clone().index_add_(axis, idx, src)
def _segment_sum(src, seg, n):
    out = torch.zeros((n,) + src.shape[1:], dtype=src.dtype)
    return out.index_add_(0, seg, src)
def _pad(x, pw):
    flat = tuple(v for pair in reversed(pw) for v in pair)
    return torch.nn.functional.pad(x, flat)

kernel_name = 'gated_mix__sliding_block__ssm_conv_h3__prompt'

def setup_inputs():

    _w = (lambda a: (lambda t: t.to(torch.bfloat16) if t.is_floating_point() else t)(torch.as_tensor(a)))
    def _A_setup():
        B, S, D = 1, 2048, 512
        return {
            "x": _w((lambda *s: torch.randn(*s, dtype=torch.bfloat16) * 0.05)(B, S, D)),
            "wqkv": _w((lambda *s: torch.randn(*s, dtype=torch.bfloat16) * 0.8)(D, 3 * D)),
            "wo": _w((lambda *s: torch.randn(*s, dtype=torch.bfloat16) * 0.05)(D, D)),
        }
    _A_in = _A_setup()

    def _B_setup():
        B, S, D = 1, 2048, 512
        ks = 4
        return {
            "q": _w((lambda *s: torch.randn(*s, dtype=torch.bfloat16) * 0.05)(B, S, D)),
            "k": _w((lambda *s: torch.randn(*s, dtype=torch.bfloat16) * 0.8)(B, S, D)),
            "v": _w((lambda *s: torch.randn(*s, dtype=torch.bfloat16) * 0.8)(B, S, D)),
            "shift_k": _w((lambda *s: torch.randn(*s, dtype=torch.bfloat16) * 0.8)(D, ks) * 0.5),
            "ssm_k": _w((lambda *s: torch.randn(*s, dtype=torch.bfloat16) * 1.6)(D, S) * (1.0 / S ** 0.5)),
            "ssm_D": _w((lambda *s: torch.randn(*s, dtype=torch.bfloat16) * 0.8)(D)),
        }
    _B_in = _B_setup()

    return {
        "A_x": _A_in["x"],
        "A_wqkv": _A_in["wqkv"],
        "A_wo": _A_in["wo"],
        "B_q": _B_in["q"],
        "B_k": _B_in["k"],
        "B_v": _B_in["v"],
        "B_shift_k": _B_in["shift_k"],
        "B_ssm_k": _B_in["ssm_k"],
        "B_ssm_D": _B_in["ssm_D"],
        "gate_w": _w((lambda *s: torch.randn(*s, dtype=torch.bfloat16) * 0.05)(512) * 16.0),
    }

def reference(A_x, A_wqkv, A_wo, B_q, B_k, B_v, B_shift_k, B_ssm_k, B_ssm_D, gate_w):
    def _A_ref(x, wqkv, wo):
        B, S, D = x.shape
        H = 32; Dh = D // H; W = 256
        qkv = (lambda x, *d: x.permute(*d))((x @ wqkv).reshape(B, S, 3, H, Dh), 2, 0, 3, 1, 4)
        q, k, v = qkv[0], qkv[1], qkv[2]
        scores = torch.einsum("bhqd,bhkd->bhqk", q, k) * (Dh ** -0.5)
        idx = torch.arange(S)
        mask = (idx[:, None] - idx[None, :] >= 0) & (idx[:, None] - idx[None, :] < W)
        scores = torch.where(mask[None, None], scores, -1e9)
        p = _softmax(scores, axis=-1)
        o = torch.einsum("bhqk,bhkd->bhqd", p, v)
        return (lambda x, *d: x.permute(*d))(o, 0, 2, 1, 3).reshape(B, S, D) @ wo

    def _B_ref(q, k, v, shift_k, ssm_k, ssm_D):
        B, S, D = q.shape
        ks = shift_k.shape[-1]
        k_pad = _pad(k, ((0, 0), (ks - 1, 0), (0, 0)))
        k_shift = torch.zeros_like(k)
        for t in range(ks):
            k_shift = k_shift + k_pad[:, t:t + S, :] * shift_k[:, ks - 1 - t][None, None, :]
        kv = k_shift * v
        L = 2 * S
        kv_pad = _pad(kv, ((0, 0), (0, S), (0, 0)))
        kf_pad = _pad(ssm_k, ((0, 0), (0, S)))
        kv_f = (lambda x, axes=(-2,-1): torch.fft.rfft2(x.float(), dim=axes))(kv_pad[:, None, :, :], axes=(1, 2))
        kf_f = (lambda x, axes=(-2,-1): torch.fft.rfft2(x.float(), dim=axes))(kf_pad[:, None, :], axes=(1, 2))
        kf_f = (lambda x, *d: x.permute(*d))(kf_f, 1, 2, 0)
        y_f = kv_f * kf_f[None, :, :, :]
        y = (lambda x, s, axes=(-2,-1): torch.fft.irfft2(x, s=s, dim=axes).to(torch.bfloat16))(y_f, (1, L), axes=(1, 2))[:, 0, :S, :]
        y = y + kv * ssm_D[None, None, :]
        return q * y

    x = A_x
    g = _sigmoid((x * gate_w).sum(-1, keepdims=True))
    a = _A_ref(x, A_wqkv, A_wo)
    b = _B_ref(x, B_k, B_v, B_shift_k, B_ssm_k, B_ssm_D)
    return g * a + (1 - g) * b
```

```python
import re

def v(n, c=1):
    return f"v{n}" if c == 1 else f"v[{n}:{n+c-1}]"

def s(n, c=1):
    return f"s{n}" if c == 1 else f"s[{n}:{n+c-1}]"

TRANS = ("v_exp_f32", "v_log_f32", "v_rcp_f32", "v_rsq_f32", "v_sqrt_f32", "v_sin_f32", "v_cos_f32",
         "v_exp_f16", "v_rcp_iflag_f32")

_reg_re = re.compile(r"^(-|\|)?(abs\()?([vsa])(\d+|\[(\d+):(\d+)\])\)?\|?$")

def regs_of(op):
    op = op.strip()
    if op == "vcc":
        return {("s", 106), ("s", 107)}
    if op == "vcc_lo":
        return {("s", 106)}
    if op == "vcc_hi":
        return {("s", 107)}
    if op == "exec":
        return {("s", 126), ("s", 127)}
    if op == "m0":
        return {("s", 124)}
    m = _reg_re.match(op)
    if not m:
        return set()
    k = m.group(3)
    if m.group(5) is not None:
        return {(k, i) for i in range(int(m.group(5)), int(m.group(6)) + 1)}
    return {(k, int(m.group(4)))}

def split_ops(rest):
    out, depth, cur = [], 0, ""
    for ch in rest:
        if ch == "[":
            depth += 1
        if ch == "]":
            depth -= 1
        if ch == "," and depth == 0:
            out.append(cur.strip()); cur = ""
        else:
            cur += ch
    if cur.strip():
        out.append(cur.strip())
    return out

class Ins:
    def __init__(self, text):
        self.text = text
        t = text.split(";")[0].strip()
        self.is_label = t.endswith(":")
        self.is_dir = t.startswith(".")
        self.op = ""
        self.w = set(); self.r = set()
        self.kind = None
        if self.is_label or self.is_dir or not t:
            self.label = t[:-1] if self.is_label else None
            return
        parts = t.split(None, 1)
        op = parts[0]
        self.op = op
        rest = parts[1] if len(parts) > 1 else ""
        ops = split_ops(rest)
        mods = []
        if ops:
            last = ops[-1].split()
            ops[-1] = last[0]
            mods = last[1:]
        self.ops = ops; self.mods = mods
        R = [regs_of(o) for o in ops]
        base = re.sub(r"_(e32|e64|dpp|sdwa)$", "", op)
        self.base = base
        self.dpp = op.endswith("_dpp") or any(m.startswith(("row_", "quad_perm", "wave_")) for m in mods)
        if op.startswith("v_mfma"):
            self.kind = "mfma"
            self.passes = 8 if "32x32" in op else 4
            self.w = R[0]; self.ab = R[1] | R[2]; self.c = R[3]; self.r = self.ab | self.c
            self.dname = ops[0]; self.cname = ops[3]
        elif op.startswith("v_"):
            self.kind = "valu"
            self.trans = base in TRANS
            self.dot = base.startswith("v_dot")
            if base.startswith("v_cmp"):
                self.w = R[0]; self.r = set().union(*R[1:])
            elif base.startswith("v_permlane") and "swap" in base:
                self.w = R[0] | R[1]; self.r = R[0] | R[1]
            elif base in ("v_readfirstlane_b32", "v_readlane_b32"):
                self.w = R[0]; self.r = set().union(*R[1:])
            elif "_co_" in base or base.startswith("v_div_scale") or base.startswith("v_mad_u64"):
                self.w = R[0] | R[1]; self.r = set().union(*R[2:])
            elif base == "v_nop":
                pass
            else:
                self.w = R[0]; self.r = set().union(*R[1:]) if len(R) > 1 else set()
                if base.startswith(("v_fmac", "v_dot2c", "v_pk_fmac", "v_writelane")) or op.endswith(("_sdwa", "_dpp")):
                    self.r |= R[0]
        elif op.startswith("ds_"):
            self.kind = "ds"
            if op.startswith(("ds_read", "ds_bpermute", "ds_permute", "ds_swizzle")) or "_rtn_" in op:
                self.w = R[0]; self.r = set().union(*R[1:])
            else:
                self.r = set().union(*R)
        elif op.startswith("buffer_") or op.startswith("global_"):
            self.kind = "vmem"
            self.lds = ("lds" in mods) or op.startswith("global_load_lds")
            if op in ("buffer_inv", "buffer_wbl2"):
                pass
            elif "load" in op and not self.lds:
                self.w = R[0]; self.r = set().union(*R[1:])
            else:
                self.r = set().union(*R)
            self.wide_store = ("store_dwordx4" in op or "store_dwordx3" in op)
            if self.wide_store:
                self.sdata = R[0] if op.startswith("buffer_") else R[1]
        elif op.startswith("s_"):
            self.kind = "salu"
            if op.startswith(("s_cmp", "s_waitcnt", "s_barrier", "s_nop", "s_branch", "s_cbranch", "s_endpgm",
                              "s_sleep", "s_setprio", "s_bitcmp")):
                self.r = set().union(*R) if R else set()
            else:
                self.w = R[0] if R else set()
                self.r = set().union(*R[1:]) if len(R) > 1 else set()
                if "saveexec" in op:
                    self.w |= regs_of("exec")
        else:
            raise ValueError("unknown instr " + text)

    def states(self):
        if self.op == "s_nop":
            return int(self.ops[0], 0) + 1
        return 1


def vonly(x):
    return {r for r in x if r[0] in "va"}

def sonly(x):
    return {r for r in x if r[0] == "s"}

def need(p, c):
    n = 0
    if p.kind == "valu":
        pw_v = vonly(p.w); pw_s = sonly(p.w)
        if pw_s:
            if c.kind == "vmem" and (pw_s & c.r): n = max(n, 5)
            if c.kind == "valu" and (pw_s & c.r):
                n = max(n, 4 if c.base in ("v_readlane_b32", "v_writelane_b32") else 2)
            if c.kind == "salu" and (pw_s & c.r): n = max(n, 1)
            if c.kind == "salu" and c.op.startswith("s_cbranch_vcc") and (pw_s & regs_of("vcc")): n = max(n, 1)
        if pw_v:
            if c.kind == "valu":
                if c.dpp and (pw_v & c.r): n = max(n, 2)
                if c.base in ("v_readlane_b32", "v_readfirstlane_b32") and (pw_v & c.r): n = max(n, 1)
                if c.base.startswith("v_permlane") and (pw_v & c.r): n = max(n, 2)
                if p.trans and not c.trans and (pw_v & c.r): n = max(n, 1)
                if p.op.endswith("_sdwa") and (pw_v & (c.r | c.w)): n = max(n, 1)
                if p.dot and (pw_v & (c.r | c.w)):
                    same_acc = (c.base == p.base and c.w == p.w)
                    if not same_acc: n = max(n, 3)
            if c.kind == "mfma" and (pw_v & c.r): n = max(n, 3 if p.dot else 2)
            if c.kind in ("ds", "vmem") and (pw_v & c.r):
                if p.dot: n = max(n, 3)
                if p.trans: n = max(n, 1)
    elif p.kind == "mfma":
        big = p.passes == 8
        if c.kind == "mfma":
            if p.w & c.ab: n = max(n, 12 if big else 8)
            if p.w & c.c:
                if not (c.cname == p.dname and c.passes == p.passes): n = max(n, 10 if big else 6)
            if (p.w & c.w) and not (c.cname == p.dname and c.passes == p.passes):
                n = max(n, 10 if big else 6)
        elif c.kind in ("valu", "ds", "vmem"):
            if p.w & (c.r | c.w): n = max(n, 12 if big else 8)
            if c.kind == "valu" and (p.c & c.w): n = max(n, 7 if big else 3)
            if c.kind in ("ds", "vmem") and (p.c & c.w): n = max(n, 7 if big else 3)
    elif p.kind == "salu":
        if ("s", 124) in p.w and c.kind == "vmem" and c.lds: n = max(n, 1)
    elif p.kind == "vmem":
        if getattr(p, "wide_store", False) and c.kind in ("valu", "mfma") and (p.sdata & c.w): n = max(n, 2)
        if getattr(p, "wide_store", False) and c.kind in ("ds", "vmem") and (p.sdata & c.w): n = max(n, 1)
    return n

MAXD = 13

def pad(lines, verbose=False):
    ins = [Ins(l) for l in lines]
    nop_before = [0] * len(ins)
    saved = {}
    for it in range(4):
        changed = False
        state = []
        for i, c in enumerate(ins):
            if c.is_label:
                for st in saved.get(c.label, []):
                    state = state + [x for x in st if x not in state]
                continue
            if c.kind is None:
                continue
            state = [(p, a + nop_before[i]) for p, a in state]
            short = 0
            for p, a in state:
                short = max(short, need(p, c) - a)
            if short > 0:
                nop_before[i] += short
                state = [(p, a + short) for p, a in state]
                changed = True
            k = c.states()
            state = [(p, a + k) for p, a in state if a + k < MAXD]
            state.append((c, 0))
            if c.op.startswith(("s_branch", "s_cbranch")):
                lst = saved.setdefault(c.ops[0], [])
                st = list(state)
                if st not in lst:
                    lst.append(st); changed = True
            if c.op in ("s_branch", "s_endpgm"):
                state = []
        if not changed:
            break
    out = []
    total = 0
    for i, c in enumerate(ins):
        n = nop_before[i]
        total += n
        while n > 0:
            k = min(n, 16)
            out.append(f"    s_nop {k-1}")
            n -= k
        out.append(c.text)
    if verbose:
        print("padding wait states inserted:", total)
    return out


class Asm:
    def __init__(self):
        self.lines = []
        self.vm = []
        self.lg = []
        self._lab = 0

    def __call__(self, text):
        for l in text.strip("\n").split("\n"):
            l = l.strip()
            if not l:
                continue
            if l.endswith(":") or l.startswith("."):
                self.lines.append(l)
            else:
                self.lines.append("    " + l)

    def label(self, name):
        self.lines.append(name + ":")

    def newlabel(self, p="L"):
        self._lab += 1
        return f"{p}_{self._lab}"

    def vmem(self, text, tag):
        self(text)
        self.vm.append(tag)

    def vm_wait(self, *tags):
        idx = max(i for i, t in enumerate(self.vm) if t in tags)
        n = len(self.vm) - 1 - idx
        assert n <= 63
        self(f"s_waitcnt vmcnt({n})")
        self.vm = self.vm[idx + 1:]

    def vm_all(self):
        self("s_waitcnt vmcnt(0)")
        self.vm = []

    def lds(self, text, tag):
        self(text)
        self.lg.append(tag)

    def lg_wait(self, *tags):
        cand = [i for i, t in enumerate(self.lg) if t in tags]
        if not cand:
            return
        idx = max(cand)
        n = len(self.lg) - 1 - idx
        assert n <= 15, n
        self(f"s_waitcnt lgkmcnt({n})")
        self.lg = self.lg[idx + 1:]

    def lg_all(self):
        self("s_waitcnt lgkmcnt(0)")
        self.lg = []
```

```python
import sys, struct
from asmlib import *

NAME = "gated_mix__sliding_block__ssm_conv_h3__prompt"

XR, WR = 0, 32768
KC = 98304
KCS = 4160
RR = 131584
RS = 4576
WQ0 = 150016
GW = 158208
GP = 159232
CNT = 161280
LDS_BYTES = 163840
QF = 24576
LB = 81920
EX0 = 16384
RBASE = [0, 32768, 49152, 65536]
C_PAIR, C_KVL, C_FREE, C_WO, C_RD = 0, 8, 24, 28, 32
WOU = [KC + 8192 * i for i in range(7)] + [EX0]
FX = KC

FU, FKV, FY, FO = 0x1000, 0x2000, 0x3000, 0x4000
UG, KVG, YG, OG, DBG = 0x100000, 0x300000, 0x700000, 0x900000, 0xC00000
WS_BYTES = 0x1000000
TAGC = 0x9E3779B9

sX, sW, sWO, sK, sV, sSK, sWS, sOUT = 32, 36, 40, 44, 48, 52, 56, 60
sWave, sRb, sHq, sRot, sCp, sTag, sI, sI1024, sBud, sHi = 64, 65, 66, 67, 68, 69, 70, 71, 72, 73
sT0, sT1, sT2, sT3, sT4, sT5 = 74, 75, 76, 77, 78, 79
sNt, sQt, sRole, sRedo, sD = 30, 31, 3, 10, 11
sTS = 80

def f2u(x):
    return struct.unpack("<I", struct.pack("<f", x))[0]

class Gen:
    def __init__(self, opt):
        self.o = opt
        self.a = Asm()
        self.nts = 0

    def ts(self, k):
        if self.o.get("prof"):
            self.a(f"s_memtime {s(sTS + 2 * k, 2)}")

    def lds_spin(self, vaddr, off, target, vt):
        a = self.a
        L, D = a.newlabel("Lsp"), a.newlabel("Lsd")
        a.label(L)
        a(f"""ds_read_b32 {v(vt)}, {v(vaddr)} offset:{off}
              s_waitcnt lgkmcnt(0)
              v_readfirstlane_b32 {s(sT5)}, {v(vt)}
              s_cmp_ge_u32 {s(sT5)}, {target}
              s_cbranch_scc1 {D}
              s_sub_u32 {s(sBud)}, {s(sBud)}, 1
              s_cmp_gt_i32 {s(sBud)}, 0
              s_cbranch_scc1 {L}""")
        a.label(D)
        a.lg = []

    def lds_signal(self, vaddr, off, vone):
        a = self.a
        a(f"""s_mov_b64 exec, 1
              ds_add_u32 {v(vaddr)}, {v(vone)} offset:{off}
              s_mov_b64 exec, -1""")
        a.lg.append("sig")

    def poll(self, voff, soff, vt, first_done=False):
        a = self.a
        L, C, D = a.newlabel("Lpl"), a.newlabel("Lpc"), a.newlabel("Lpd")
        if first_done:
            a(f"s_branch {C}")
        a.label(L)
        a(f"""buffer_load_dword {v(vt)}, {v(voff)}, {s(sWS,4)}, {soff} offen sc1
              s_waitcnt vmcnt(0)""")
        a.label(C)
        a(f"""v_cmp_ne_u32 vcc, {s(sTag)}, {v(vt)}
              s_cbranch_vccz {D}
              s_sub_u32 {s(sBud)}, {s(sBud)}, 8
              s_cmp_gt_i32 {s(sBud)}, 0
              s_cbranch_scc1 {L}""")
        a.label(D)
        if not first_done:
            a.vm = []

    def flag_store(self, soff, vt, vz):
        a = self.a
        a(f"""v_mov_b32 {v(vt)}, {s(sTag)}
              v_mov_b32 {v(vz)}, 0
              s_mov_b64 exec, 1""")
        a.vmem(f"buffer_store_dword {v(vt)}, {v(vz)}, {s(sWS,4)}, {s(soff)} offen sc1", "flag")
        a("s_mov_b64 exec, -1")

    def srd(self, d, p, size):
        self.a(f"""s_mov_b32 {s(d)}, {s(p)}
                   s_mov_b32 {s(d+1)}, {s(p+1)}
                   s_mov_b32 {s(d+2)}, {size}
                   s_mov_b32 {s(d+3)}, 0x20000""")

    def prologue(self):
        a = self.a
        a(f"""s_cmp_ge_u32 s2, 256
              s_cbranch_scc1 L_end
              s_load_dwordx16 s[4:19], s[0:1], 0
              s_load_dwordx8 s[20:27], s[0:1], 64
              s_load_dwordx2 s[28:29], s[0:1], 96""")
        self.ts(0)
        a(f"""v_lshrrev_b32 v1, 6, v0
              v_and_b32 v0, 63, v0
              v_readfirstlane_b32 {s(sWave)}, v1
              s_and_b32 {s(sT0)}, s2, 7
              s_lshr_b32 {s(sT1)}, s2, 3
              s_lshr_b32 {s(sRb)}, {s(sT0)}, 1
              s_lshl_b32 {s(sRb)}, {s(sRb)}, 3
              s_and_b32 {s(sT2)}, {s(sT1)}, 7
              s_add_u32 {s(sRb)}, {s(sRb)}, {s(sT2)}
              s_and_b32 {s(sHq)}, {s(sT0)}, 1
              s_lshl_b32 {s(sHq)}, {s(sHq)}, 2
              s_lshr_b32 {s(sT2)}, {s(sT1)}, 3
              s_add_u32 {s(sHq)}, {s(sHq)}, {s(sT2)}
              s_lshl1_add_u32 {s(sRot)}, {s(sHq)}, {s(sRb)}
              s_and_b32 {s(sRot)}, {s(sRot)}, 7
              s_lshl_b32 {s(sCp)}, {s(sT0)}, 5
              s_add_u32 {s(sCp)}, {s(sCp)}, {s(sT1)}
              s_and_b32 {s(sI)}, {s(sWave)}, 3
              s_lshl_b32 {s(sI1024)}, {s(sI)}, 10
              s_mov_b32 {s(sBud)}, 0x40000
              s_mov_b32 {s(sHi)}, 0xffff0000
              s_cmp_ge_u32 {s(sWave)}, 4
              s_cbranch_scc1 L_loader""")

    def masks(self):
        a = self.a
        a(f"""v_mov_b32 v1, 0xf149f2ca
              v_mov_b32 v2, 0""")
        for r in range(16):
            jj = (r & 3) + 8 * (r >> 2)
            a(f"""s_lshl_b32 vcc_lo, -1, {jj}
                  s_lshl_b32 vcc_hi, -1, {jj+4}
                  v_cndmask_b32 {v(88+r)}, v1, v2, vcc
                  v_cndmask_b32 {v(104+r)}, v2, v1, vcc""")

    def attn_consts(self):
        out = []
        for r in range(16):
            out.append(f"v_mov_b32 {v(48+r)}, 0")
        for r in range(16):
            out.append(f"v_mov_b32 {v(64+r)}, {s(sT4)}")
        return out

    def loader_phase1(self):
        a = self.a
        vXo, vXo2, vWo, vWo2, vKVo, vK0 = 16, 17, 18, 19, 20, 21
        vGX, vGW, vG0, vG1 = 22, 23, 24, 25
        vXM = 26
        vHd, vHa = 30, 31
        vUo, vFo = 32, 33
        vRa = 34
        vKCo = 35
        a.label("L_loader")
        a.vm = []; a.lg = []
        a(f"""v_lshrrev_b32 v2, 3, v0            ; r
              v_and_b32 v3, 7, v0                ; c'
              v_lshrrev_b32 v4, 1, v2            ; r>>1
              v_and_b32 v5, 1, v4                ; (r>>1)&1
              s_lshl_b32 {s(sT0)}, {s(sI)}, 3
              v_add_u32 v6, {s(sT0)}, v2         ; 8i + r
              s_lshl_b32 {s(sT1)}, {s(sI)}, 1
              v_add_u32 v7, {s(sT1)}, v5
              v_xor_b32 v7, v7, v3
              v_lshlrev_b32 v7, 4, v7
              v_lshl_add_u32 {v(vKVo)}, v6, 10, v7
              s_and_b32 {s(sT1)}, {s(sI)}, 1
              s_lshl_b32 {s(sT1)}, {s(sT1)}, 2
              v_add_u32 v7, {s(sT1)}, v4
              v_xor_b32 v7, v7, v3
              v_lshlrev_b32 v7, 4, v7
              v_lshl_add_u32 {v(vXo)}, v6, 10, v7
              v_add_u32 {v(vXo2)}, 0x8000, {v(vXo)}
              v_lshlrev_b32 v7, 2, v5
              v_xor_b32 v7, v7, v3
              v_lshlrev_b32 v7, 4, v7
              v_mul_u32_u24 {v(vWo)}, 0xc00, v6
              v_add_u32 {v(vWo)}, {v(vWo)}, v7
              v_add_u32 {v(vWo2)}, 0x18000, {v(vWo)}
              s_lshl_b32 {s(sT2)}, {s(sRb)}, 16
              s_lshl_b32 {s(sT3)}, {s(sHq)}, 7
              s_add_u32 {s(sT2)}, {s(sT2)}, {s(sT3)}
              s_sub_u32 {s(sT3)}, {s(sT2)}, 0x2000        ; sKb
              v_add_u32 {v(vK0)}, {s(sT3)}, {v(vKVo)}
              s_waitcnt lgkmcnt(0)""")
        self.srd(sK, 12, 0x200000)
        self.srd(sV, 14, 0x200000)
        def dma(voff, srd, soff, m0c, tag, off=0, extra=""):
            a(f"s_add_u32 m0, {s(sI1024)}, {m0c - off}")
            o = f" offset:{off}" if off else ""
            a.vmem(f"buffer_load_dwordx4 {v(voff)}, {s(srd,4)}, {soff} offen{o}{extra} lds", tag)
        ldf = self.o.get("ldflag", "")
        dma(vK0, sK, 0, RR, "kv", extra=ldf)
        a(f"s_add_u32 {s(sT4)}, {s(sT3)}, 0x8000")
        dma(vKVo, sK, s(sT4), RR + 4096, "kv", extra=ldf)
        dma(vKVo, sV, s(sT2), RR + 9216, "kv", extra=ldf)
        a(f"s_add_u32 {s(sT4)}, {s(sT2)}, 0x8000")
        dma(vKVo, sV, s(sT4), RR + 9216 + 4096, "kv", extra=ldf)
        self.srd(sX, 4, 0x200000)
        self.srd(sW, 6, 0x180000)
        L1, L2, L3 = a.newlabel(), a.newlabel(), a.newlabel()
        a(f"""s_cmp_lg_u32 {s(sI)}, 0
              s_cbranch_scc1 {L1}
              s_add_u32 {s(sT4)}, {s(sT3)}, 0x10000
              s_mov_b32 m0, {RR + 8192}
              buffer_load_dwordx4 {v(vKVo)}, {s(sK,4)}, {s(sT4)} offen{ldf} lds""")
        a.label(L1)
        a(f"""s_cmp_lg_u32 {s(sI)}, 1
              s_cbranch_scc1 {L2}
              v_add_u32 v7, {s(sRot)}, v2
              v_and_b32 v7, 7, v7
              v_lshlrev_b32 v7, 7, v7
              v_lshl_add_u32 v7, v3, 4, v7
              s_mov_b32 m0, {GW}
              global_load_lds_dwordx4 v7, s[22:23]""")
        a.label(L2)
        a(f"""s_cmp_lg_u32 {s(sI)}, 2
              s_cbranch_scc1 {L3}
              v_mov_b32 v7, 0
              v_lshlrev_b32 v8, 2, v0
              v_add_u32 v8, {CNT}, v8
              ds_write_b32 v8, v7""")
        a.label(L3)

        def chunk_of(st, dst):
            a(f"""s_add_u32 {s(dst)}, {s(sRot)}, {st}
                  s_and_b32 {s(dst)}, {s(dst)}, 7""")
        def issue_stage(st):
            slot = st & 3
            chunk_of(st, sT0)
            a(f"""s_lshl_b32 {s(sT1)}, {s(sT0)}, 7
                  s_lshl_b32 {s(sT2)}, {s(sRb)}, 16
                  s_add_u32 {s(sT1)}, {s(sT1)}, {s(sT2)}
                  s_mul_i32 {s(sT2)}, {s(sT0)}, 0x30000
                  s_lshl_b32 {s(sT3)}, {s(sHq)}, 7
                  s_add_u32 {s(sT2)}, {s(sT2)}, {s(sT3)}""")
            tag = f"st{st}"
            dma(vXo, sX, s(sT1), XR + slot * 8192, tag, extra=ldf)
            dma(vWo, sW, s(sT2), WR + slot * 16384, tag, off=1024, extra=ldf)
            dma(vWo, sW, s(sT2), WR + slot * 16384 + 8192, tag, off=2048, extra=ldf)
            dma(vXo2, sX, s(sT1), XR + slot * 8192 + 4096, tag, extra=ldf)
            dma(vWo2, sW, s(sT2), WR + slot * 16384 + 4096, tag, off=1024, extra=ldf)
            dma(vWo2, sW, s(sT2), WR + slot * 16384 + 8192 + 4096, tag, off=2048, extra=ldf)
        def issue_wq(q):
            chunk_of(q, sT0)
            a(f"""s_mul_i32 {s(sT2)}, {s(sT0)}, 0x30000
                  s_lshl_b32 {s(sT3)}, {s(sHq)}, 7
                  s_add_u32 {s(sT2)}, {s(sT2)}, {s(sT3)}""")
            dma(vWo, sW, s(sT2), self.WQL[q], f"wq{q}", extra=ldf)
            dma(vWo2, sW, s(sT2), self.WQL[q] + 4096, f"wq{q}", extra=ldf)

        issue_stage(0)
        a(f"s_load_dword {s(sTag)}, s[28:29], 0")
        self.srd(sWS, 28, WS_BYTES)
        self.srd(sSK, 18, 0x200000)
        a(f"""v_lshrrev_b32 v7, 4, v0
              v_and_b32 v8, 15, v0
              v_add_u32 v9, v7, v8
              v_subrev_u32 v9, 15, v9
              v_lshlrev_b32 v9, 2, v9
              s_and_b32 {s(sT0)}, {s(sI)}, 1
              s_lshl1_add_u32 {s(sT1)}, {s(sCp)}, {s(sT0)}
              s_lshl_b32 {s(sT1)}, {s(sT1)}, 12
              v_mul_u32_u24 {v(vHa)}, {KCS}, v7
              v_lshl_add_u32 {v(vHa)}, v8, 2, {v(vHa)}
              s_mul_i32 {s(sT0)}, {s(sT0)}, {4*KCS}
              s_add_u32 {s(sT0)}, {s(sT0)}, {KC}
              v_add_u32 {v(vHa)}, {s(sT0)}, {v(vHa)}""")
        a.vmem(f"buffer_load_dword {v(vHd)}, v9, {s(sSK,4)}, {s(sT1)} offen", "hd")
        issue_stage(1)
        issue_wq(0)
        a(f"""v_and_b32 v2, 31, v0               ; token
              v_lshrrev_b32 v3, 5, v0            ; h
              v_lshrrev_b32 v4, 1, v2
              v_and_b32 v4, 7, v4                ; f(row)
              s_lshl_b32 {s(sT0)}, {s(sI)}, 1
              v_add_u32 v5, {s(sT0)}, v3         ; 2i + h
              v_xor_b32 v6, v5, v4
              v_lshlrev_b32 v6, 4, v6
              v_lshl_add_u32 {v(vGX)}, v2, 7, v6
              v_lshlrev_b32 {v(vGW)}, 4, v5
              v_add_u32 {v(vGW)}, {GW}, {v(vGW)}
              v_mov_b32 {v(vG0)}, 0
              v_mov_b32 {v(vG1)}, 0
              s_lshr_b32 {s(sT0)}, {s(sI)}, 1    ; kh
              s_lshl_b32 {s(sT0)}, {s(sT0)}, 2
              v_xor_b32 v6, {s(sT0)}, v4
              v_lshlrev_b32 v6, 4, v6
              v_lshl_add_u32 v6, v3, 3, v6
              v_lshl_add_u32 v6, v2, 7, v6
              s_and_b32 {s(sT0)}, {s(sI)}, 1     ; rt
              s_lshl_b32 {s(sT0)}, {s(sT0)}, 12
              v_add_u32 {v(vXM)}, {s(sT0)}, v6
              v_xor_b32 {v(vXM+1)}, 16, {v(vXM)}
              v_xor_b32 {v(vXM+2)}, 32, {v(vXM)}
              v_xor_b32 {v(vXM+3)}, 48, {v(vXM)}
              s_waitcnt lgkmcnt(0)
              s_add_u32 {s(sTag)}, {s(sTag)}, {TAGC}""")
        a.vm_wait("kv")
        a("s_barrier")
        self.ts(1)
        self.masks()
        a(f"s_mov_b32 {s(sT4)}, 0x3f803f80")
        for l in self.attn_consts():
            a(l)

        def gdots(st):
            a.lg_wait("g")
            for j in range(4):
                a(f"v_dot2c_f32_bf16 {v(vG0)}, {v(36+j)}, {v(44+j)}")
                a(f"v_dot2c_f32_bf16 {v(vG1)}, {v(40+j)}, {v(44+j)}")
        for st in range(8):
            slot = st & 3
            if st + 2 < 8:
                issue_stage(st + 2)
            elif st == 6:
                for q in (1, 2, 3): issue_wq(q)
            else:
                a(f"""v_and_b32 {v(vFo)}, 31, v0
                      v_lshlrev_b32 {v(vFo)}, 2, {v(vFo)}
                      s_lshr_b32 {s(sT0)}, {s(sCp)}, 3
                      s_lshl_b32 {s(sT0)}, {s(sT0)}, 7
                      s_add_u32 {s(sT0)}, {s(sT0)}, {FU}
                      v_add_u32 {v(vFo)}, {s(sT0)}, {v(vFo)}""")
                a.vmem(f"buffer_load_dword v2, {v(vFo)}, {s(sWS,4)}, 0 offen sc1", "fu")
                for q in (4, 5, 6): issue_wq(q)
            if st > 0:
                gdots(st - 1)
            if st == 1:
                a(f"""v_mov_b32 v4, 0
                      v_mov_b32 v5, 0
                      v_mov_b32 v6, 0
                      v_mov_b32 v7, 0
                      s_mul_i32 {s(sT0)}, {s(sI)}, {RS}
                      s_add_u32 {s(sT0)}, {s(sT0)}, {RR + 4096}
                      v_lshlrev_b32 v3, 4, v0
                      v_add_u32 v3, {s(sT0)}, v3
                      s_mov_b64 exec, 0xfffffff
                      ds_write_b128 v3, v[4:7]
                      s_mov_b64 exec, -1""")
                a.lg.append("w")
                a.vm_wait("hd")
                a.lds(f"ds_write_b32 {v(vHa)}, {v(vHd)}", "w")
            a.lg_all()
            a.vm_wait(f"st{st}")
            a("s_barrier")
            a.lds(f"ds_read_b128 v[36:39], {v(vGX)} offset:{XR + slot*8192}", "g")
            a.lds(f"ds_read_b128 v[40:43], {v(vGX)} offset:{XR + slot*8192 + 4096}", "g")
            a.lds(f"ds_read_b128 v[44:47], {v(vGW)} offset:{st*128}", "g")
            Ls = a.newlabel()
            chunk_of(st, sT0)
            a(f"""s_cmp_lg_u32 {s(sT0)}, {s(sHq)}
                  s_cbranch_scc1 {Ls}""")
            for q in range(4):
                a(f"ds_read_b64 {v(8+2*q,2)}, {v(vXM+q)} offset:{XR + slot*8192}")
            a("s_waitcnt lgkmcnt(0)")
            a.label(Ls)
        self.ts(2)
        issue_wq(7)
        gdots(7)
        a(f"""v_and_b32 v5, 31, v0
              v_lshrrev_b32 v3, 5, v0
              s_lshl_b32 {s(sT0)}, {s(sI)}, 1
              v_add_u32 v3, {s(sT0)}, v3
              v_lshlrev_b32 v3, 2, v3
              v_lshl_add_u32 v3, v5, 5, v3
              v_add_u32 v3, {GP}, v3
              ds_write_b32 v3, {v(vG0)}
              ds_write_b32 v3, {v(vG1)} offset:1024""")
        a(f"""v_lshrrev_b32 v3, 1, v0
              v_and_b32 v4, 1, v0
              v_mul_u32_u24 {v(vRa)}, {2*RS}, v4
              v_lshl_add_u32 {v(vRa)}, v3, 4, {v(vRa)}
              s_add_u32 {s(sT0)}, {s(sI1024)}, {RR}
              v_add_u32 {v(vRa)}, {s(sT0)}, {v(vRa)}""")
        a.lg_all()
        a.vm_wait("fu")
        a("s_barrier")
        keep = list(a.vm)
        self.poll(vFo, 0, 2, first_done=True)
        a.vm = keep
        a(f"""v_lshrrev_b32 v3, 1, v0
              v_and_b32 v4, 1, v0
              v_lshlrev_b32 {v(vUo)}, 7, v3
              v_lshl_add_u32 {v(vUo)}, v4, 4, {v(vUo)}
              s_lshr_b32 {s(sT0)}, {s(sCp)}, 2
              s_lshl_b32 {s(sT0)}, {s(sT0)}, 15
              s_and_b32 {s(sT1)}, {s(sCp)}, 3
              s_lshl_b32 {s(sT1)}, {s(sT1)}, 5
              s_add_u32 {s(sT0)}, {s(sT0)}, {s(sT1)}
              s_lshl_b32 {s(sT1)}, {s(sI)}, 13
              s_add_u32 {s(sT0)}, {s(sT0)}, {s(sT1)}
              s_add_u32 {s(sT0)}, {s(sT0)}, {UG}
              s_add_u32 {s(sT1)}, {s(sT0)}, 4096""")
        a.vmem(f"buffer_load_dwordx4 v[128:131], {v(vUo)}, {s(sWS,4)}, {s(sT0)} offen sc1", "u")
        a.vmem(f"buffer_load_dword v132, {v(vUo)}, {s(sWS,4)}, {s(sT0)} offen offset:128 sc1", "u")
        a.vmem(f"buffer_load_dwordx4 v[136:139], {v(vUo)}, {s(sWS,4)}, {s(sT1)} offen sc1", "u")
        a.vmem(f"buffer_load_dword v140, {v(vUo)}, {s(sWS,4)}, {s(sT1)} offen offset:128 sc1", "u")
        a(f"""v_lshlrev_b32 {v(vKCo)}, 4, v0
              s_lshl_b32 {s(sT0)}, {s(sCp)}, 13
              s_lshl2_add_u32 {s(sT0)}, {s(sI)}, {s(sT0)}
              s_add_u32 {s(sT0)}, {s(sT0)}, 4
              s_add_u32 {s(sT1)}, {s(sT0)}, 4096
              s_mul_i32 {s(sT2)}, {s(sI)}, {KCS}""")
        for ch in range(2):
            a(f"s_add_u32 m0, {s(sT2)}, {KC + ch*4*KCS + 64}")
            for p in range(4):
                a.vmem(f"buffer_load_dwordx4 {v(vKCo)}, {s(sSK,4)}, {s(sT0+ch)} offen offset:{1024*p} lds", "kc")
        a.vm_wait("wq4", "wq5", "wq6", "wq7")
        a("s_barrier")
        self.ts(3)
        a.vm_wait("u")
        a(f"""s_cmp_eq_u32 {s(sI)}, 3
              s_cselect_b32 vcc_hi, 0xc0000000, 0
              s_mov_b32 vcc_lo, 0
              v_mov_b32 v2, 0
              v_cndmask_b32 v140, v140, v2, vcc""")
        for j, b in ((0, 128), (1, 136)):
            for q in range(4):
                a(f"v_alignbit_b32 {v(144+4*j+q)}, {v(b+q+1)}, {v(b+q)}, 16")
            a(f"ds_write_b128 {v(vRa)}, {v(b,4)} offset:{RS + 512*j}")
            a(f"ds_write_b128 {v(vRa)}, {v(144+4*j,4)} offset:{512*j}")
        a.vm_all()
        a.lg_all()
        a("s_barrier")
        self.ts(4)

    def compute_phase1(self):
        a = self.a
        a.vm = []; a.lg = []
        vXA, vWA = 8, 12
        accK, accV, accQ, Wf = 16, 32, 48, 64
        a(f"""v_and_b32 v2, 31, v0
              v_lshrrev_b32 v3, 5, v0            ; h
              v_lshrrev_b32 v4, 1, v2
              v_and_b32 v4, 7, v4
              v_xor_b32 v4, v4, v3
              v_lshlrev_b32 v4, 4, v4
              v_lshl_add_u32 v4, v2, 7, v4
              s_lshr_b32 {s(sT0)}, {s(sI)}, 1    ; rt
              s_lshl_b32 {s(sT0)}, {s(sT0)}, 12
              v_add_u32 {v(vXA)}, {s(sT0)}, v4
              v_xor_b32 {v(vXA+1)}, 32, {v(vXA)}
              v_xor_b32 {v(vXA+2)}, 64, {v(vXA)}
              v_xor_b32 {v(vXA+3)}, 0x60, {v(vXA)}
              v_bfe_u32 v4, v0, 2, 2             ; r
              v_lshl_add_u32 v5, v3, 3, v4       ; 8h + r
              v_lshlrev_b32 v5, 7, v5
              v_and_b32 v6, 3, v0
              v_lshlrev_b32 v6, 3, v6            ; c*8
              v_bfe_u32 v7, v0, 4, 1
              v_lshl_add_u32 v6, v7, 5, v6
              s_and_b32 {s(sT0)}, {s(sI)}, 1     ; ct
              v_bfe_u32 v7, v0, 3, 1             ; (r>>1)&1
              v_xor_b32 v7, {s(sT0)}, v7
              v_lshl_add_u32 v6, v7, 6, v6
              v_add_u32 {v(vWA)}, v5, v6                     ; base 0
              v_add_u32 {v(vWA+1)}, {WR}, {v(vWA)}
              v_add_u32 {v(vWA+2)}, {WQ0}, {v(vWA)}""")
        a(f"""v_bfe_u32 v2, v0, 4, 2             ; G
              v_bfe_u32 v3, v0, 1, 1             ; c>>1
              v_lshl_add_u32 v2, v2, 1, v3       ; blk
              v_bfe_u32 v3, v0, 2, 2             ; r
              v_bfe_u32 v4, v0, 3, 1             ; r>>1
              v_and_b32 v5, 1, v0                ; half8
              v_lshlrev_b32 v5, 3, v5
              s_lshl_b32 {s(sT0)}, {s(sI)}, 1    ; cg = 2w
              v_lshl_add_u32 v6, v2, 3, v3       ; 8blk + r
              v_lshl_add_u32 v5, v6, 7, v5
              v_add_u32 v5, {RR}, v5
              v_and_b32 v6, 3, v2
              v_lshl_add_u32 v6, v6, 1, v4
              v_xor_b32 v6, {s(sT0)}, v6
              v_lshl_add_u32 v120, v6, 4, v5
              v_add_u32 v6, 1, v2
              v_and_b32 v6, 3, v6
              v_lshl_add_u32 v6, v6, 1, v4
              v_xor_b32 v6, {s(sT0)}, v6
              v_lshl_add_u32 v121, v6, 4, v5
              v_add_u32 v121, 1024, v121
              v_lshrrev_b32 v2, 3, v0
              v_sub_u32 v2, 7, v2
              v_and_b32 v3, 7, v0
              v_lshlrev_b32 v122, 7, v2
              v_lshl_add_u32 v122, v3, 4, v122
              s_lshl_b32 {s(sT0)}, {s(sHq)}, 2
              s_add_u32 {s(sT0)}, {s(sT0)}, {s(sI)}          ; grp16
              s_lshl_b32 {s(sT1)}, {s(sT0)}, 7               ; *16 ch * 8 B
              v_lshlrev_b32 v123, 3, v3
              v_add_u32 v123, {s(sT1)}, v123
              s_waitcnt lgkmcnt(0)""")
        a.vmem("global_load_dwordx2 v[124:125], v123, s[16:17]", "sw")
        a.vmem("global_load_dwordx2 v[126:127], v123, s[16:17] offset:64", "sw")
        a(f"""s_load_dword {s(sTag)}, s[28:29], 0
              s_lshl_b32 {s(sT2)}, {s(sCp)}, 2
              s_load_dword {s(sD)}, s[20:21], {s(sT2)}""")
        self.srd(sWS, 28, WS_BYTES)
        self.masks()
        a(f"""s_waitcnt lgkmcnt(0)
              s_add_u32 {s(sTag)}, {s(sTag)}, {TAGC}""")
        a.vm_wait("sw")
        a("s_barrier")
        self.ts(1)
        kq = [128, 140]; vq = [134, 146]
        for j in range(2):
            if j == 1:
                a("v_xor_b32 v120, 16, v120\nv_xor_b32 v121, 16, v121")
            a.lds(f"ds_read_b64_tr_b16 {v(kq[j],2)}, v120 offset:512", f"u{j}")
            a.lds(f"ds_read_b64_tr_b16 {v(kq[j]+2,2)}, v121", f"u{j}")
            a.lds(f"ds_read_b64_tr_b16 {v(kq[j]+4,2)}, v121 offset:512", f"u{j}")
            a.lds(f"ds_read_b64_tr_b16 {v(vq[j],2)}, v120 offset:9216", f"u{j}")
            a.lds(f"ds_read_b64_tr_b16 {v(vq[j]+2,2)}, v120 offset:9728", f"u{j}")
        a(f"""s_lshl_b32 {s(sT1)}, {s(sT0)}, 16
              s_lshl_b32 {s(sT2)}, {s(sRb)}, 10
              s_sub_u32 {s(sT1)}, {s(sT1)}, {s(sT2)}
              s_add_u32 {s(sT1)}, {s(sT1)}, {UG + 248*128}
              s_add_u32 {s(sT2)}, {s(sT1)}, 0x8000
              s_lshl_b32 {s(sT3)}, {s(sT0)}, 5
              s_add_u32 {s(sT3)}, {s(sT3)}, {s(sRb)}
              s_lshl_b32 {s(sT3)}, {s(sT3)}, 2
              s_add_u32 {s(sT3)}, {s(sT3)}, {FU}""")
        for j in range(2):
            w = 160; kf = 164; ks = 176; vf = 184; pk = 192 + 4 * j
            sw = 124 + 2 * j
            a(f"""v_lshlrev_b32 {v(w)}, 16, {v(sw)}
                  v_and_b32 {v(w+1)}, {s(sHi)}, {v(sw)}
                  v_lshlrev_b32 {v(w+2)}, 16, {v(sw+1)}
                  v_and_b32 {v(w+3)}, {s(sHi)}, {v(sw+1)}""")
            a.lg_wait(f"u{j}")
            for t in range(-3, 8):
                src = kq[j] + ((t + 4) >> 1)
                if (t + 4) & 1: a(f"v_and_b32 {v(kf+t+3)}, {s(sHi)}, {v(src)}")
                else:           a(f"v_lshlrev_b32 {v(kf+t+3)}, 16, {v(src)}")
            for t in range(8):
                src = vq[j] + (t >> 1)
                if t & 1: a(f"v_and_b32 {v(vf+t)}, {s(sHi)}, {v(src)}")
                else:     a(f"v_lshlrev_b32 {v(vf+t)}, 16, {v(src)}")
            for t in range(8):
                a(f"v_mul_f32 {v(ks+t)}, {v(w+3)}, {v(kf+t)}")
            for d in (2, 1, 0):
                for t in range(8):
                    a(f"v_fmac_f32 {v(ks+t)}, {v(w+d)}, {v(kf+t+3-d)}")
            for t in range(8):
                a(f"v_mul_f32 {v(ks+t)}, {v(ks+t)}, {v(vf+t)}")
            for q in range(4):
                a(f"v_cvt_pk_bf16_f32 {v(pk+q)}, {v(ks+7-2*q)}, {v(ks+6-2*q)}")
            a.vmem(f"buffer_store_dwordx4 {v(pk,4)}, v122, {s(sWS,4)}, {s(sT1+j)} offen sc1", "ust")
        self.ts(2)
        pend = None
        nset = 0
        def reads(st, ks):
            nonlocal nset
            slot = st & 3
            k = st * 4 + ks
            wb = Wf + 8 * (nset % 3); nset += 1
            tag = f"k{k}"
            a.lds(f"ds_read_b128 {v(128+4*k,4)}, {v(vXA+ks)} offset:{XR + slot*8192}", tag)
            o = slot * 16384 + ks * 2048
            a.lds(f"ds_read_b64_tr_b16 {v(wb,2)}, {v(vWA+1)} offset:{o}", tag)
            a.lds(f"ds_read_b64_tr_b16 {v(wb+2,2)}, {v(vWA+1)} offset:{o+512}", tag)
            a.lds(f"ds_read_b64_tr_b16 {v(wb+4,2)}, {v(vWA+1)} offset:{o+8192}", tag)
            a.lds(f"ds_read_b64_tr_b16 {v(wb+6,2)}, {v(vWA+1)} offset:{o+8192+512}", tag)
            return (k, wb)
        def mm(g):
            k, wb = g
            cK = "0" if k == 0 else v(accK, 16)
            cV = "0" if k == 0 else v(accV, 16)
            a(f"v_mfma_f32_32x32x16_bf16 {v(accK,16)}, {v(wb,4)}, {v(128+4*k,4)}, {cK}")
            a(f"v_mfma_f32_32x32x16_bf16 {v(accV,16)}, {v(128+4*k,4)}, {v(wb+4,4)}, {cV}")
        for st in range(8):
            if st == 0:
                a("s_nop 1")
            a("s_barrier")
            g0 = reads(st, 0)
            g1 = reads(st, 1)
            if pend is not None:
                mm(pend)
            a.lg_wait(f"k{g0[0]}")
            g2 = reads(st, 2)
            mm(g0)
            a.lg_wait(f"k{g1[0]}")
            g3 = reads(st, 3)
            mm(g1)
            a.lg_wait(f"k{g2[0]}")
            mm(g2)
            if st == 2:
                a.vm_all()
                self.flag_store(sT3, 2, 3)
            a.lg_all()
            pend = g3
        mm(pend)
        self.ts(3)
        a(f"""s_and_b32 {s(sT0)}, {s(sI)}, 1                 ; ct
              s_lshr_b32 {s(sT1)}, {s(sI)}, 1                ; rt
              s_lshl1_add_u32 {s(sT2)}, {s(sHq)}, {s(sT0)}   ; pair
              s_lshl1_add_u32 {s(sT3)}, {s(sRb)}, {s(sT1)}   ; kt
              s_lshl_b32 {s(sT4)}, {s(sT2)}, 7
              s_add_u32 {s(sT4)}, {s(sT4)}, {s(sT3)}
              s_lshl_b32 {s(sT4)}, {s(sT4)}, 11
              s_add_u32 {s(sT4)}, {s(sT4)}, {KVG}
              s_add_u32 {s(sT5)}, {s(sT4)}, 0x20000
              s_lshl_b32 {s(sT2)}, {s(sT2)}, 6
              s_add_u32 {s(sT2)}, {s(sT2)}, {s(sT3)}
              s_lshl_b32 {s(sT2)}, {s(sT2)}, 2
              s_add_u32 {s(sT2)}, {s(sT2)}, {FKV}
              v_lshlrev_b32 v2, 4, v0
              v_and_b32 v3, 15, v0
              v_lshlrev_b32 v3, 4, v3
              v_lshrrev_b32 v4, 5, v0
              v_lshl_add_u32 v3, v4, 8, v3
              v_bfe_u32 v4, v0, 4, 1
              v_lshl_add_u32 v5, v4, 17, v3
              v_lshl_add_u32 v6, v4, 12, v3
              s_lshl_b32 {s(sT0)}, {s(sT0)}, 13
              s_lshl_b32 {s(sT1)}, {s(sT1)}, 11
              s_add_u32 {s(sT0)}, {s(sT0)}, {s(sT1)}
              s_add_u32 {s(sT0)}, {s(sT0)}, {LB}
              v_add_u32 v6, {s(sT0)}, v6
              v_add_u32 v7, {s(sT0)}, v2""")
        for q in range(8):
            a(f"v_cvt_pk_bf16_f32 {v(accK+q)}, {v(accK+2*q)}, {v(accK+2*q+1)}")
        a.vmem(f"buffer_store_dwordx4 {v(accK,4)}, v2, {s(sWS,4)}, {s(sT4)} offen sc1", "kvst")
        a.vmem(f"buffer_store_dwordx4 {v(accK+4,4)}, v2, {s(sWS,4)}, {s(sT5)} offen sc1", "kvst")
        for q in range(8):
            a(f"v_cvt_pk_bf16_f32 {v(accV+q)}, {v(accV+2*q)}, {v(accV+2*q+1)}")
        a.vmem(f"buffer_store_dwordx4 {v(accV,4)}, v5, {s(sWS,4)}, {s(sT4)} offen offset:1024 sc1", "kvst")
        a.vmem(f"buffer_store_dwordx4 {v(accV+4,4)}, v5, {s(sWS,4)}, {s(sT4)} offen offset:1536 sc1", "kvst")
        def qreads(k):
            q, ks = k >> 2, k & 3
            loc = self.WQL[q]
            if loc == WQ0: base, o = vWA + 2, 0
            elif loc >= WR: base, o = vWA + 1, loc - WR
            else: base, o = vWA, loc
            wb = Wf + 4 * (k % 6)
            a.lds(f"ds_read_b64_tr_b16 {v(wb,2)}, {v(base)} offset:{o + ks*2048}", f"q{k}")
            a.lds(f"ds_read_b64_tr_b16 {v(wb+2,2)}, {v(base)} offset:{o + ks*2048 + 512}", f"q{k}")
        def qmm(k):
            wb = Wf + 4 * (k % 6)
            c = "0" if k == 0 else v(accQ, 16)
            a.lg_wait(f"q{k}")
            a(f"v_mfma_f32_32x32x16_bf16 {v(accQ,16)}, {v(wb,4)}, {v(128+4*k,4)}, {c}")
        for half in range(2):
            a("s_barrier")
            k0 = 16 * half
            for k in range(k0, k0 + 4): qreads(k)
            if half == 0:
                a.lds(f"ds_write_b128 v7, {v(accK,4)}", "w")
                a.lds(f"ds_write_b128 v7, {v(accK+4,4)} offset:4096", "w")
                a.lds(f"ds_write_b128 v6, {v(accV,4)} offset:1024", "w")
                a.lds(f"ds_write_b128 v6, {v(accV+4,4)} offset:1536", "w")
            for k in range(k0, k0 + 16):
                qmm(k)
                if k + 4 < k0 + 16: qreads(k + 4)
            if half == 0:
                a.vm_all()
                self.flag_store(sT2, 3, 4)
        self.ts(4)
        a(f"""s_mov_b32 {s(sT0)}, {f2u(0.25 * 1.4426950408889634):#x}
              s_and_b32 {s(sT1)}, {s(sI)}, 1
              s_lshl_b32 {s(sT1)}, {s(sT1)}, 12
              s_lshr_b32 {s(sT2)}, {s(sI)}, 1
              s_lshl_b32 {s(sT2)}, {s(sT2)}, 10
              s_add_u32 {s(sT1)}, {s(sT1)}, {s(sT2)}
              v_add_u32 v2, {s(sT1)}, v2""")
        for q in range(16):
            a(f"v_mul_f32 {v(accQ+q)}, {s(sT0)}, {v(accQ+q)}")
        for q in range(8):
            a(f"v_cvt_pk_bf16_f32 {v(accQ+q)}, {v(accQ+2*q)}, {v(accQ+2*q+1)}")
        a(f"ds_write_b128 v2, {v(accQ,4)} offset:{QF}")
        a(f"ds_write_b128 v2, {v(accQ+4,4)} offset:{QF + 2048}")
        a.lg_all()
        a("s_barrier")
        self.ts(5)

    def attn_setup(self):
        a = self.a
        a(f"""v_lshlrev_b32 v2, 4, v0
              s_lshl1_add_u32 {s(sT0)}, {s(sI)}, {s(sQt)}
              s_lshl_b32 {s(sT0)}, {s(sT0)}, 10
              v_add_u32 v3, {s(sT0)}, v2
              ds_read_b128 v[80:83], v3 offset:{QF}
              v_and_b32 v3, 15, v0
              v_lshlrev_b32 v3, 4, v3
              v_lshrrev_b32 v4, 5, v0
              v_lshl_add_u32 v3, v4, 8, v3
              v_add_u32 v3, 1024, v3
              s_lshl_b32 {s(sT0)}, {s(sI)}, 12
              s_add_u32 {s(sT0)}, {s(sT0)}, {LB}
              s_lshl_b32 {s(sT1)}, {s(sQt)}, 11
              s_add_u32 {s(sT2)}, {s(sT0)}, {s(sT1)}         ; position 0
              s_lshl_b32 {s(sT3)}, {s(sI)}, 14
              s_add_u32 {s(sT4)}, {s(sT3)}, 16384
              s_cmp_eq_u32 {s(sI)}, 0
              s_cselect_b32 {s(sT3)}, 0, {s(sT4)}
              s_add_u32 {s(sT4)}, {s(sT3)}, {7*2048}
              s_cmp_eq_u32 {s(sQt)}, 1
              s_cselect_b32 {s(sT4)}, {s(sT0)}, {s(sT4)}     ; position 1
              s_add_u32 {s(sT5)}, {s(sT3)}, {s(sT1)}         ; positions >= 2: + (8-p)*2048
              v_add_u32 v120, {s(sT2)}, v2
              v_add_u32 v121, {s(sT4)}, v2
              v_add_u32 v122, {s(sT5)}, v2
              v_add_u32 v123, {s(sT2)}, v3
              v_add_u32 v124, {s(sT4)}, v3
              v_add_u32 v125, {s(sT5)}, v3
              s_lshl1_add_u32 {s(sNt)}, {s(sRb)}, {s(sQt)}
              s_add_u32 {s(sNt)}, {s(sNt)}, 1
              s_min_u32 {s(sNt)}, {s(sNt)}, 9
              s_mov_b32 {s(sRedo)}, 0
              v_mov_b32 v126, {CNT}
              v_mov_b32 v127, 1""")

    def conv(self):
        a = self.a
        a.vm = []; a.lg = []
        vKA, vUA = 8, 9
        acc = 16
        a(f"""s_and_b32 {s(sQt)}, {s(sI)}, 1
              s_xor_b32 {s(sQt)}, {s(sQt)}, 1
              s_mov_b32 {s(sRole)}, 0""")
        a(f"""v_and_b32 v2, 3, v0
              v_mul_u32_u24 v2, {KCS}, v2
              v_bfe_u32 v3, v0, 2, 2
              v_lshrrev_b32 v4, 4, v0                        ; g
              v_add_u32 v3, v3, v4
              v_lshl_add_u32 v2, v3, 4, v2
              s_lshr_b32 {s(sT0)}, {s(sI)}, 1                ; ch
              s_and_b32 {s(sT1)}, {s(sI)}, 1                 ; rh
              s_lshl_b32 {s(sT1)}, {s(sT1)}, 8
              s_mul_i32 {s(sT2)}, {s(sT0)}, {4*KCS}
              s_add_u32 {s(sT2)}, {s(sT2)}, {s(sT1)}
              s_add_u32 {s(sT2)}, {s(sT2)}, {KC}
              v_add_u32 {v(vKA)}, {s(sT2)}, v2
              v_and_b32 v2, 1, v0
              v_mul_u32_u24 v2, {RS}, v2
              v_lshl_add_u32 v2, v4, 4, v2
              v_bfe_u32 v3, v0, 1, 3
              v_lshlrev_b32 v3, 6, v3
              v_sub_u32 v2, v2, v3
              s_mul_i32 {s(sT2)}, {s(sT0)}, {2*RS}
              s_add_u32 {s(sT2)}, {s(sT2)}, {s(sT1)}
              s_add_u32 {s(sT2)}, {s(sT2)}, {RR + 448}
              v_add_u32 {v(vUA)}, {s(sT2)}, v2""")
        def fr(buf, kind, i):
            return 128 + 64 * buf + (0 if kind == "k" else 32) + 4 * i
        issued = set()
        def rd(r, kind, i):
            issued.add((r, kind, i))
            buf = r & 1
            if kind == "k":
                a.lds(f"ds_read_b128 {v(fr(buf,'k',i),4)}, {v(vKA)} offset:{512*i + 64*r}", f"{r}k{i}")
            else:
                a.lds(f"ds_read_b128 {v(fr(buf,'u',i),4)}, {v(vUA)} offset:{512*(7-i) + 64*r}", f"{r}u{i}")
        order = []
        for i in range(8):
            order += [("k", i), ("u", i)]
        for kind, i in order[:14]:
            rd(0, kind, i)
        a(f"""s_lshl_b32 {s(sT0)}, {s(sT0)}, 4
              s_lshr_b32 {s(sD)}, {s(sD)}, {s(sT0)}
              s_and_b32 {s(sD)}, {s(sD)}, 0xffff
              s_cmp_eq_u32 {s(sT1)}, 0
              s_cselect_b32 {s(sD)}, {s(sD)}, 0
              v_and_b32 v2, 15, v0
              v_lshl_add_u32 v2, v4, 2, v2                   ; i + 4g
              v_mov_b32 v3, {s(sD)}
              v_mov_b32 v5, 0""")
        for rr in range(4):
            a(f"""v_cmp_eq_u32 vcc, {15-rr}, v2
                  v_cndmask_b32 {v(84+rr)}, v5, v3, vcc""")
        fill = []
        a(f"s_mov_b32 {s(sT4)}, 0x3f803f80")
        fill = self.attn_consts()
        pendq = list(order[14:])
        pend_r = [(0, k, i) for k, i in order[14:]]
        first = [True] * 8
        for r in range(4):
            buf = r & 1
            nxt = [(r + 1, k, i) for k, i in order] if r < 3 else []
            queue = pend_r + nxt
            pend_r = []
            seq = []
            for m in range(8):
                for d in range(m + 1):
                    for s_ in range(m + 1):
                        if max(d, s_) == m and d + s_ <= 7:
                            seq.append((d, s_))
            assert len(seq) == 36
            for n, (d, s_) in enumerate(seq):
                T = d + s_
                assert (r, "k", d) in issued and (r, "u", s_) in issued
                a.lg_wait(f"{r}k{d}", f"{r}u{s_}")
                c = "0" if first[T] else v(acc + 4 * T, 4)
                first[T] = False
                a(f"v_mfma_f32_16x16x32_bf16 {v(acc+4*T,4)}, {v(fr(buf,'u',s_),4)}, {v(fr(buf,'k',d),4)}, {c}")
                if queue and (n % 2 == 0 or queue[0][0] == r) and len(a.lg) < 14:
                    rd(*queue.pop(0))
                elif fill:
                    a(fill.pop(0))
            if r == 0:
                for T in range(8):
                    a(f"v_mfma_f32_16x16x32_bf16 {v(acc+4*T,4)}, {v(fr(0,'u',T),4)}, v[84:87], {v(acc+4*T,4)}")
            pend_r = queue
            assert all(q[0] == r + 1 for q in pend_r)
            while pend_r and len(a.lg) < 14:
                rd(*pend_r.pop(0))
        assert not fill and not pend_r
        self.ts(6)
        self.attn_setup()
        a(f"""s_lshr_b32 {s(sT0)}, {s(sI)}, 1                ; ch
              s_and_b32 {s(sT1)}, {s(sI)}, 1                 ; rh
              s_cmp_eq_u32 {s(sT0)}, 0
              s_mov_b32 {s(sT2)}, {WQ0}
              s_cselect_b32 {s(sT2)}, {EX0}, {s(sT2)}
              s_lshl_b32 {s(sT3)}, {s(sT1)}, 12
              s_add_u32 {s(sT4)}, {s(sT2)}, {s(sT3)}
              s_xor_b32 {s(sT3)}, {s(sT3)}, 4096
              s_add_u32 {s(sT3)}, {s(sT2)}, {s(sT3)}
              v_add_u32 v4, {s(sT4)}, v2
              v_add_u32 v5, {s(sT3)}, v2
              s_lshl_b32 {s(sT2)}, {s(sT0)}, 2
              v_add_u32 v6, {s(sT2)}, v126
              s_cmp_eq_u32 {s(sT1)}, 0""")
        L1, L2 = a.newlabel(), a.newlabel()
        a(f"s_cbranch_scc0 {L1}")
        for T in range(4):
            a(f"ds_write_b128 v4, {v(acc+16+4*T,4)} offset:{1024*T}")
        a(f"s_branch {L2}")
        a.label(L1)
        for T in range(4):
            a(f"ds_write_b128 v4, {v(acc+4*T,4)} offset:{1024*T}")
        for q in range(16):
            a(f"v_mov_b32 {v(acc+q)}, {v(acc+16+q)}")
        a.label(L2)
        a.lg_all()
        self.lds_signal(6, C_PAIR, 127)
        self.lds_spin(6, C_PAIR, 2, 7)
        for T in range(4):
            a.lds(f"ds_read_b128 {v(128+4*T,4)}, v5 offset:{1024*T}", f"x{T}")
        a(f"""v_and_b32 v6, 15, v0
              v_lshlrev_b32 v6, 2, v6
              v_lshrrev_b32 v7, 4, v0
              v_lshl_add_u32 v6, v7, 7, v6
              v_add_u32 v6, {s(sT3)}, v6
              s_lshl1_add_u32 {s(sT0)}, {s(sCp)}, {s(sT0)}   ; channel
              s_lshl_b32 {s(sT2)}, {s(sT1)}, 9
              s_add_u32 {s(sT2)}, {s(sT2)}, {s(sT0)}
              s_lshl_b32 {s(sT2)}, {s(sT2)}, 2
              s_add_u32 {s(sD)}, {s(sT2)}, {FY}
              s_lshl_b32 {s(sT0)}, {s(sT0)}, 12
              s_lshl_b32 {s(sT1)}, {s(sT1)}, 11
              s_add_u32 {s(sT0)}, {s(sT0)}, {s(sT1)}
              s_add_u32 {s(sT0)}, {s(sT0)}, {YG}""")
        a.lg_all()
        for T in range(4):
            for q in range(4):
                a(f"v_add_f32 {v(acc+4*T+q)}, {v(acc+4*T+q)}, {v(128+4*T+q)}")
            a(f"v_cvt_pk_bf16_f32 {v(144+2*T)}, {v(acc+4*T)}, {v(acc+4*T+1)}")
            a(f"v_cvt_pk_bf16_f32 {v(145+2*T)}, {v(acc+4*T+2)}, {v(acc+4*T+3)}")
            a(f"ds_write2_b32 v6, {v(144+2*T)}, {v(145+2*T)} offset0:{128*(T&1)} offset1:{128*(T&1)+16}")
            if T == 1:
                a("v_add_u32 v6, 1024, v6")
        a.lg_all()
        a(f"""ds_read_b128 v[128:131], v5
              ds_read_b128 v[132:135], v5 offset:1024
              s_waitcnt lgkmcnt(0)""")
        a.vmem(f"buffer_store_dwordx4 v[128:131], v2, {s(sWS,4)}, {s(sT0)} offen sc1", "y")
        a.vmem(f"buffer_store_dwordx4 v[132:135], v2, {s(sWS,4)}, {s(sT0)} offen offset:1024 sc1", "y")
        self.lds_signal(126, C_FREE, 127)
        a(f"""s_lshl_b32 {s(sT0)}, {s(sI)}, 2
              v_add_u32 v6, {s(sT0)}, v126""")
        self.lds_spin(6, C_KVL, 1, 7)
        self.ts(7)

    def b_start(self):
        a = self.a
        a.vm = []; a.lg = []
        a(f"""s_and_b32 {s(sQt)}, {s(sI)}, 1
              s_mov_b32 {s(sRole)}, 1""")
        self.attn_setup()
        Ls = a.newlabel()
        a(f"""s_cmp_eq_u32 {s(sRb)}, 0
              s_cbranch_scc1 {Ls}
              s_lshl_b32 {s(sT0)}, {s(sRb)}, 1
              s_sub_u32 {s(sT0)}, {s(sT0)}, 8
              v_and_b32 v4, 7, v0
              v_add_u32 v4, {s(sT0)}, v4
              v_max_i32 v4, 0, v4
              v_lshlrev_b32 v4, 2, v4
              s_lshl2_add_u32 {s(sT1)}, {s(sHq)}, {s(sI)}    ; head
              s_lshr_b32 {s(sT2)}, {s(sT1)}, 1
              s_lshl_b32 {s(sT2)}, {s(sT2)}, 8
              s_add_u32 {s(sT2)}, {s(sT2)}, {FKV}
              s_lshl_b32 {s(sT1)}, {s(sT1)}, 6
              s_add_u32 {s(sT1)}, {s(sT1)}, {s(sT0)}
              s_lshl_b32 {s(sT1)}, {s(sT1)}, 11
              s_add_u32 {s(sT1)}, {s(sT1)}, {KVG}""")
        self.poll(4, s(sT2), 5)
        self.ts(5)
        for g in (3, 2, 1, 0):
            a(f"""s_add_u32 m0, {s(sT3)}, {4096*g}
                  s_add_u32 {s(sT2)}, {s(sT1)}, {4096*g}""")
            for o in (2048, 3072, 0, 1024):
                a(f"buffer_load_dwordx4 v2, {s(sWS,4)}, {s(sT2)} offen offset:{o} sc1 lds")
        a.label(Ls)

    def attention(self):
        a = self.a
        a.vm = []; a.lg = []
        S = [16, 32]; O, P, Kf, Vf, Q, Z, ML, MU = 128, 144, [152, 156], [64, 72], 80, 48, 88, 104
        def kaddr(p):
            return (120, 0) if p == 0 else (121, 0) if p == 1 else (122, (8 - p) * 2048)
        def rdK(p):
            r, o = kaddr(p)
            a.lds(f"ds_read_b128 {v(Kf[p&1],4)}, {v(r)} offset:{o}", f"K{p}")
        def rdV(p):
            r, o = kaddr(p)
            a(f"s_mov_b64 exec, {s(sT0,2)}")
            a.lds(f"ds_read_b128 {v(Vf[p&1],4)}, {v(r+3)} offset:{o}", f"V{p}")
            a.lds(f"ds_read_b128 {v(Vf[p&1]+4,4)}, {v(r+3)} offset:{o+512}", f"V{p}")
            a("s_mov_b64 exec, -1")
        def qk(p):
            c = ML if p == 0 else MU if p == 8 else Z
            a.lg_wait(f"K{p}")
            a(f"v_mfma_f32_32x32x16_bf16 {v(S[p&1],16)}, {v(Kf[p&1],4)}, {v(Q,4)}, {v(c,16)}")
        a.label("L_attn")
        a(f"""s_mov_b32 {s(sT0)}, 0xffff
              s_mov_b32 {s(sT1)}, 0xffff""")
        rdK(0); rdV(0)
        a("s_waitcnt vmcnt(14)")
        rdK(1)
        qk(0)
        for p in range(9):
            sb = S[p & 1]
            if p + 1 <= 8:
                qk(p + 1)
                q = p + 2
                if p < 3:
                    a(f"s_waitcnt vmcnt({16 - 2*q})")
                elif p == 3:
                    a("s_waitcnt vmcnt(0)")
                rdV(p + 1)
                if q <= 8:
                    rdK(q)
            if p == 3:
                self.role_hook()
            for hf in range(2):
                for j in range(8):
                    a(f"v_exp_f32 {v(sb+8*hf+j)}, {v(sb+8*hf+j)}")
                    if j & 1 and j >= 3:
                        jj = j - 3
                        a(f"v_cvt_pk_bf16_f32 {v(P+4*hf+jj//2)}, {v(sb+8*hf+jj)}, {v(sb+8*hf+jj+1)}")
                a(f"v_cvt_pk_bf16_f32 {v(P+4*hf+3)}, {v(sb+8*hf+6)}, {v(sb+8*hf+7)}")
                if hf == 0:
                    a.lg_wait(f"V{p}")
                c = "0" if (p == 0 and hf == 0) else v(O, 16)
                a(f"v_mfma_f32_32x32x16_bf16 {v(O,16)}, {v(Vf[p&1]+4*hf,4)}, {v(P+4*hf,4)}, {c}")
            if p < 8:
                a(f"""s_cmp_eq_u32 {s(sNt)}, {p+1}
                      s_cbranch_scc1 {"L_attn_early" if p < 3 else "L_attn_done"}""")
        a("s_branch L_attn_done")
        a.label("L_attn_early")
        a("s_waitcnt vmcnt(0)")
        self.role_hook()
        a.label("L_attn_done")
        a.lg = []
        a(f"""v_and_b32 v2, 31, v0
              s_lshl_b32 {s(sT2)}, {s(sQt)}, 10
              s_add_u32 {s(sT2)}, {s(sT2)}, {GP}
              v_lshlrev_b32 v2, 5, v2
              v_add_u32 v2, {s(sT2)}, v2
              s_waitcnt lgkmcnt(0)
              ds_read_b128 v[160:163], v2
              ds_read_b128 v[164:167], v2 offset:16
              s_lshl1_add_u32 {s(sT2)}, {s(sRb)}, {s(sQt)}
              s_lshl_b32 {s(sT2)}, {s(sT2)}, 5
              s_lshl2_add_u32 {s(sT3)}, {s(sHq)}, {s(sI)}
              s_add_u32 {s(sT2)}, {s(sT2)}, {s(sT3)}
              s_lshl_b32 {s(sT3)}, {s(sT2)}, 10
              s_add_u32 {s(sT3)}, {s(sT3)}, {OG}
              s_lshl_b32 {s(sT2)}, {s(sT2)}, 2
              s_add_u32 {s(sT2)}, {s(sT2)}, {FO}
              s_mov_b32 {s(sT4)}, {f2u(2.0**-30):#x}
              s_mov_b32 {s(sT5)}, {f2u(2.0**30):#x}
              s_waitcnt lgkmcnt(0)
              v_add_f32 v160, v160, v161
              v_add_f32 v162, v162, v163
              v_add_f32 v164, v164, v165
              v_add_f32 v166, v166, v167
              v_add_f32 v160, v160, v162
              v_add_f32 v164, v164, v166
              v_add_f32 v160, v160, v164
              v_mul_f32 v160, {f2u(-1.4426950408889634):#x}, v160
              v_exp_f32 v160, v160
              v_lshlrev_b32 v2, 4, v0
              v_add_f32 v160, 1.0, v160                      ; 1/g
              v_cmp_nle_f32 vcc, {s(sT4)}, {v(O+8)}
              v_cmp_nge_f32 {s(sT0,2)}, {s(sT5)}, {v(O+8)}
              v_mul_f32 v161, v160, {v(O+8)}
              s_or_b64 vcc, vcc, {s(sT0,2)}""")
        if self.o.get("force_slow"):
            a("s_mov_b64 vcc, -1")
        a(f"""s_cmp_lg_u32 {s(sRedo)}, 0
              s_cbranch_scc1 L_attn_ok
              s_cbranch_vccnz L_attn_slow""")
        a.label("L_attn_ok")
        a(f"v_rcp_f32 v161, v161")
        for q in range(8):
            a(f"v_mul_f32 {v(O+q)}, {v(O+q)}, v161")
        for q in range(4):
            a(f"v_cvt_pk_bf16_f32 {v(O+q)}, {v(O+2*q)}, {v(O+2*q+1)}")
        a.vmem(f"buffer_store_dwordx4 {v(O,4)}, v2, {s(sWS,4)}, {s(sT3)} offen sc1", "o")

    def role_hook(self):
        a = self.a
        L1, L2 = a.newlabel(), a.newlabel()
        a(f"""s_cmp_lg_u32 {s(sRedo)}, 0
              s_cbranch_scc1 {L2}
              s_cmp_eq_u32 {s(sRole)}, 0
              s_cbranch_scc1 {L1}
              s_lshl_b32 {s(sT2)}, {s(sI)}, 2
              v_add_u32 v2, {s(sT2)}, v126
              s_mov_b64 exec, 1
              ds_add_u32 v2, v127 offset:{C_KVL}
              s_mov_b64 exec, -1
              s_waitcnt lgkmcnt(0)
              s_branch {L2}""")
        a.label(L1)
        keep = list(a.vm)
        self.flag_store(sD, 2, 3)
        a.vm = keep
        a.label(L2)

    def attn_slow(self):
        a = self.a
        S, Kf, Q, Z, ML, MU = 16, 152, 80, 48, 88, 104
        a.label("L_attn_slow")
        a("v_mov_b32 v162, 0xff7fffff")
        for p in range(9):
            r, o = (120, 0) if p == 0 else (121, 0) if p == 1 else (122, (8 - p) * 2048)
            c = v(ML, 16) if p == 0 else v(MU, 16) if p == 8 else "0"
            a(f"""ds_read_b128 {v(Kf,4)}, {v(r)} offset:{o}
                  s_waitcnt lgkmcnt(0)
                  v_mfma_f32_32x32x16_bf16 {v(S,16)}, {v(Kf,4)}, {v(Q,4)}, {c}""")
            for j in range(8):
                a(f"v_max3_f32 v162, v162, {v(S+2*j)}, {v(S+2*j+1)}")
            if p < 8:
                a(f"""s_cmp_eq_u32 {s(sNt)}, {p+1}
                      s_cbranch_scc1 L_slow2""")
        a.label("L_slow2")
        a(f"""v_mov_b32 v163, v162
              v_permlane32_swap_b32 v162, v163
              v_max_f32 v162, v162, v163""")
        for r in range(16):
            a(f"v_sub_f32 {v(Z+r)}, 0, v162")
            a(f"v_sub_f32 {v(ML+r)}, {v(ML+r)}, v162")
            a(f"v_sub_f32 {v(MU+r)}, {v(MU+r)}, v162")
        a(f"""s_mov_b32 {s(sRedo)}, 1
              s_branch L_attn""")

    def p3(self):
        a = self.a
        acc = [16, 32]; OF = 48; WF = 128
        vTr, vTr2, vWo = 80, 81, 82
        a(f"""v_rcp_f32 v6, v160
              s_nop 0
              v_sub_f32 v6, 1.0, v6""")
        self.lds_signal(126, C_FREE, 127)
        self.srd(sWO, 8, 0x80000)
        self.srd(sOUT, 24, 0x200000)
        a(f"""v_lshrrev_b32 v3, 3, v0
              v_bfe_u32 v4, v0, 4, 1
              v_lshlrev_b32 v4, 2, v4
              v_and_b32 v5, 7, v0
              v_xor_b32 v4, v4, v5
              v_lshlrev_b32 v4, 4, v4
              v_lshl_add_u32 {v(vWo)}, v3, 10, v4
              v_lshl_add_u32 v83, v3, 12, v4
              v_lshrrev_b32 v3, 5, v0
              v_bfe_u32 v4, v0, 2, 2
              v_lshl_add_u32 v3, v3, 2, v4
              v_lshlrev_b32 v3, 7, v3
              v_and_b32 v4, 3, v0
              v_lshl_add_u32 v3, v4, 3, v3
              v_bfe_u32 v4, v0, 4, 1
              v_lshl_add_u32 v3, v4, 5, v3
              v_bfe_u32 v4, v0, 3, 1
              v_lshl_add_u32 v3, v4, 6, v3
              ; Y flags
              s_lshr_b32 {s(sT0)}, {s(sRb)}, 4
              s_lshl_b32 {s(sT0)}, {s(sT0)}, 11
              s_lshl_b32 {s(sT1)}, {s(sHq)}, 8
              s_add_u32 {s(sT0)}, {s(sT0)}, {s(sT1)}
              s_add_u32 {s(sT0)}, {s(sT0)}, {FY}
              v_lshlrev_b32 v84, 2, v0""")
        a.vm_all()
        self.flag_store(sT2, 4, 5)
        self.ts(6)
        self.lds_spin(126, C_FREE, 8, 7)
        a(f"""s_lshl_b32 {s(sT1)}, {s(sI)}, 17
              s_lshl_b32 {s(sT2)}, {s(sHq)}, 7
              s_add_u32 {s(sT1)}, {s(sT1)}, {s(sT2)}
              s_lshl_b32 {s(sT2)}, {s(sI)}, 14
              s_add_u32 {s(sT2)}, {s(sT2)}, {KC}             ; unit 2i
              s_add_u32 {s(sT3)}, {s(sT2)}, 8192
              s_cmp_eq_u32 {s(sI)}, 3
              s_cselect_b32 {s(sT3)}, {EX0}, {s(sT3)}        ; unit 2i+1""")
        for p in range(16):
            a(f"s_add_u32 m0, {s(sT2 + (p >> 3))}, {1024*(p&7)}")
            a.vmem(f"buffer_load_dwordx4 {v(vWo)}, {s(sWO,4)}, {s(sT1)} offen lds", "wo")
            a(f"s_add_u32 {s(sT1)}, {s(sT1)}, 8192")
        self.poll(84, s(sT0), 5)
        a(f"""s_lshl2_add_u32 {s(sT1)}, {s(sHq)}, {s(sI)}
              s_lshl_b32 {s(sT1)}, {s(sT1)}, 16
              s_lshl_b32 {s(sT2)}, {s(sRb)}, 7
              s_add_u32 {s(sT1)}, {s(sT1)}, {s(sT2)}
              s_add_u32 {s(sT1)}, {s(sT1)}, {YG}
              s_add_u32 {s(sT2)}, {s(sT1)}, 0x8000
              s_lshl_b32 {s(sT3)}, {s(sI)}, 11
              s_add_u32 m0, {s(sT3)}, {QF}""")
        a.vmem(f"buffer_load_dwordx4 v83, {s(sWS,4)}, {s(sT1)} offen sc1 lds", "y")
        a(f"s_add_u32 m0, {s(sT3)}, {QF + 1024}")
        a.vmem(f"buffer_load_dwordx4 v83, {s(sWS,4)}, {s(sT2)} offen sc1 lds", "y")
        a(f"""s_lshr_b32 {s(sT0)}, {s(sI)}, 1                ; kh
              s_and_b32 {s(sT1)}, {s(sI)}, 1                 ; rt
              s_lshl_b32 {s(sT2)}, {s(sT0)}, 15
              s_add_u32 {s(sT2)}, {s(sT2)}, {KC}
              v_add_u32 {v(vTr)}, {s(sT2)}, v3
              s_add_u32 {s(sT2)}, {s(sT2)}, {3*8192}
              s_cmp_eq_u32 {s(sT0)}, 1
              s_cselect_b32 {s(sT2)}, {EX0}, {s(sT2)}
              v_add_u32 {v(vTr2)}, {s(sT2)}, v3
              s_lshl_b32 {s(sT2)}, {s(sT1)}, 11
              v_add_u32 v85, {s(sT2)}, {v(vTr)}
              v_add_u32 v87, {s(sT2)}, {v(vTr2)}
              s_xor_b32 {s(sT2)}, {s(sT2)}, 2048
              v_add_u32 v89, {s(sT2)}, {v(vTr)}
              v_add_u32 v91, {s(sT2)}, {v(vTr2)}
              v_xor_b32 v86, 64, v85
              v_xor_b32 v88, 64, v87
              v_xor_b32 v90, 64, v89
              v_xor_b32 v92, 64, v91
              s_lshl_b32 {s(sT2)}, {s(sT1)}, 6
              v_xor_b32 v93, {s(sT2)}, v3
              s_lshl_b32 {s(sT2)}, {s(sT0)}, 12
              s_add_u32 {s(sT2)}, {s(sT2)}, {QF}
              v_add_u32 v93, {s(sT2)}, v93""")
        a.vm_all()
        self.lds_signal(126, C_WO, 127)
        self.lds_spin(126, C_WO, 4, 7)
        self.ts(7)
        a(f"""s_lshl1_add_u32 {s(sT2)}, {s(sRb)}, {s(sT1)}
              s_lshl_b32 {s(sT2)}, {s(sT2)}, 5
              s_lshl_b32 {s(sT3)}, {s(sT0)}, 4
              s_add_u32 {s(sT2)}, {s(sT2)}, {s(sT3)}
              s_add_u32 {s(sT3)}, {s(sT2)}, {s(sT1)}
              s_xor_b32 {s(sT4)}, {s(sT3)}, 1
              v_and_b32 v84, 7, v0
              v_lshlrev_b32 v84, 3, v84
              s_lshl_b32 {s(sNt)}, {s(sT3)}, 2
              s_add_u32 {s(sNt)}, {s(sNt)}, {FO}
              s_lshl_b32 {s(sQt)}, {s(sT4)}, 2
              s_add_u32 {s(sQt)}, {s(sQt)}, {FO}
              s_lshl_b32 {s(sT3)}, {s(sT3)}, 10
              s_add_u32 {s(sT3)}, {s(sT3)}, {OG}
              s_lshl_b32 {s(sT4)}, {s(sT4)}, 10
              s_add_u32 {s(sT4)}, {s(sT4)}, {OG}""")
        a.vmem(f"buffer_load_dword v5, v84, {s(sWS,4)}, {s(sNt)} offen sc1", "fo")
        for q in range(4):
            a.lds(f"ds_read_b64_tr_b16 {v(96+2*q,2)}, v93 offset:{1024*q}", "y")
        def wof(late, j, ct):
            return WF + ((late * 8 + j) * 2 + ct) * 4
        first = True
        for late in range(2):
            for j in range(8):
                for ct in range(2):
                    base = 85 + 4 * late + ct + (2 if j >= 6 else 0)
                    o = 4096 * j if j < 6 else 4096 * (j - 6)
                    a.lds(f"ds_read_b64_tr_b16 {v(wof(late,j,ct),2)}, {v(base)} offset:{o}", "w")
                    a.lds(f"ds_read_b64_tr_b16 {v(wof(late,j,ct)+2,2)}, {v(base)} offset:{o+1024}", "w")
                if first and j == 1:
                    first = False
                    a.lg_wait("y")
                    for q in range(8):
                        a(f"""v_lshlrev_b32 {v(104+2*q)}, 16, {v(96+q)}
                              v_and_b32 {v(105+2*q)}, {s(sHi)}, {v(96+q)}
                              v_lshlrev_b32 v94, 16, {v(8+q)}
                              v_and_b32 v95, {s(sHi)}, {v(8+q)}
                              v_mul_f32 {v(104+2*q)}, {v(104+2*q)}, v94
                              v_mul_f32 {v(105+2*q)}, {v(105+2*q)}, v95""")
                    a(f"""s_cmp_eq_u32 {s(sT0)}, 0
                          s_cselect_b64 vcc, -1, 0
                          v_mov_b32 v94, 0
                          v_cndmask_b32 v95, v94, v6, vcc
                          v_cndmask_b32 v94, v6, v94, vcc""")
                    for q in range(16):
                        a(f"v_mul_f32 {v(acc[0]+q)}, {v(104+q)}, v95")
                        a(f"v_mul_f32 {v(acc[1]+q)}, {v(104+q)}, v94")
        a.lg_all()
        self.lds_signal(126, C_RD, 127)
        a("v_lshlrev_b32 v2, 4, v0")
        a(f"""v_and_b32 v3, 31, v0
              v_lshrrev_b32 v4, 5, v0
              v_and_b32 v7, 7, v0
              v_xor_b32 v4, v4, v7
              v_lshlrev_b32 v4, 4, v4
              v_lshl_add_u32 v3, v3, 8, v4
              s_lshl_b32 {s(sT2)}, {s(sI)}, 13
              s_add_u32 {s(sT2)}, {s(sT2)}, {FX}
              v_add_u32 v96, {s(sT2)}, v3
              v_xor_b32 v97, 32, v96
              v_xor_b32 v98, 64, v96
              v_xor_b32 v99, 0x60, v96
              v_lshrrev_b32 v3, 3, v0                        ; tk
              v_lshlrev_b32 v4, 1, v7
              v_xor_b32 v4, v4, v3
              v_lshlrev_b32 v4, 4, v4
              v_lshl_add_u32 v4, v3, 8, v4
              s_lshl_b32 {s(sT2)}, {s(sT1)}, 13
              s_lshl_b32 {s(sT5)}, {s(sT0)}, 12
              s_add_u32 {s(sT2)}, {s(sT2)}, {s(sT5)}
              s_add_u32 {s(sT2)}, {s(sT2)}, {FX}
              v_add_u32 v100, {s(sT2)}, v4
              v_xor_b32 v101, 16, v100
              v_lshlrev_b32 v102, 10, v3
              v_lshl_add_u32 v102, v7, 4, v102
              s_lshl_b32 {s(sD)}, {s(sRb)}, 16
              s_lshl_b32 {s(sT2)}, {s(sT1)}, 15
              s_add_u32 {s(sD)}, {s(sD)}, {s(sT2)}
              s_lshl_b32 {s(sT2)}, {s(sT0)}, 14
              s_add_u32 {s(sD)}, {s(sD)}, {s(sT2)}
              s_lshl_b32 {s(sT2)}, {s(sHq)}, 7
              s_add_u32 {s(sD)}, {s(sD)}, {s(sT2)}
              s_add_u32 {s(sRedo)}, {s(sD)}, 8192""")
        for late in range(2):
            if late == 0:
                a.vm_all()
                self.poll(84, s(sNt), 5, first_done=True)
            else:
                self.lds_spin(126, C_RD, 4, 7)
                self.poll(84, s(sQt), 5)
            self.ts(8 + late)
            a.vm = []
            so = sT3 + late
            for j in range(8):
                a.vmem(f"buffer_load_dwordx4 {v(OF+4*j,4)}, v2, {s(sWS,4)}, {s(so)} offen offset:{2048*(j&1)} sc1", f"o{j}")
                if j & 1:
                    a(f"s_add_u32 {s(so)}, {s(so)}, 4096")
            for j in range(8):
                a.vm_wait(f"o{j}")
                for ct in range(2):
                    a(f"v_mfma_f32_32x32x16_bf16 {v(acc[ct],16)}, {v(wof(late,j,ct),4)}, {v(OF+4*j,4)}, {v(acc[ct],16)}")
        for ct in range(2):
            for q in range(4):
                a(f"ds_write_b128 {v(96+q)}, {v(acc[ct]+4*q,4)} offset:{128*ct}")
        a.lg_all()
        a("s_barrier")
        for rd in range(2):
            for src in range(2):
                for b in range(2):
                    a.lds(f"ds_read_b128 {v(48+16*rd+8*src+4*b,4)}, {v(100+b)} offset:{16384*src + 2048*rd}", f"r{rd}")
        for rd in range(2):
            a.lg_wait(f"r{rd}")
            b = 48 + 16 * rd
            for q in range(8):
                a(f"v_add_f32 {v(b+q)}, {v(b+q)}, {v(b+8+q)}")
            for q in range(4):
                a(f"v_cvt_pk_bf16_f32 {v(b+q)}, {v(b+2*q)}, {v(b+2*q+1)}")
            a(f"buffer_store_dwordx4 {v(b,4)}, v102, {s(sOUT,4)}, {s(sD if rd == 0 else sRedo)} offen")

    def dump_ts(self):
        a = self.a
        if not self.o.get("prof"):
            return
        a(f"""s_waitcnt vmcnt(0)
              s_memtime s[4:5]
              s_memrealtime s[6:7]
              s_waitcnt lgkmcnt(0)
              s_lshl_b32 {s(sT0)}, s2, 3
              s_add_u32 {s(sT0)}, {s(sT0)}, {s(sWave)}
              s_lshl_b32 {s(sT0)}, {s(sT0)}, 6
              s_add_u32 {s(sT0)}, {s(sT0)}, {DBG}
              v_mov_b32 v1, 0
              s_mov_b64 exec, 1""")
        for k in range(11):
            a(f"""v_mov_b32 v2, {s(sTS+2*k)}
                  buffer_store_dword v2, v1, {s(sWS,4)}, {s(sT0)} offen offset:{4*k}""")
        for k, r in ((11, 4), (12, 6), (13, sBud)):
            a(f"""v_mov_b32 v2, {s(r)}
                  buffer_store_dword v2, v1, {s(sWS,4)}, {s(sT0)} offen offset:{4*k}""")

    def build(self):
        a = self.a
        self.WQL = [WQ0, XR, WR, WR + 8192, XR + 8192, WR + 16384, WR + 24576, XR + 16384]
        if self.o.get("prof"):
            for k in range(11):
                a(f"s_mov_b32 {s(sTS+2*k)}, 0")
        self.prologue()
        self.compute_phase1()
        self.conv()
        a("s_branch L_attn")
        self.loader_phase1()
        self.b_start()
        self.attention()
        self.ts(10)
        a(f"""s_cmp_lg_u32 {s(sRole)}, 0
              s_cbranch_scc1 L_p3""")
        a.vm_all()
        self.flag_store(sT2, 4, 5)
        Lx = a.newlabel()
        a(f"""s_or_b32 {s(sT0)}, s2, {s(sWave)}
              s_cmp_lg_u32 {s(sT0)}, 0
              s_cbranch_scc1 {Lx}
              v_and_b32 v4, 31, v0
              v_lshrrev_b32 v5, 5, v0
              v_lshlrev_b32 v4, 2, v4
              v_lshl_add_u32 v4, v5, 9, v4""")
        for k in range(4):
            a(f"s_mov_b32 {s(sT0)}, {FU + 1024*k}")
            self.poll(4, s(sT0), 5)
        a(f"s_mov_b32 {s(sT0)}, 0")
        self.flag_store(sT0, 4, 5)
        a.label(Lx)
        self.dump_ts()
        a("s_endpgm")
        a.label("L_p3")
        a.vm = ["o"]
        self.p3()
        self.dump_ts()
        a.label("L_end")
        a("s_endpgm")
        self.attn_slow()
        body = pad(a.lines, verbose=True)
        hdr = open("cdna_kernels/" + NAME + ".s.ref").read().split("\n")
        head = [l for l in hdr if l.startswith(";") and "@launch" not in l and "Override" not in l and "grid=ceil" not in l]
        out = head + [f"; @launch grid=(256,1,1) block=(512,1,1) lds={LDS_BYTES}",
                      '.amdgcn_target "amdgcn-amd-amdhsa--gfx950"', ".text", f".globl {NAME}_kernel", ".p2align 8",
                      f".type {NAME}_kernel,@function", f"{NAME}_kernel:"] + body + [
            '.section .rodata,"a"', ".p2align 6", f".amdhsa_kernel {NAME}_kernel",
            "  .amdhsa_next_free_vgpr 256", "  .amdhsa_next_free_sgpr 102", "  .amdhsa_accum_offset 256",
            "  .amdhsa_group_segment_fixed_size 0", "  .amdhsa_kernarg_size 104", "  .amdhsa_user_sgpr_count 2",
            "  .amdhsa_user_sgpr_kernarg_segment_ptr 1", "  .amdhsa_system_sgpr_workgroup_id_x 1",
            ".end_amdhsa_kernel", ""]
        return "\n".join(out)

if __name__ == "__main__":
    opt = {}
    outp = "cdna_kernels/" + NAME + ".s"
    for arg in sys.argv[1:]:
        if arg.startswith("-o"):
            outp = arg[2:]
        elif "=" in arg:
            k, val = arg.split("=", 1)
            opt[k] = val
        else:
            opt[arg] = True
    txt = Gen(opt).build()
    open(outp, "w").write(txt)
    print("wrote", outp, len(txt.split("\n")), "lines")
```

```python
import re

def v(n, c=1):
    return f"v{n}" if c == 1 else f"v[{n}:{n+c-1}]"

def s(n, c=1):
    return f"s{n}" if c == 1 else f"s[{n}:{n+c-1}]"

TRANS = ("v_exp_f32", "v_log_f32", "v_rcp_f32", "v_rsq_f32", "v_sqrt_f32", "v_sin_f32", "v_cos_f32",
         "v_exp_f16", "v_rcp_iflag_f32")

_reg_re = re.compile(r"^(-|\|)?(abs\()?([vsa])(\d+|\[(\d+):(\d+)\])\)?\|?$")

def regs_of(op):
    op = op.strip()
    if op == "vcc":
        return {("s", 106), ("s", 107)}
    if op == "vcc_lo":
        return {("s", 106)}
    if op == "vcc_hi":
        return {("s", 107)}
    if op == "exec":
        return {("s", 126), ("s", 127)}
    if op == "exec_lo":
        return {("s", 126)}
    if op == "exec_hi":
        return {("s", 127)}
    if op == "m0":
        return {("s", 124)}
    m = _reg_re.match(op)
    if not m:
        return set()
    k = m.group(3)
    if m.group(5) is not None:
        return {(k, i) for i in range(int(m.group(5)), int(m.group(6)) + 1)}
    return {(k, int(m.group(4)))}

def split_ops(rest):
    out, depth, cur = [], 0, ""
    for ch in rest:
        if ch == "[":
            depth += 1
        if ch == "]":
            depth -= 1
        if ch == "," and depth == 0:
            out.append(cur.strip()); cur = ""
        else:
            cur += ch
    if cur.strip():
        out.append(cur.strip())
    return out

class Ins:
    def __init__(self, text):
        self.text = text
        t = text.split(";")[0].strip()
        self.is_label = t.endswith(":")
        self.is_dir = t.startswith(".")
        self.op = ""
        self.w = set(); self.r = set()
        self.kind = None
        if self.is_label or self.is_dir or not t:
            self.label = t[:-1] if self.is_label else None
            return
        parts = t.split(None, 1)
        op = parts[0]
        self.op = op
        rest = parts[1] if len(parts) > 1 else ""
        ops = split_ops(rest)
        mods = []
        if ops:
            last = ops[-1].split()
            ops[-1] = last[0]
            mods = last[1:]
        self.ops = ops; self.mods = mods
        R = [regs_of(o) for o in ops]
        base = re.sub(r"_(e32|e64|dpp|sdwa)$", "", op)
        self.base = base
        self.dpp = op.endswith("_dpp") or any(m.startswith(("row_", "quad_perm", "wave_")) for m in mods)
        if op.startswith("v_mfma"):
            self.kind = "mfma"
            self.passes = 8 if "32x32" in op else 4
            self.w = R[0]; self.ab = R[1] | R[2]; self.c = R[3]; self.r = self.ab | self.c
            self.dname = ops[0]; self.cname = ops[3]
        elif op.startswith("v_"):
            self.kind = "valu"
            self.trans = base in TRANS
            self.dot = base.startswith("v_dot")
            if base.startswith("v_cmp"):
                self.w = R[0]; self.r = set().union(*R[1:])
            elif base.startswith("v_permlane") and "swap" in base:
                self.w = R[0] | R[1]; self.r = R[0] | R[1]
            elif base in ("v_readfirstlane_b32", "v_readlane_b32"):
                self.w = R[0]; self.r = set().union(*R[1:])
            elif "_co_" in base or base.startswith("v_div_scale") or base.startswith("v_mad_u64"):
                self.w = R[0] | R[1]; self.r = set().union(*R[2:])
            elif base == "v_nop":
                pass
            else:
                self.w = R[0]; self.r = set().union(*R[1:]) if len(R) > 1 else set()
                if base.startswith(("v_fmac", "v_dot2c", "v_pk_fmac", "v_writelane")) or op.endswith(("_sdwa", "_dpp")):
                    self.r |= R[0]
        elif op.startswith("ds_"):
            self.kind = "ds"
            if op.startswith(("ds_read", "ds_bpermute", "ds_permute", "ds_swizzle")) or "_rtn_" in op:
                self.w = R[0]; self.r = set().union(*R[1:])
            else:
                self.r = set().union(*R)
        elif op.startswith("buffer_") or op.startswith("global_"):
            self.kind = "vmem"
            self.lds = ("lds" in mods) or op.startswith("global_load_lds")
            if op in ("buffer_inv", "buffer_wbl2"):
                pass
            elif "atomic" in op:
                self.r = set().union(*R)
                if "sc0" in mods: self.w = R[0]
            elif "load" in op and not self.lds:
                self.w = R[0]; self.r = set().union(*R[1:])
            else:
                self.r = set().union(*R)
            self.wide_store = ("store_dwordx4" in op or "store_dwordx3" in op)
            if self.wide_store:
                self.sdata = R[0] if op.startswith("buffer_") else R[1]
        elif op.startswith("s_"):
            self.kind = "salu"
            if op.startswith(("s_cmp", "s_waitcnt", "s_barrier", "s_nop", "s_branch", "s_cbranch", "s_endpgm",
                              "s_sleep", "s_setprio", "s_bitcmp")):
                self.r = set().union(*R) if R else set()
            else:
                self.w = R[0] if R else set()
                self.r = set().union(*R[1:]) if len(R) > 1 else set()
                if "saveexec" in op:
                    self.w |= regs_of("exec")
        else:
            raise ValueError("unknown instr " + text)

    def states(self):
        if self.op == "s_nop":
            return int(self.ops[0], 0) + 1
        return 1


def vonly(x):
    return {r for r in x if r[0] in "va"}

def sonly(x):
    return {r for r in x if r[0] == "s"}

def need(p, c):
    n = 0
    if p.kind == "valu":
        pw_v = vonly(p.w); pw_s = sonly(p.w)
        if pw_s:
            if c.kind == "vmem" and (pw_s & c.r): n = max(n, 5)
            if c.kind == "valu" and (pw_s & c.r):
                n = max(n, 4 if c.base in ("v_readlane_b32", "v_writelane_b32") else 2)
            if c.kind == "salu" and (pw_s & c.r): n = max(n, 1)
            if c.kind == "salu" and c.op.startswith("s_cbranch_vcc") and (pw_s & regs_of("vcc")): n = max(n, 1)
        if pw_v:
            if c.kind == "valu":
                if c.dpp and (pw_v & c.r): n = max(n, 2)
                if c.base in ("v_readlane_b32", "v_readfirstlane_b32") and (pw_v & c.r): n = max(n, 1)
                if c.base.startswith("v_permlane") and (pw_v & c.r): n = max(n, 2)
                if p.trans and not c.trans and (pw_v & c.r): n = max(n, 1)
                if p.op.endswith("_sdwa") and (pw_v & (c.r | c.w)): n = max(n, 1)
                if p.dot and (pw_v & (c.r | c.w)):
                    same_acc = (c.base == p.base and c.w == p.w)
                    if not same_acc: n = max(n, 3)
            if c.kind == "mfma" and (pw_v & c.r): n = max(n, 3 if p.dot else 2)
            if c.kind in ("ds", "vmem") and (pw_v & c.r):
                if p.dot: n = max(n, 3)
                if p.trans: n = max(n, 1)
    elif p.kind == "mfma":
        big = p.passes == 8
        if c.kind == "mfma":
            if p.w & c.ab: n = max(n, 12 if big else 8)
            if p.w & c.c:
                if not (c.cname == p.dname and c.passes == p.passes): n = max(n, 10 if big else 6)
            if (p.w & c.w) and not (c.cname == p.dname and c.passes == p.passes):
                n = max(n, 10 if big else 6)
        elif c.kind in ("valu", "ds", "vmem"):
            if p.w & (c.r | c.w): n = max(n, 12 if big else 8)
            if c.kind == "valu" and (p.c & c.w): n = max(n, 7 if big else 3)
            if c.kind in ("ds", "vmem") and (p.c & c.w): n = max(n, 7 if big else 3)
    elif p.kind == "salu":
        if ("s", 124) in p.w and c.kind == "vmem" and c.lds: n = max(n, 1)
    elif p.kind == "vmem":
        if getattr(p, "wide_store", False) and c.kind in ("valu", "mfma") and (p.sdata & c.w): n = max(n, 2)
        if getattr(p, "wide_store", False) and c.kind in ("ds", "vmem") and (p.sdata & c.w): n = max(n, 1)
    return n

MAXD = 13

def pad(lines, verbose=False):
    ins = [Ins(l) for l in lines]
    nop_before = [0] * len(ins)
    saved = {}
    for it in range(4):
        changed = False
        state = []
        for i, c in enumerate(ins):
            if c.is_label:
                for st in saved.get(c.label, []):
                    state = state + [x for x in st if x not in state]
                continue
            if c.kind is None:
                continue
            state = [(p, a + nop_before[i]) for p, a in state]
            short = 0
            for p, a in state:
                short = max(short, need(p, c) - a)
            if short > 0:
                nop_before[i] += short
                state = [(p, a + short) for p, a in state]
                changed = True
            k = c.states()
            state = [(p, a + k) for p, a in state if a + k < MAXD]
            state.append((c, 0))
            if c.op.startswith(("s_branch", "s_cbranch")):
                lst = saved.setdefault(c.ops[0], [])
                st = list(state)
                if st not in lst:
                    lst.append(st); changed = True
            if c.op in ("s_branch", "s_endpgm"):
                state = []
        if not changed:
            break
    out = []
    total = 0
    for i, c in enumerate(ins):
        n = nop_before[i]
        total += n
        while n > 0:
            k = min(n, 16)
            out.append(f"    s_nop {k-1}")
            n -= k
        out.append(c.text)
    if verbose:
        print("padding wait states inserted:", total)
    return out


class Asm:
    def __init__(self):
        self.lines = []
        self.vm = []
        self.lg = []
        self._lab = 0

    def __call__(self, text):
        for l in text.strip("\n").split("\n"):
            l = l.strip()
            if not l:
                continue
            if l.endswith(":") or l.startswith("."):
                self.lines.append(l)
            else:
                self.lines.append("    " + l)

    def label(self, name):
        self.lines.append(name + ":")

    def newlabel(self, p="L"):
        self._lab += 1
        return f"{p}_{self._lab}"

    def vmem(self, text, tag):
        self(text)
        self.vm.append(tag)

    def vm_wait(self, *tags):
        idx = max(i for i, t in enumerate(self.vm) if t in tags)
        n = len(self.vm) - 1 - idx
        assert n <= 63
        self(f"s_waitcnt vmcnt({n})")
        self.vm = self.vm[idx + 1:]

    def vm_all(self):
        self("s_waitcnt vmcnt(0)")
        self.vm = []

    def lds(self, text, tag):
        self(text)
        self.lg.append(tag)

    def lg_wait(self, *tags):
        cand = [i for i, t in enumerate(self.lg) if t in tags]
        if not cand:
            return
        idx = max(cand)
        n = len(self.lg) - 1 - idx
        n = min(n, 14)
        self(f"s_waitcnt lgkmcnt({n})")
        self.lg = self.lg[len(self.lg) - n:] if n else []

    def lg_all(self):
        self("s_waitcnt lgkmcnt(0)")
        self.lg = []
```

```python
import sys, struct
from asmlib import *

NAME = "gated_mix__sliding_block__ssm_conv_h3__prompt"

LB = 65536
QF = 81920
EX0 = 90112
KC = 98304
KCS = 4224
PY = 115200
RR = 131584
RS = 4576
EX1 = 150016
GW = 158208
GP = 159232
SW = 159744
CNT = 160256
XM = 160000 - 160000 % 256 + 256
LDS_BYTES = 163840
C_KVL, C_PART, C_FREE, C_WO, C_RD, C_RD2 = 0, 16, 32, 36, 40, 44
WOB = EX0
YXB = LB + 16384
XXB = 155648
FX = KC
FXS = RR - KC

FKV, FO, FY, FU = 0x2000, 0x4000, 0x8000, 0x1000
def fidx(n): return (n >> 4) * 128 + (n & 15) * 4
UG, KVG, YG, OG, DBG = 0x100000, 0x300000, 0x700000, 0x900000, 0xC00000
WS_BYTES = 0x1000000
TAGC = 0x9E3779B9

sX, sW, sWO, sK, sV, sSK, sWS, sOUT = 32, 36, 40, 44, 48, 52, 56, 60
sWave, sRb, sHq, sRot, sTB, sTag, sI, sI4096, sBud, sHi = 64, 65, 66, 67, 68, 70, 71, 72, 73, 3
sT0, sT1, sT2, sT3, sT4, sT5 = 74, 75, 76, 77, 78, 79
sRole, sRedo, sOne = 31, 30, 27
sEx = 0
sOO, sOF, sNt = 4, 5, 6
sU0, sUF, sKO, sKO2, sKF = 7, 8, 9, 10, 11
sUS, sTs, sK4, sYO, sYF, sXS, sYS, sYF2, sOt, sEF, sEO, sKVF, sKVS, sWoS, sKt0 = 7, 9, 10, 11, 12, 13, 14, 15, 16, 17, 18, 19, 20, 21, 22
sD, sQFw, sPw, sKVLw = 32, 33, 34, 35
sXc, sWc, sUbad, sRem, sKm, sWq1, sLO = 24, 25, 23, 44, 45, 46, 47
sWT = 80
sTS = 80
sFLS = [24, 13, 32, 33, 34, 35, 48, 49, 50]

def wg_decode(wg):
    xcd, loc = wg & 7, wg >> 3
    rb = 8 * (xcd >> 1) + (loc & 7); hq = 4 * (xcd & 1) + (loc >> 3)
    return rb, hq, 32 * xcd + loc

def wg_table(wg, w):
    rb, hq, cp = wg_decode(wg)
    i = w & 3
    qt = (i & 1) if w < 4 else (i & 1) ^ 1
    tt = 2 * rb + qt
    t = [OG + (tt * 32 + 4 * hq + i) * 1024, FO + fidx(tt * 32 + 4 * hq + i), min(tt + 1, 9)]
    if w >= 4:
        rt, ct = i >> 1, i & 1
        g16 = 4 * hq + i
        pair, kt = 2 * hq + ct, 2 * rb + rt
        ko = KVG + (pair * 128 + kt) * 2048
        t += [UG + g16 * 65536 + (248 - 8 * rb) * 64, FU + (g16 * 32 + rb) * 128, ko, ko + 0x20000, FKV + (pair * 64 + kt) * 128]
    else:
        kh, rt = i >> 1, i & 1
        ch = 2 * cp + kh
        cb = 2 * hq + kh
        e = tt * 32 + 16 * kh + rt
        t += [UG + (cp >> 1) * 16384 + (cp & 1) * 32 + i * 4096,
              FU + (cp >> 3) * 128 + max(23 - 8 * i, 0) * 4,
              cp * 8192, ch * 4096 + 4 * rt + 4,
              YG + ch * 4096 + rt * 2048, FY + fidx(rt * 512 + ch),
              tt * 32768 + cb * 64,
              YG + cb * 131072 + tt * 64,
              FY + fidx((rb >> 4) * 512 + cb * 32),
              tt * 32768 + kh * 16384 + hq * 128,
              FO + fidx(e), OG + e * 1024,
              FKV + cb * 512,
              KVG + ((4 * hq + i) * 64 + 2 * rb - 8) * 2048,
              kh * 262144 + rt * 32768 + hq * 128,
              (2 * rb - 8) & 0xffffffff]
    return t

class Setup:
    def __init__(self, tbase):
        self.pat = []; self.wc = []; self.ops = []; self.tbase = tbase
    def p(self, f):
        vals = [f(l) & 0xffffffff for l in range(64)]
        if vals not in self.pat: self.pat.append(vals)
        return self.tbase + self.pat.index(vals)
    def w(self, f):
        vals = [f(i) & 0xffffffff for i in range(4)]
        if vals not in self.wc: self.wc.append(vals)
        assert len(self.wc) <= 16
        return sWT + self.wc.index(vals)
    def add(self, d, pf, wf): self.ops.append(f"v_add_u32 {v(d)}, {s(self.w(wf))}, {v(self.p(pf))}")
    def xor(self, d, pf, wf): self.ops.append(f"v_xor_b32 {v(d)}, {s(self.w(wf))}, {v(self.p(pf))}")
    def mov(self, d, pf): self.ops.append(f"v_mov_b32 {v(d)}, {v(self.p(pf))}")
    def keep(self, d, wf): self.ops.append(f"s_mov_b32 {s(d)}, {s(self.w(wf))}")
    def raw(self, t): self.ops += [x.strip() for x in t.split("\n")]
    def nq(self): return (len(self.pat) + 3) // 4
    def data(self):
        pat = self.pat + [[0] * 64] * (4 * self.nq() - len(self.pat))
        return [pat[4 * q + c][l] for q in range(self.nq()) for l in range(64) for c in range(4)]
    def attn(self, qt):
        l16 = lambda l: l * 16
        vl = lambda l: 1024 + (l >> 5) * 256 + (l & 15) * 16
        pos = [lambda i: LB + i * 4096 + qt(i) * 2048,
               lambda i: LB + i * 4096 if qt(i) else i * 16384 + 7 * 2048,
               lambda i: i * 16384 + qt(i) * 2048]
        self.add(14, l16, lambda i: QF + (2 * i + qt(i)) * 1024)
        self.add(15, lambda l: (l & 31) * 8, lambda i: GP + qt(i) * 256)
        for k in range(3):
            self.add(120 + k, l16, pos[k]); self.add(123 + k, vl, pos[k])
        self.raw(f"""s_mov_b32 {s(sRedo)}, 0
                     s_mov_b32 {s(sOne)}, 0x3f803f80
                     s_mov_b32 {s(sEx)}, 0xffff
                     s_mov_b32 {s(sEx+1)}, 0xffff
                     s_mov_b32 {s(sBud)}, 0x40000
                     s_mov_b32 {s(sHi)}, 0xffff0000
                     v_mov_b32 {v(126)}, {CNT}
                     v_mov_b32 {v(127)}, 1""")

T_WAVE, T_PB, T_PA, T_WG = 0, 1024, 1024 + 8192, 1024 + 16384
NQ = 5

LOG2E = 1.4426950408889634

def f2u(x):
    return struct.unpack("<I", struct.pack("<f", x))[0]

vO, vVf, vQ, vP, vKf, vMU = 48, 64, 80, 88, 96, 104
vML = vO
vKA, vUA, vQA, vGA, vDF = 84, 85, 86, 87, 116
vAK, vAV, vCNT, vONE = 120, 123, 126, 127

class Gen:
    def __init__(self, opt):
        self.o = opt
        self.a = Asm()
        self.tail = []
        self.role = "*"

    def tss(self, st, pre):
        m = self.o.get("prof")
        if isinstance(m, str) and m.startswith("pre" if pre else "post"):
            base = int(m[3:] if pre else m[4:])
            if 0 <= st - base < 10:
                self.a(f"s_memtime {s(sTS + 2 * (st - base + 1), 2)}")

    def tm(self, mode, k):
        if self.o.get("prof") == mode:
            self.a(f"s_memtime {s(sTS + 2 * k, 2)}")

    def ts(self, k):
        pr = self.o.get("probe")
        if pr and int(pr[1:]) == k and (self.role == pr[0] or self.role == "*"):
            self.a("s_memrealtime s[100:101]")
        if self.o.get("prof") is True or (self.o.get("prof") and k == 0):
            self.a(f"s_memtime {s(sTS + 2 * k, 2)}")

    def lds_spin(self, vaddr, off, target, vt):
        a = self.a
        L, D = a.newlabel("Lsp"), a.newlabel("Lsd")
        a.label(L)
        a(f"""ds_read_b32 {v(vt)}, {v(vaddr)} offset:{off}
              s_waitcnt lgkmcnt(0)
              v_readfirstlane_b32 {s(sT5)}, {v(vt)}
              s_cmp_ge_u32 {s(sT5)}, {target}
              s_cbranch_scc1 {D}
              s_sleep 1
              s_sub_u32 {s(sBud)}, {s(sBud)}, 1
              s_cmp_gt_i32 {s(sBud)}, 0
              s_cbranch_scc1 {L}""")
        a.label(D)
        a.lg = []

    def lds_signal(self, vaddr, off):
        a = self.a
        a(f"""s_mov_b64 exec, 1
              ds_add_u32 {v(vaddr)}, {v(vONE)} offset:{off}
              s_mov_b64 exec, -1""")
        a.lg.append("sig")

    def look(self, vt, voff, soff, mask):
        return f"""v_mov_b32 {v(vt)}, {s(sTag)}
                   s_mov_b64 exec, {mask}
                   v_mov_b32 {v(vt)}, 0
                   buffer_atomic_or {v(vt)}, {v(voff)}, {s(sWS,4)}, {soff} offen sc0 sc1
                   s_mov_b64 exec, -1"""

    def poll(self, voff, soff, vt, mask, first_done=False):
        a = self.a
        L, C, D = a.newlabel("Lpl"), a.newlabel("Lpc"), a.newlabel("Lpd")
        if first_done:
            a(f"s_branch {C}")
        a.label(L)
        a(self.look(vt, voff, soff, mask))
        a("s_waitcnt vmcnt(0)")
        a.label(C)
        a(f"""v_cmp_ne_u32 vcc, {s(sTag)}, {v(vt)}
              s_cbranch_vccz {D}
              s_sleep {int(self.o.get("sleep", 1))}
              s_sub_u32 {s(sBud)}, {s(sBud)}, 8
              s_cmp_gt_i32 {s(sBud)}, 0
              s_cbranch_scc1 {L}""")
        a.label(D)
        if not first_done:
            a.vm = []

    def flag_store(self, soff, vt):
        a = self.a
        a(f"""v_mov_b32 {v(vt)}, {s(sTag)}
              s_mov_b64 exec, 1""")
        a.vmem(f"buffer_atomic_swap {v(vt)}, off, {s(sWS,4)}, {s(soff)} sc1", "flag")
        a("s_mov_b64 exec, -1")

    def srd_const(self, d, size):
        self.a(f"""s_mov_b32 {s(d+2)}, {size}
                   s_mov_b32 {s(d+3)}, 0x20000""")

    def srd_ptr(self, d, p):
        self.a(f"s_mov_b64 {s(d,2)}, {s(p,2)}")

    def prologue(self):
        a = self.a
        a(f"""s_load_dwordx16 s[4:19], s[0:1], 0
              s_load_dwordx8 s[20:27], s[0:1], 64
              s_load_dwordx2 s[28:29], s[0:1], 96
              s_cmp_ge_u32 s2, 256
              s_cbranch_scc1 L_end""")
        if self.o.get("prof"):
            a("s_memtime s[96:97]\ns_memrealtime s[98:99]")
        a(f"""v_lshrrev_b32 v1, 6, v0
              v_and_b32 v0, 63, v0
              v_readfirstlane_b32 {s(sWave)}, v1
              s_getpc_b64 {s(sTB,2)}
              s_add_u32 {s(sTB)}, {s(sTB)}, L_tab@rel32@lo+4
              s_addc_u32 {s(sTB+1)}, {s(sTB+1)}, L_tab@rel32@hi+12
              s_cmp_lt_u32 {s(sWave)}, 4
              s_cbranch_scc1 L_loader
              v_lshlrev_b32 v2, 4, v0
              v_add_u32 v1, {T_PA + 4096}, v2""")
        for q in range(NQ):
            a(f"global_load_dwordx4 {v(128+4*q,4)}, v1, {s(sTB,2)} offset:{1024*q - 4096}")
        self.scalar_tables()
        a("s_branch L_compute")
        a.label("L_loader")

    def decode(self):
        self.a(f"""s_bfe_u32 {s(sRb)}, s2, 0x20001                ; xcd >> 1
              s_bfe_u32 {s(sT2)}, s2, 0x30003                ; local & 7
              s_lshl3_add_u32 {s(sRb)}, {s(sRb)}, {s(sT2)}
              s_and_b32 {s(sHq)}, s2, 1
              s_lshr_b32 {s(sT2)}, s2, 6
              s_lshl2_add_u32 {s(sHq)}, {s(sHq)}, {s(sT2)}
              s_lshl1_add_u32 {s(sRot)}, {s(sHq)}, {s(sRb)}
              s_and_b32 {s(sRot)}, {s(sRot)}, 7
              s_and_b32 {s(sI)}, {s(sWave)}, 3""")

    def scalar_tables(self):
        self.a(f"""s_lshl_b32 {s(sT0)}, {s(sWave)}, 6
              s_load_dwordx16 {s(sWT,16)}, {s(sTB,2)}, {s(sT0)}""")

    def setup_done(self):
        if self.o.get("prof"):
            self.a(f"s_mov_b32 {s(sTS)}, s96\ns_mov_b32 s26, s98")
            for k in range(1, 11):
                self.a(f"s_mov_b32 {s(sTS+2*k)}, 0")

    def mask_ops(self, vn, vz):
        out = [[f"v_mov_b32 {v(vn)}, 0xf149f2ca", f"v_mov_b32 {v(vz)}, 0"]]
        for r in range(16):
            jj = (r & 3) + 8 * (r >> 2)
            out.append([f"s_lshl_b32 vcc_lo, -1, {jj}", f"s_lshl_b32 vcc_hi, -1, {jj+4}",
                        f"v_cndmask_b32 {v(vML+r)}, {v(vn)}, {v(vz)}, vcc",
                        f"v_cndmask_b32 {v(vMU+r)}, {v(vz)}, {v(vn)}, vcc"])
        return out

    def const_ops(self):
        out = []
        for r in range(16):
            out.append([f"v_mov_b32 {v(vVf+r)}, {s(sOne)}"])
        return out

    def u_reads(self, j):
        a = self.a
        kq, vq = 200 + 10 * j, 206 + 10 * j
        if j == 1:
            a("v_xor_b32 v192, 16, v192\nv_xor_b32 v193, 16, v193")
        a.lds(f"ds_read_b64_tr_b16 {v(kq,2)}, v192 offset:512", f"u{j}")
        a.lds(f"ds_read_b64_tr_b16 {v(kq+2,2)}, v193 offset:1024", f"u{j}")
        a.lds(f"ds_read_b64_tr_b16 {v(kq+4,2)}, v193 offset:1536", f"u{j}")
        a.lds(f"ds_read_b64_tr_b16 {v(vq,2)}, v192 offset:9216", f"u{j}")
        a.lds(f"ds_read_b64_tr_b16 {v(vq+2,2)}, v192 offset:9728", f"u{j}")

    def u_math(self, j):
        a = self.a
        kq, vq, sw, kx, ks, vf, pk = 200 + 10 * j, 206 + 10 * j, 196 + 2 * j, 220, 226, 234, 244 + 4 * j
        a.lg_wait(f"u{j}")
        a(f"""v_alignbit_b32 {v(sw)}, {v(sw)}, {v(sw)}, 16
              v_alignbit_b32 {v(sw+1)}, {v(sw+1)}, {v(sw+1)}, 16""")
        for q in range(5):
            a(f"v_alignbit_b32 {v(kx+q)}, {v(kq+q+1)}, {v(kq+q)}, 16")
        def lo(t): return kq + (t + 1) // 2 if t & 1 else kx + t // 2
        def hi(t): return kq + (t + 3) // 2 if t & 1 else kx + (t + 2) // 2
        order = [1, 3, 5, 7, 0, 2, 4, 6]
        for t in order:
            a(f"v_dot2_f32_bf16 {v(ks+t)}, {v(lo(t))}, {v(sw+1)}, 0")
        for t in order:
            a(f"v_dot2_f32_bf16 {v(ks+t)}, {v(hi(t))}, {v(sw)}, {v(ks+t)}")
        for t in range(8):
            src = vq + (t >> 1)
            if t & 1: a(f"v_and_b32 {v(vf+t)}, {s(sHi)}, {v(src)}")
            else:     a(f"v_lshlrev_b32 {v(vf+t)}, 16, {v(src)}")
        for t in range(0, 8, 2):
            a(f"v_pk_mul_f32 {v(ks+t,2)}, {v(ks+t,2)}, {v(vf+t,2)}")
        for q in range(4):
            a(f"v_cvt_pk_bf16_f32 {v(pk+q)}, {v(ks+7-2*q)}, {v(ks+6-2*q)}")
        if j == 1:
            a(f"s_add_u32 {s(sU0)}, {s(sU0)}, 0x8000")
        a.vmem(f"buffer_store_dwordx4 {v(pk,4)}, v194, {s(sWS,4)}, {s(sU0)} offen sc1", "ust")

    def loader_phase1(self):
        a = self.a
        vXa, vXb, vWa, vWb, vKVo, vK0 = 16, 17, 18, 19, 20, 21
        vHd, vHa, vUo, vFo, vRa, vFu, vKc = 22, 23, 24, 25, 26, 27, 28
        a.vm = []; a.lg = []
        ldf = " nt" if self.o.get("ntkv") else ""
        ldx = " nt" if self.o.get("ntx") else ""
        ldw = " nt" if self.o.get("ntw") else ""
        st = self.stB = Setup(128)
        kh = lambda i: i >> 1
        rt = lambda i: i & 1
        l16 = lambda l: l * 16
        st.attn(rt)
        st.mov(2, l16)
        st.mov(28, lambda l: ((((l >> 4) & 1) + (l & 15) - 15) * 4) | ((l >> 5) << 12))
        st.mov(vHa, lambda l: KC + (l >> 4) * KCS + (l & 15) * 4)
        st.add(31, l16, lambda i: RR + 4096 + i * RS)
        st.add(vRa, lambda l: RR + (l & 1) * 2 * RS + (l >> 1) * 16, lambda i: i * 1024)
        st.mov(vUo, lambda l: (l >> 1) * 64 + (l & 1) * 16)
        st.mov(30, lambda l: (l >> 2) * 1024 + (((l >> 4) ^ l) & 3) * 16)
        st.add(32, lambda l: EX1 + (l & 31) * 64 + ((l >> 2) & 3) * 16 + (l >> 5) * 8, lambda i: i * 2048)
        st.raw("v_xor_b32 v33, 16, v32\nv_xor_b32 v34, 32, v32\nv_xor_b32 v35, 48, v32")
        st.mov(1, lambda l: (l >> 3) * 1024 + (((((l >> 4) & 1) << 2) ^ l) & 7) * 16)
        ex = lambda i: (EX1 if kh(i) else EX0)
        st.add(240, lambda l: l * 32, lambda i: ex(i) + rt(i) * 4096)
        st.add(241, lambda l: l * 32, lambda i: PY + i * 4096)
        trc = lambda l: (l & 3) * 8 + ((l >> 4) & 1) * 32
        trr = lambda l: 4 * (l >> 5) + ((l >> 2) & 3)
        st.add(242, lambda l: QF + trr(l) * 64 + trc(l), lambda i: i * 2048)
        st.mov(243, lambda l: (l >> 2) * 4096 + (l & 3) * 16)
        st.mov(244, lambda l: fidx(l) if l < 32 else (l & 7) * 8 + ((l >> 3) & 1) * 4)
        st.add(246, lambda l: (l & 31) * 256 + (((l >> 5) ^ l) & 7) * 16, lambda i: FX + rt(i) * 8192 + kh(i) * (FXS + 128))
        st.add(247, lambda l: (l >> 3) * 256 + ((2 * (l & 7)) ^ (l >> 3)) * 16, lambda i: FX + rt(i) * 8192 + kh(i) * 4096)
        st.mov(248, lambda l: (l >> 3) * 1024 + (l & 7) * 16)
        st.xor(249, lambda l: KC + trr(l) * 128 + trc(l) + ((l >> 3) & 1) * 64, lambda i: kh(i) * 8192 + rt(i) * 2048 + kh(i) * 64)
        st.raw(f"""v_add_u32 v40, {PY - KC}, v249
                   v_xor_b32 v42, 0x800, v249
                   v_add_u32 v36, {s(st.w(lambda i: ex(i) - kh(i) * 8192 - KC))}, v249
                   v_add_u32 v38, {s(st.w(lambda i: ex(i) - kh(i) * 8192 - KC))}, v42
                   v_add_u32 v42, {PY - KC}, v42
                   v_xor_b32 v41, 64, v40
                   v_xor_b32 v43, 64, v42""")
        st.keep(sKm, lambda i: KC + 64 + i * KCS)
        st.keep(sWq1, lambda i: ex(i) + rt(i) * 4096)
        a("s_setprio 3")
        self.decode()
        a(f"""v_lshrrev_b32 v2, 3, v0            ; r
              v_and_b32 v3, 7, v0                ; c'
              v_lshrrev_b32 v4, 4, v0            ; r>>1
              v_and_b32 v5, 1, v4                ; (r>>1)&1
              s_lshl_b32 {s(sT0)}, {s(sI)}, 3
              v_add_u32 v6, {s(sT0)}, v2         ; 8i + r
              s_lshl_b32 {s(sT1)}, {s(sI)}, 1
              v_add_u32 v7, {s(sT1)}, v5
              v_xor_b32 v7, v7, v3
              v_lshlrev_b32 v7, 4, v7
              v_lshl_add_u32 {v(vKVo)}, v6, 10, v7
              s_lshl_b32 {s(sT2)}, {s(sRb)}, 16
              s_lshl_b32 {s(sT5)}, {s(sHq)}, 7
              s_add_u32 {s(sT2)}, {s(sT2)}, {s(sT5)}
              s_add_u32 {s(sT3)}, {s(sI)}, 1                 ; k rows sit one piece further in the staging area
              s_xor_b32 {s(sT3)}, {s(sT3)}, {s(sI)}
              s_and_b32 {s(sT3)}, {s(sT3)}, 3
              s_lshl_b32 {s(sT3)}, {s(sT3)}, 5
              v_xor_b32 {v(vK0)}, {s(sT3)}, {v(vKVo)}
              s_lshr_b32 {s(sT3)}, {s(sI)}, 1
              v_xor_b32 v8, {s(sT3)}, v0
              v_lshlrev_b32 v8, 4, v8
              s_lshl_b32 {s(sT3)}, {s(sI)}, 10
              s_add_u32 {s(sT3)}, {s(sT3)}, {s(sT2)}
              s_sub_u32 {s(sT3)}, {s(sT3)}, 0x1000
              v_add_u32 v8, {s(sT3)}, v8
              s_lshl2_add_u32 {s(sT3)}, {s(sHq)}, {s(sI)}
              s_lshl_b32 {s(sT3)}, {s(sT3)}, 7
              v_lshlrev_b32 v9, 4, v0
              v_add_u32 v9, {s(sT3)}, v9
              s_add_u32 {s(sT3)}, {s(sT1)}, {s(sRot)}
              v_add_u32 v10, {s(sT3)}, v2
              v_and_b32 v10, 7, v10
              v_lshlrev_b32 v10, 7, v10
              v_lshl_add_u32 v10, v3, 4, v10
              v_add_u32 v6, {s(sT0)}, v6         ; 16i + r
              v_xor_b32 v7, v4, v3
              v_lshlrev_b32 v7, 4, v7
              v_lshl_add_u32 {v(vXa)}, v6, 10, v7
              v_xor_b32 {v(vXb)}, 64, {v(vXa)}
              v_add_u32 {v(vXb)}, 7168, {v(vXb)}
              v_lshlrev_b32 v7, 2, v5
              v_xor_b32 v7, v7, v3
              v_lshlrev_b32 v7, 4, v7
              v_mul_u32_u24 {v(vWa)}, 0xc00, v6
              v_add_u32 {v(vWa)}, {v(vWa)}, v7
              v_add_u32 {v(vWb)}, 23552, {v(vWa)}
              s_lshl_b32 {s(sI4096)}, {s(sI)}, 12
              s_lshl_b32 {s(sT1)}, {s(sI)}, 10
              s_lshl_b32 {s(sT3)}, {s(sI)}, 7
              s_add_u32 {s(sT4)}, {s(sT2)}, 0x8000""")
        self.srd_const(sK, 0x200000); self.srd_const(sV, 0x200000)
        self.srd_const(sX, 0x200000); self.srd_const(sW, 0x180000 + 2048); self.srd_const(sOUT, 0x200000)
        a(f"""s_add_u32 m0, {s(sT3)}, {SW}
              s_mov_b64 exec, 0xff
              s_waitcnt lgkmcnt(0)""")
        a.vmem("global_load_lds_dwordx4 v9, s[16:17]", "kv")
        a(f"s_add_u32 m0, {s(sT3)}, {RR + 512}")
        self.srd_ptr(sK, 12)
        a.vmem(f"buffer_load_dwordx4 v8, {s(sK,4)}, 0 offen{ldf} lds", "kv")
        a(f"""s_mov_b64 exec, -1
              s_add_u32 m0, {s(sT1)}, {RR + 1024}""")
        self.srd_ptr(sV, 14)
        a.vmem(f"buffer_load_dwordx4 {v(vK0)}, {s(sK,4)}, {s(sT2)} offen{ldf} lds", "kv")
        a(f"s_add_u32 m0, {s(sT1)}, {RR + 1024 + 4096}")
        self.srd_ptr(sX, 4)
        a.vmem(f"buffer_load_dwordx4 {v(vK0)}, {s(sK,4)}, {s(sT4)} offen{ldf} lds", "kv")
        a(f"""s_add_u32 m0, {s(sT1)}, {RR + 9216}
              s_lshl_b32 {s(sT3)}, {s(sT3)}, 1""")
        a.vmem(f"buffer_load_dwordx4 {v(vKVo)}, {s(sV,4)}, {s(sT2)} offen{ldf} lds", "kv")
        a(f"""s_add_u32 m0, {s(sT1)}, {RR + 9216 + 4096}
              s_nop 0""")
        a.vmem(f"buffer_load_dwordx4 {v(vKVo)}, {s(sV,4)}, {s(sT4)} offen{ldf} lds", "kv")
        a(f"""s_add_u32 m0, {s(sT3)}, {GW}
              s_mov_b64 exec, 0xffff""")
        a.vmem("global_load_lds_dwordx4 v10, s[22:23]", "st0")
        a(f"""s_mov_b64 exec, -1
              s_sub_u32 {s(sW)}, s6, 2048""")
        self.srd_ptr(sOUT, 24)
        a(f"""s_subb_u32 {s(sW+1)}, s7, 0
              s_lshl_b32 {s(sXc)}, {s(sRot)}, 7
              s_lshl_b32 {s(sT0)}, {s(sRb)}, 16
              s_add_u32 {s(sXc)}, {s(sXc)}, {s(sT0)}
              s_mul_i32 {s(sWc)}, {s(sRot)}, 0x30000
              s_add_u32 {s(sWc)}, {s(sWc)}, {s(sT5)}
              s_add_u32 {s(sWc)}, {s(sWc)}, 1024""")

        def adv_w():
            a(f"""s_add_u32 {s(sWc)}, {s(sWc)}, 0x30000
                  s_sub_u32 {s(sT0)}, {s(sWc)}, 0x180000
                  s_cselect_b32 {s(sWc)}, {s(sWc)}, {s(sT0)}""")
        def issue_stage(st):
            tag = f"st{st}"
            a(f"s_add_u32 m0, {s(sI4096)}, {(st % 6) * 16384}")
            if st < 8:
                a("s_nop 0")
                a.vmem(f"buffer_load_dwordx4 {v(vXa)}, {s(sX,4)}, {s(sXc)} offen{ldx} lds", tag)
                a.vmem(f"buffer_load_dwordx4 {v(vWa)}, {s(sW,4)}, {s(sWc)} offen offset:2048{ldw} lds", tag)
                a.vmem(f"buffer_load_dwordx4 {v(vXb)}, {s(sX,4)}, {s(sXc)} offen offset:1024{ldx} lds", tag)
                a.vmem(f"buffer_load_dwordx4 {v(vWb)}, {s(sW,4)}, {s(sWc)} offen offset:3072{ldw} lds", tag)
                a(f"""s_add_u32 {s(sT0)}, {s(sXc)}, 128
                      s_and_b32 {s(sT0)}, {s(sT0)}, 0x3ff
                      s_andn2_b32 {s(sXc)}, {s(sXc)}, 0x3ff
                      s_or_b32 {s(sXc)}, {s(sXc)}, {s(sT0)}""")
                adv_w()
            else:
                a(f"s_add_u32 {s(sT1)}, {s(sWc)}, 2048")
                a.vmem(f"buffer_load_dwordx4 {v(vWa)}, {s(sW,4)}, {s(sT1)} offen{ldw} lds", tag)
                a.vmem(f"buffer_load_dwordx4 {v(vWb)}, {s(sW,4)}, {s(sT1)} offen offset:1024{ldw} lds", tag)
                adv_w()
                a.vmem(f"buffer_load_dwordx4 {v(vWa)}, {s(sW,4)}, {s(sWc)} offen offset:2048{ldw} lds", tag)
                a.vmem(f"buffer_load_dwordx4 {v(vWb)}, {s(sW,4)}, {s(sWc)} offen offset:3072{ldw} lds", tag)
                adv_w()
            if st == 7:
                a(f"s_add_u32 {s(sWc)}, {s(sWc)}, 1024")
            if st == 11:
                a(f"s_sub_u32 {s(sWc)}, {s(sWc)}, 2048")

        D = int(self.o.get("depth", 2))
        D0 = int(self.o.get("depth0", 0))
        issue_stage(0)
        for st in range(1, D0 + 1):
            issue_stage(st)
        nissued = D0 + 1
        a("s_setprio 0")
        self.srd_const(sWS, WS_BYTES); self.srd_ptr(sWS, 28)
        self.srd_const(sSK, 0x200000); self.srd_ptr(sSK, 18)
        self.srd_const(sWO, 0x80000); self.srd_ptr(sWO, 8)
        self.scalar_tables()
        a(f"""s_mov_b32 {s(sRole)}, 1
              s_lshl_b32 {s(sRem)}, {s(sI)}, 14
              v_mov_b32 v44, 0
              v_mov_b32 v45, 0
              v_mov_b32 v46, 0
              v_mov_b32 v47, 0
              v_lshlrev_b32 v8, 2, v0
              v_add_u32 v8, {CNT}, v8
              ds_write_b32 v8, v44
              v_and_b32 v39, 7, v0""")
        a(f"s_mov_b32 {s(sOne)}, 0x3f803f80")
        for g in self.mask_ops(4, 5) + self.const_ops():
            for l in g: a(l)
        a.vm_wait("kv")
        a("s_barrier")
        a("s_branch L_b1")
        a("@ASTART@:")
        a.label("L_b1")
        for st in range(nissued, int(self.o.get("depthk", 2)) + 1):
            issue_stage(st); nissued += 1
        a(f"""v_lshlrev_b32 v1, 4, v0
              v_add_u32 v1, {T_PB + 4096}, v1""")
        for q in range(self.stB.nq()):
            a.vmem(f"global_load_dwordx4 {v(128+4*q,4)}, v1, {s(sTB,2)} offset:{1024*q - 4096}", "tab")
        a(f"""s_load_dword {s(sTag)}, s[28:29], 0
              s_lshl2_add_u32 {s(sT0)}, s2, {s(sI)}
              s_lshl_b32 {s(sT0)}, {s(sT0)}, 7
              s_load_dwordx16 s[4:19], {s(sTB,2)}, {s(sT0)} offset:{T_WG}
              s_load_dwordx4 s[20:23], {s(sTB,2)}, {s(sT0)} offset:{T_WG + 64}""")
        idle = [[l] for l in self.stB.ops]
        setup_open = True
        IB = int(self.o.get("idleb", 18))
        def issue_wo(q):
            if q == 1:
                a(f"s_mov_b32 m0, {s(sWq1)}")
            else:
                a(f"s_add_u32 m0, {s(sI4096)}, {[PY, 0, KC, RR][q]}")
            a(f"s_add_u32 {s(sT0)}, {s(sWoS)}, {q * 65536}")
            for p in range(4):
                a.vmem(f"buffer_load_dwordx4 v1, {s(sWO,4)}, {s(sT0)} offen offset:{1024*p} lds", f"wo{q}")
                if p < 3: a(f"s_add_u32 {s(sT0)}, {s(sT0)}, 7168")
        self.issue_wo = issue_wo
        D1 = int(self.o.get("depth1", 2))

        def u_loads():
            a.vmem(f"buffer_load_dwordx4 v[128:131], {v(vUo)}, {s(sWS,4)}, {s(sUS)} offen sc1", "u")
            a.vmem(f"buffer_load_dwordx4 v[136:139], {v(vUo)}, {s(sWS,4)}, {s(sUS)} offen offset:2048 sc1", "u")
            a(f"""s_cmp_eq_u32 {s(sI)}, 3
                  s_cselect_b32 {s(sT1)}, {WS_BYTES}, {s(sUS)}
                  s_lshl_b64 exec, 3, 62""")
            a.vmem(f"buffer_load_dword v141, {v(vUo)}, {s(sWS,4)}, {s(sT1)} offen offset:{2048+64} sc1", "u")
            a("s_mov_b64 exec, -1")

        UP = int(self.o.get("upoll", 10))
        KC0 = int(self.o.get("kc0", 9))
        KCN = int(self.o.get("kcn", 2))
        TS, XT = int(self.o.get("ts", 8)), int(self.o.get("xt", 7))
        WO0 = int(self.o.get("wo0", 14))
        uflag_done = hd_done = xm_done = False
        sPW, sPS, sPO, sJ = 48, 49, 50, 51
        tq = []
        if self.o.get("touch"):
            for kind in self.o.get("tord", "vsq"):
                for k in range(16):
                    tq.append({"v": f"s_load_dword {s(sJ)}, {s(sW,2)}, {s(sPW)} offset:{4096 + 3072*k}",
                               "q": f"s_load_dword {s(sJ)}, {s(sW,2)}, {s(sPW)} offset:{2048 + 3072*k}",
                               "s": f"s_load_dword {s(sJ)}, {s(sSK,2)}, {s(sPS)} offset:{128*k}",
                               "o": f"s_load_dword {s(sJ)}, {s(sWO,2)}, {s(sPO)} offset:{1024*k}"}[kind])
        TN, T0 = int(self.o.get("tn", 6)), int(self.o.get("t0", 4))
        for st in range(16):
            if st == UP:
                for k in range(9):
                    a(f"s_load_dword {s(sFLS[k])}, s[28:29], {s(sUF)} offset:{4*k}")
            while nissued <= min(st + (D0 if st == 0 else D1 if st == 1 else D), 15):
                issue_stage(nissued); nissued += 1
            if st == int(self.o.get('uload', 13)):
                a.lg_all()
                u_loads()
                a(f"s_xor_b32 {s(sUbad)}, {s(sFLS[0])}, {s(sTag)}")
                for k in range(1, 9):
                    a(f"""s_xor_b32 {s(sT0)}, {s(sFLS[k])}, {s(sTag)}
                          s_or_b32 {s(sUbad)}, {s(sUbad)}, {s(sT0)}""")
            if st in (WO0, WO0 + 1):
                issue_wo(st - WO0)
            if st >= KC0:
                for p in range((st - KC0) * KCN, min((st - KC0 + 1) * KCN, 4)):
                    if p % KCN == 0:
                        a(f"s_mov_b32 m0, {s(sKm)}")
                    a.vmem(f"buffer_load_dwordx4 v2, {s(sSK,4)}, {s(sK4)} offen offset:{1024*p}{ldf} lds", "kc")
            if st == XT + 1:
                a("""s_mov_b64 exec, 0xfffffff
                     ds_write_b128 v31, v[44:47]
                     s_mov_b64 exec, -1""")
            if st > XT and not xm_done and "xm" not in a.vm:
                for q in range(4):
                    a(f"ds_read_b64 {v(6+2*q,2)}, {v(32+q)}")
                xm_done = True
            if st == XT:
                assert not idle
                a(f"""
                      s_add_u32 {s(sTag)}, {s(sTag)}, {TAGC}
                      v_add_u32 v39, {s(sKt0)}, v39
                      s_xor_b32 {s(sLO)}, {s(sEO)}, 1024
                      v_max_i32 v39, 0, v39
                      v_and_b32 v3, 0x70, v39
                      v_add_lshl_u32 v39, v39, v3, 2
                      s_mov_b32 exec_hi, 0
                      v_add_u32 v244, {s(sYF2)}, v244
                      s_not_b64 exec, exec
                      v_xor_b32 v244, {s(sEF)}, v244
                      s_mov_b64 exec, -1
                      s_lshl_b32 {s(sT0)}, {s(sI)}, 11
                      s_add_u32 m0, {s(sT0)}, {EX1}
                      s_add_u32 {s(sT0)}, {s(sXS)}, {16384 - 1024}""")
                a.vmem(f"buffer_load_dwordx4 v30, {s(sX,4)}, {s(sXS)} offen lds", "xm")
                a.vmem(f"buffer_load_dwordx4 v30, {s(sX,4)}, {s(sT0)} offen offset:1024 lds", "xm")
            if st > TS and not hd_done and "hd" not in a.vm:
                a(f"ds_write_b32 {v(vHa)}, {v(vHd)}")
                hd_done = True
            if st == TS:
                a.vmem(f"buffer_load_dword {v(vHd)}, v28, {s(sSK,4)}, {s(sTs)} offen", "hd")
            if st == T0:
                a("s_waitcnt lgkmcnt(0)")
            if st == T0 and tq:
                a(f"""
                      s_mul_i32 {s(sPW)}, {s(sRot)}, 0x30000
                      s_mul_i32 {s(sT0)}, {s(sI)}, {16*3072}
                      s_add_u32 {s(sPW)}, {s(sPW)}, {s(sT0)}
                      s_lshl_b32 {s(sT0)}, {s(sHq)}, 7
                      s_add_u32 {s(sPW)}, {s(sPW)}, {s(sT0)}
                      s_lshl_b32 {s(sPS)}, {s(sI)}, 11
                      s_add_u32 {s(sPS)}, {s(sPS)}, {s(sTs)}
                      s_and_b32 {s(sPO)}, {s(sRb)}, 7
                      s_lshl2_add_u32 {s(sPO)}, {s(sPO)}, {s(sI)}
                      s_lshl_b32 {s(sPO)}, {s(sPO)}, 14
                      s_add_u32 {s(sPO)}, {s(sPO)}, {s(sT0)}""")
            if st >= T0:
                for k in range(TN):
                    if tq: a(tq.pop(0))
            if st == UP - 1:
                assert not tq
            if "tab" not in a.vm and idle and st >= T0:
                n = 0
                while idle and n + len(idle[0]) <= IB:
                    for l in idle.pop(0):
                        n += 1; a(l)
                if not idle:
                    self.setup_done(); setup_open = False
            if f"st{st}" in a.vm:
                a.vm_wait(f"st{st}")
            if not setup_open: self.tss(st, True)
            a("s_barrier")
            if not setup_open: self.tss(st, False)
            if st == 8: self.ts(2)
            if st == 12: self.ts(3)
        assert not idle and hd_done and xm_done
        Lr, Lb = a.newlabel("Lur"), a.newlabel("Lub")
        a(f"""s_cmp_lg_u32 {s(sUbad)}, 0
              s_cbranch_scc1 {Lr}""")
        a.label(Lb)
        keep = (a.lines, list(a.vm))
        a.lines = self.tail
        a.label(Lr)
        a(f"v_lshlrev_b32 {v(vFo)}, 2, v0")
        self.poll(vFo, s(sUF), vFu, 0x1ff)
        u_loads()
        a(f"""s_waitcnt vmcnt(0)
              s_branch {Lb}""")
        a.lines, a.vm = keep
        if "u" in a.vm:
            a.vm_wait("u")
        dp = "wave_rol:1 row_mask:0xf bank_mask:0xf"
        a(f"""v_mov_b32_dpp v133, v128 {dp}
              v_mov_b32_dpp v134, v136 {dp}
              s_lshl_b64 vcc, 3, 62
              v_mov_b32_dpp v132, v133 {dp}
              v_mov_b32_dpp v140, v134 {dp}
              v_cndmask_b32 v132, v132, v140, vcc
              v_cndmask_b32 v140, v140, v141, vcc""")
        for j, b in ((0, 128), (1, 136)):
            a(f"ds_write_b128 {v(vRa)}, {v(b,4)} offset:{RS + 512*j}")
            for q in range(4):
                a(f"v_alignbit_b32 {v(144+4*j+q)}, {v(b+q+1)}, {v(b+q)}, 16")
            a(f"ds_write_b128 {v(vRa)}, {v(144+4*j,4)} offset:{512*j}")
        a.vmem(self.look(5, 39, s(sKVF), 0xff), "fkv")
        a("""v_mov_b32 v44, v36
             v_mov_b32 v46, v38
             v_xor_b32 v45, 64, v36
             v_xor_b32 v47, 64, v38""")
        a.vm_wait("wo1")
        a.lg_all()
        a("s_barrier")
        self.tm("p2", 1)
        self.ts(4)

    def compute_phase1(self):
        a = self.a
        a.label("L_compute")
        self.decode()
        a.vm = []; a.lg = []
        vXA, vWA = 8, 12
        accK, accV, accQ, Wf = 16, 32, 48, 64
        NSET = 12
        st = self.stA = Setup(128)
        rt = lambda i: i >> 1
        ct = lambda i: i & 1
        l16 = lambda l: l * 16
        def ua(l, d):
            blk = 2 * (l >> 4) + (l & 1); r = (l >> 2) & 3
            return RR + (8 * blk + r) * 128 + ((((blk + d) & 3) * 2 + (r >> 1)) * 16) + ((l >> 1) & 1) * 8
        st.xor(192, lambda l: ua(l, 0), lambda i: i * 32)
        st.xor(193, lambda l: ua(l, 1), lambda i: i * 32)
        st.mov(194, lambda l: (7 - (2 * (l >> 4) + ((l >> 2) & 1))) * 64 + (l & 3) * 16 + ((l >> 3) & 1) * 16384)
        st.xor(vXA, lambda l: ((l >> 4) & 1) * 4096 + ((l >> 3) & 1) * 1024 + (l & 7) * 128 + ((((l >> 1) & 7) ^ (l >> 5)) * 16),
               lambda i: rt(i) * 8192 + ct(i) * 64)
        st.raw(f"v_xor_b32 {v(vXA+1)}, 32, {v(vXA)}\nv_xor_b32 {v(vXA+2)}, 64, {v(vXA)}\nv_xor_b32 {v(vXA+3)}, 0x60, {v(vXA)}")
        st.xor(vWA, lambda l: (8 * (l >> 5) + ((l >> 2) & 3)) * 128 + (l & 3) * 8 + ((l >> 4) & 1) * 32 + ((l >> 3) & 1) * 64,
               lambda i: ct(i) * (8192 + 64))
        st.raw(f"v_xor_b32 {v(vWA+1)}, 0x2000, {v(vWA)}\nv_add_u32 v3, 0x10000, {v(vWA)}\nv_add_u32 v4, 0x10000, {v(vWA+1)}")
        st.add(1, lambda l: GW + (l >> 5) * 16, lambda i: ct(i) * 64)
        st.mov(5, lambda l: ((l >> 4) & 1) * 131072 + (l >> 5) * 256 + (l & 15) * 16)
        st.add(6, lambda l: ((l >> 4) & 1) * 4096 + (l >> 5) * 256 + (l & 15) * 16, lambda i: LB + ct(i) * 8192 + rt(i) * 2048)
        st.add(7, l16, lambda i: LB + ct(i) * 8192 + rt(i) * 2048)
        st.add(114, lambda l: (l & 31) * 8, lambda i: GP + rt(i) * 256 + ct(i) * 4)
        st.add(112, lambda l: KC + (l & 1) * KCS + ((l >> 1) & 7) * 8 + (l >> 4) * 16, lambda i: rt(i) * 2 * KCS + ct(i) * 256)
        st.add(113, lambda l: RR + 448 + (l & 1) * RS + (l >> 4) * 16 - ((l >> 1) & 7) * 64, lambda i: rt(i) * 2 * RS + ct(i) * 256)
        st.attn(lambda i: ct(i) ^ 1)
        st.keep(sQFw, lambda i: QF + ct(i) * 4096 + rt(i) * 1024)
        st.keep(sPw, lambda i: (PY + rt(i) * 8192) if ct(i) else (EX1 if rt(i) else EX0))
        for rr in range(4):
            st.ops.append(f"v_and_b32 {v(116+rr)}, {s(sD)}, {v(st.p(lambda l: 0xffff if (l & 15) + 4 * (l >> 4) == 15 - rr else 0))}")
        st.add(195, lambda l: SW + ((l & 3) + 4 * ((l >> 3) & 1)) * 8, lambda i: i * 128)
        assert st.nq() == NQ
        a.vm = ["tab"] * NQ
        a(f"""
              s_and_b32 {s(sT2)}, s2, 7
              s_lshl_b32 {s(sT2)}, {s(sT2)}, 5
              s_lshr_b32 {s(sT1)}, s2, 3
              s_add_u32 {s(sT2)}, {s(sT2)}, {s(sT1)}
              s_lshr_b32 {s(sT1)}, {s(sI)}, 1
              s_lshl1_add_u32 {s(sT2)}, {s(sT2)}, {s(sT1)}
              s_lshl_b32 {s(sT2)}, {s(sT2)}, 1
              v_mov_b32 v252, {s(sT2)}
              v_mov_b32 v253, 0
              s_bitcmp0_b32 {s(sI)}, 0
              s_cselect_b32 {s(sD)}, -1, 0
              s_mov_b32 {s(sRole)}, 0""")
        self.srd_const(sWS, WS_BYTES)
        a("s_waitcnt lgkmcnt(0)")
        a.vmem("global_load_ushort v252, v252, s[20:21]", "ed")
        a.vmem("global_load_dword v253, v253, s[28:29]", "ed")
        self.srd_ptr(sWS, 28)
        a(f"""s_and_b32 {s(sT0)}, {s(sI)}, 1                 ; ct
              s_lshr_b32 {s(sT1)}, {s(sI)}, 1                ; rt
              s_lshl2_add_u32 {s(sT2)}, {s(sHq)}, {s(sI)}
              s_lshl_b32 {s(sU0)}, {s(sT2)}, 16
              s_lshl_b32 {s(sT3)}, {s(sRb)}, 9
              s_sub_u32 {s(sU0)}, {s(sU0)}, {s(sT3)}
              s_add_u32 {s(sU0)}, {s(sU0)}, {UG + 248*64}
              s_lshl_b32 {s(sUF)}, {s(sT2)}, 5
              s_add_u32 {s(sUF)}, {s(sUF)}, {s(sRb)}
              s_lshl_b32 {s(sUF)}, {s(sUF)}, 2
              s_add_u32 {s(sUF)}, {s(sUF)}, {FU}
              s_xor_b32 {s(sT3)}, {s(sT0)}, 1
              s_lshl1_add_u32 {s(sT3)}, {s(sRb)}, {s(sT3)}   ; tt
              s_add_u32 {s(sNt)}, {s(sT3)}, 1
              s_min_u32 {s(sNt)}, {s(sNt)}, 9
              s_lshl_b32 {s(sT3)}, {s(sT3)}, 5
              s_add_u32 {s(sT3)}, {s(sT3)}, {s(sT2)}
              s_lshl_b32 {s(sOO)}, {s(sT3)}, 10
              s_add_u32 {s(sOO)}, {s(sOO)}, {OG}
              s_andn2_b32 {s(sOF)}, {s(sT3)}, 15
              s_add_u32 {s(sOF)}, {s(sOF)}, {s(sT3)}
              s_lshl_b32 {s(sOF)}, {s(sOF)}, 2
              s_add_u32 {s(sOF)}, {s(sOF)}, {FO}
              s_lshl1_add_u32 {s(sT2)}, {s(sHq)}, {s(sT0)}   ; pair
              s_lshl1_add_u32 {s(sT3)}, {s(sRb)}, {s(sT1)}   ; kt
              s_lshl_b32 {s(sKO)}, {s(sT2)}, 7
              s_add_u32 {s(sKO)}, {s(sKO)}, {s(sT3)}
              s_lshl_b32 {s(sKO)}, {s(sKO)}, 11
              s_add_u32 {s(sKO)}, {s(sKO)}, {KVG}
              s_add_u32 {s(sKO2)}, {s(sKO)}, 0x20000
              s_lshl_b32 {s(sKF)}, {s(sT2)}, 6
              s_add_u32 {s(sKF)}, {s(sKF)}, {s(sT3)}
              s_andn2_b32 {s(sT3)}, {s(sKF)}, 15
              s_add_u32 {s(sKF)}, {s(sKF)}, {s(sT3)}
              s_lshl_b32 {s(sKF)}, {s(sKF)}, 2
              s_add_u32 {s(sKF)}, {s(sKF)}, {FKV}""")
        a.vm_wait("tab")
        for l in st.ops: a(l)
        a("s_setprio 1")
        self.setup_done()
        self.tm("ld", 5)
        fillers = []
        a("s_barrier")
        self.tm("ld", 7)
        a.lds("ds_read_b64 v[196:197], v195", "sw")
        a.lds("ds_read_b64 v[198:199], v195 offset:64", "sw")
        self.u_reads(0); self.u_reads(1)
        self.u_math(0); self.u_math(1)
        self.tm("ld", 8)
        a("s_branch L_a1")
        a("@AEND@:")
        a.label("L_a1")
        fq = []
        def fill(n):
            while n > 0 and fq:
                l = fq.pop(0); n -= 1
                if self.o.get("nost") and l.startswith("@kvst"): continue
                if self.o.get("nolw") and l.startswith("#w ds_write_b128"): continue
                if l.startswith("@"):
                    tag, rest = l[1:].split(" ", 1); a.vmem(rest, tag)
                elif l.startswith("#"):
                    tag, rest = l[1:].split(" ", 1); a.lds(rest, tag)
                else:
                    a(l)
        nset = [0]
        def reads(st, n):
            slot = st % 6
            tag = f"s{st}_{n}"
            hi, so = (0, slot * 16384) if slot < 4 else (2, (slot - 4) * 16384)
            if st < 8 and n >= 4:
                gb = accV + 8 * (st & 1) + 4 * (n - 4)
                a.lds(f"ds_read_b128 {v(gb,4)}, v1 offset:{st*128 + (n-4)*32}", tag)
                return ("g", 4 * st + n - 4, gb, tag), 1
            wb = Wf + 4 * (nset[0] % NSET); nset[0] += 1
            base = (3 if hi else vWA) + ((n >> 1) & 1)
            if st < 8:
                k = 4 * st + n
                a.lds(f"ds_read_b128 {v(128+4*k,4)}, {v(vXA+n)} offset:{so}", tag)
                o = so + (n & 1) * 4096 + 2048
            else:
                k = 8 * ((st - 8) & 3) + n
                o = so + (n & 1) * 4096 + (n >> 2) * 2048
            a.lds(f"ds_read_b64_tr_b16 {v(wb,2)}, {v(base)} offset:{o}", tag)
            a.lds(f"ds_read_b64_tr_b16 {v(wb+2,2)}, {v(base)} offset:{o+512}", tag)
            return ("k" if st < 8 else "v" if st < 12 else "q", k, wb, tag), (3 if st < 8 else 2)
        def mm(g):
            kind, k, wb, tag = g
            a.lg_wait(tag)
            acc = {"k": accK, "v": accV, "q": accQ, "g": accQ}[kind]
            c = "0" if k == 0 else v(acc, 16)
            if kind == "v":
                a(f"v_mfma_f32_32x32x16_bf16 {v(acc,16)}, {v(128+4*k,4)}, {v(wb,4)}, {c}")
            else:
                a(f"v_mfma_f32_32x32x16_bf16 {v(acc,16)}, {v(wb,4)}, {v(128+4*k,4)}, {c}")
        def lines(t):
            return [x.strip() for x in t.split("\n") if x.strip()]
        pend = []
        UF = int(self.o.get("uflag", 2))
        KVF = int(self.o.get("kvflag", 15))
        DEF = int(self.o.get("defer", 4))
        BUD = int(self.o.get("budget", 5))
        for st in range(16):
            self.tss(st, True)
            a("s_barrier")
            self.tss(st, False)
            if st == 0: self.ts(1)
            if st == 8: self.ts(2)
            if st == 12: self.ts(3)
            nit = 6 if st < 8 else 8
            nd = 6 if st < 8 else 0 if st == 15 else DEF
            gs = []
            if st == 0:
                for n in range(6): gs.append(reads(st, n)[0])
            if st == 1:
                for f in fillers: fq += lines(f)
            npend = len(pend)
            for i in range(npend + nit - nd):
                used = 0
                if len(gs) < nit:
                    g, used = reads(st, len(gs)); gs.append(g)
                mm(pend[i] if i < npend else gs[i - npend])
                if st == 8 and i == 6:
                    fq += [f"v_cvt_pk_bf16_f32 {v(accK+q)}, {v(accK+2*q)}, {v(accK+2*q+1)}" for q in range(8)]
                    fq += [f"@kvst buffer_store_dwordx4 {v(accK,4)}, v2, {s(sWS,4)}, {s(sKO)} offen sc1",
                           f"@kvst buffer_store_dwordx4 {v(accK+4,4)}, v2, {s(sWS,4)}, {s(sKO2)} offen sc1",
                           f"v_mov_b32 v1, {v(accQ)}"]
                if st == 12 and i == npend + 1:
                    fq += [f"v_cvt_pk_bf16_f32 {v(accV+q)}, {v(accV+2*q)}, {v(accV+2*q+1)}" for q in range(4)]
                    fq += [f"@kvst buffer_store_dwordx4 {v(accV,4)}, v5, {s(sWS,4)}, {s(sKO)} offen offset:1024 sc1"]
                    fq += [f"v_cvt_pk_bf16_f32 {v(accV+q)}, {v(accV+2*q)}, {v(accV+2*q+1)}" for q in range(4, 8)]
                    fq += [f"@kvst buffer_store_dwordx4 {v(accV+4,4)}, v5, {s(sWS,4)}, {s(sKO)} offen offset:1536 sc1"]
                if st == 15 and i >= 7:
                    fq += [[f"#w ds_write_b32 v114, v1"],
                           [f"#w ds_write_b128 v7, {v(accK,4)}"],
                           [f"#w ds_write_b128 v7, {v(accK+4,4)} offset:4096"],
                           [f"#w ds_write_b128 v6, {v(accV,4)} offset:1024"],
                           [f"#w ds_write_b128 v6, {v(accV+4,4)} offset:1536"]][i - 7]
                if st in (3, 5) and i == 4:
                    op = "v_add_u32" if st == 3 else "v_subrev_u32"
                    for n in range(4): a(f"{op} {v(vXA+n)}, 0x10000, {v(vXA+n)}")
                    used += 4
                fill(BUD - used - (1 if i >= npend else 0))
            assert len(gs) == nit
            if st in (7, 12, 14):
                fill(100)
            pend = gs[nit - nd:]
            if st < 15:
                a.lg_all()
            if st == UF:
                a.vm_wait("ust")
                a(f"v_readfirstlane_b32 {s(sTag)}, v253")
                for rr in range(4):
                    a(f"v_and_b32 {v(116+rr)}, {v(116+rr)}, v252")
                a(f"s_add_u32 {s(sTag)}, {s(sTag)}, {TAGC}")
                self.flag_store(sUF, 255)
            if st == KVF:
                a.vm_all()
                self.flag_store(sKF, 115)
        assert not fq
        self.ts(4)
        a(f"""s_mov_b32 {s(sT0)}, {f2u(0.25 * LOG2E):#x}
              s_mov_b32 {s(sT1)}, {s(sT0)}
              v_add_u32 v3, {s(sQFw)}, v2""")
        for q in range(8):
            a(f"v_pk_mul_f32 {v(accQ+2*q,2)}, {v(accQ+2*q,2)}, {s(sT0,2)}")
        for q in range(8):
            a(f"v_cvt_pk_bf16_f32 {v(accQ+q)}, {v(accQ+2*q)}, {v(accQ+2*q+1)}")
            if q == 3:
                a(f"ds_write_b128 v3, {v(accQ,4)}")
        a(f"""ds_write_b128 v3, {v(accQ+4,4)} offset:2048
              v_mov_b32 v8, v112
              v_mov_b32 v9, v113
              v_mov_b32 v84, v116
              v_mov_b32 v85, v117
              v_mov_b32 v86, v118
              v_mov_b32 v87, v119
              s_setprio 0""")
        a.lg_all()
        a("s_barrier")
        self.ts(5)

    def conv(self):
        a = self.a
        a.lg = []
        vKA, vUA = 8, 9
        acc = 16
        KVC = int(self.o.get("kvconv", -1))
        def fr(buf, kind, i):
            return 128 + 64 * buf + (0 if kind == "k" else 32) + 4 * i
        issued = set()
        def rd(r, kind, i):
            issued.add((r, kind, i))
            buf = r & 1
            if kind == "k":
                a.lds(f"ds_read_b64 {v(fr(buf,'k',i),2)}, {v(vKA)} offset:{512*i + 64*r}", f"{r}k{i}")
                a.lds(f"ds_read_b64 {v(fr(buf,'k',i)+2,2)}, {v(vKA)} offset:{512*i + 64*r + 8}", f"{r}k{i}")
            else:
                a.lds(f"ds_read_b128 {v(fr(buf,'u',i),4)}, {v(vUA)} offset:{512*(7-i) + 64*r}", f"{r}u{i}")
        order = []
        for i in range(8):
            order += [("k", i), ("u", i)]
        for kind, i in order[:8]:
            rd(0, kind, i)
        fill = [[x.strip()] for x in f"""#q ds_read_b128 {v(vQ,4)}, v14
              v_and_b32 v10, 15, v0
              v_lshlrev_b32 v10, 3, v10
              v_lshrrev_b32 v11, 4, v0
              v_lshl_add_u32 v10, v11, 8, v10
              v_add_u32 v10, {s(sPw)}, v10
              s_lshl_b32 {s(sT2)}, {s(sI)}, 2
              v_add_u32 v12, {s(sT2)}, {v(vCNT)}
              v_add_u32 v5, 64, {v(vCNT)}""".split("\n")]
        co = self.const_ops()
        fill += [co[k] + co[k+1] for k in range(0, 16, 2)]
        for g in self.mask_ops(3, 7):
            fill += [g[:2], g[2:]] if len(g) == 4 else [g]
        pend_r = [(0, k, i) for k, i in order[8:]]
        first = [True] * 8
        for r in range(4):
            self.tm("p2", 1 + r)
            buf = r & 1
            nxt = [(r + 1, k, i) for k, i in order] if r < 3 else []
            queue = pend_r + nxt
            pend_r = []
            seq = []
            for m in range(8):
                for d in range(m + 1):
                    for s_ in range(m + 1):
                        if max(d, s_) == m and d + s_ <= 7:
                            seq.append((d, s_))
            assert len(seq) == 36
            for n, (d, s_) in enumerate(seq):
                T = d + s_
                if r * 36 + n == KVC:
                    a.vm_all()
                    self.flag_store(sKF, 13)
                assert (r, "k", d) in issued and (r, "u", s_) in issued
                a.lg_wait(f"{r}k{d}", f"{r}u{s_}")
                c = "0" if first[T] else v(acc + 4 * T, 4)
                first[T] = False
                a(f"v_mfma_f32_16x16x32_bf16 {v(acc+4*T,4)}, {v(fr(buf,'u',s_),4)}, {v(fr(buf,'k',d),4)}, {c}")
                if queue and (n % 2 == 0 or queue[0][0] == r):
                    if len(a.lg) > 12:
                        a.lg_wait(a.lg[5])
                    rd(*queue.pop(0))
                elif fill:
                    for l in fill.pop(0):
                        if l.startswith("#"):
                            tag, rest = l[1:].split(" ", 1); a.lds(rest, tag)
                        else:
                            a(l)
            if r == 0:
                for T in range(8):
                    a(f"v_mfma_f32_16x16x32_bf16 {v(acc+4*T,4)}, {v(fr(0,'u',T),4)}, v[84:87], {v(acc+4*T,4)}")
            pend_r = queue
            assert all(q[0] == r + 1 for q in pend_r)
        assert not fill and not pend_r
        self.tm("p2", 5)
        self.ts(6)
        a("s_setprio 1")
        self.lds_spin(vCNT, C_RD, 4, 7)
        for T in range(8):
            for r in range(2):
                a(f"ds_write_b64 v10, {v(acc+4*T+2*r,2)} offset:{1024*T + 128*r}")
        self.lds_signal(vCNT, C_FREE)
        self.ts(7)

    def wof(self, late, j, ct):
        return 128 + ((late * 8 + j) * 2 + ct) * 4

    def wo_reads(self, q, base, off):
        a = self.a
        for j in (2 * q, 2 * q + 1):
            for late in range(2):
                for ct in range(2):
                    b = base + 2 * late + ct
                    o = off + (j & 1) * 4096
                    a(f"ds_read_b64_tr_b16 {v(self.wof(late,j,ct),2)}, {v(b)} offset:{o}")
                    a(f"ds_read_b64_tr_b16 {v(self.wof(late,j,ct)+2,2)}, {v(b)} offset:{o+1024}")

    def kv_dma(self, groups):
        a = self.a
        for g in groups:
            a(f"""s_add_u32 m0, {s(sRem)}, {4096*g}
                  s_add_u32 {s(sT2)}, {s(sKVS)}, {4096*g}
                  s_cmp_lt_u32 {s(sRb)}, {4-g}
                  s_cselect_b32 {s(sT2)}, {WS_BYTES}, {s(sT2)}""")
            for o in (2048, 3072, 0, 1024):
                a(f"buffer_load_dwordx4 v2, {s(sWS,4)}, {s(sT2)} offen offset:{o} sc1 lds")

    def b_start(self):
        a = self.a
        a.lg = []
        a(f"""s_setprio 2
              ds_read_b128 {v(vQ,4)}, v14""")
        Ls = a.newlabel()
        a.vm_all()
        a(f"""s_cmp_eq_u32 {s(sRb)}, 0
              s_cbranch_scc1 {Ls}""")
        self.poll(39, s(sKVF), 5, 0xff, first_done=True)
        a.label(Ls)
        self.ts(5)
        self.tm("p2", 2)
        self.kv_dma((3, 2))
        a(f"""s_lshl_b32 {s(sT2)}, {s(sI)}, 2
              v_add_u32 v5, {s(sT2)}, {v(vCNT)}""")
        self.tm("p2", 3)

    def attention(self):
        a = self.a
        a.vm = []; a.lg = []
        S = [16, 32]; O, P, Kf, Vf = vO, vP, [vKf, vKf + 4], [vVf, vVf + 8]
        HK = int(self.o.get("hook", 4))
        SPL = int(self.o.get("split", 9))
        assert SPL > HK
        def kaddr(p):
            return (120, 0) if p == 0 else (121, 0) if p == 1 else (122, (8 - p) * 2048)
        def rdK(p):
            r, o = kaddr(p)
            a.lds(f"ds_read_b128 {v(Kf[p&1],4)}, {v(r)} offset:{o}", f"K{p}")
        def rdV(p):
            r, o = kaddr(p)
            if p == 0:
                a(f"s_mov_b64 exec, {s(sEx,2)}")
            else:
                a(f"""s_cmp_gt_u32 {s(sNt)}, {p}
                      s_cselect_b64 exec, {s(sEx,2)}, -1""")
            a.lds(f"ds_read_b128 {v(Vf[p&1],4)}, {v(r+3)} offset:{o}", f"V{p}")
            a.lds(f"ds_read_b128 {v(Vf[p&1]+4,4)}, {v(r+3)} offset:{o+512}", f"V{p}")
            a("s_mov_b64 exec, -1")
        def qk(p):
            c = v(vML, 16) if p == 0 else v(vMU, 16) if p == 8 else "0"
            a(f"v_mfma_f32_32x32x16_bf16 {v(S[p&1],16)}, {v(Kf[p&1],4)}, {v(vQ,4)}, {c}")
        def e(p, j): a(f"v_exp_f32 {v(S[p&1]+j)}, {v(S[p&1]+j)}")
        def c(p, q): a(f"v_cvt_pk_bf16_f32 {v(P+q)}, {v(S[p&1]+2*q)}, {v(S[p&1]+2*q+1)}")
        def pv(p, hf):
            cc = "0" if (p == 0 and hf == 0) else v(O, 16)
            a(f"v_mfma_f32_32x32x16_bf16 {v(O,16)}, {v(Vf[p&1]+4*hf,4)}, {v(P+4*hf,4)}, {cc}")
        def vmw(q):
            if q > HK + 2: return
            a(f"s_waitcnt vmcnt({0 if q == HK + 2 else max(16 - 2*q, 0)})")
        a.label("L_attn")
        rdK(0)
        a.lds("ds_read_b64 v[84:85], v15", "g")
        rdV(0)
        a.lg_wait("K0")
        qk(0)
        a.lg_wait("g")
        a(f"""v_add_f32 v84, v84, v85
              v_mul_f32 v84, {f2u(-LOG2E):#x}, v84
              v_exp_f32 v84, v84
              s_nop 0
              v_add_f32 v84, 1.0, v84""")
        for p in range(9):
            nx = p + 1 <= 8
            if p % 2 == 0: self.tm("p2", 6 + p // 2)
            if p == 0:
                for j in range(8):
                    e(0, j)
                    if j >= 3 and j & 1: c(0, (j - 3) // 2)
                La, Lk = a.newlabel("Lka"), a.newlabel("Lkv")
                a(f"""s_cmp_eq_u32 {s(sRole)}, 0
                      s_cbranch_scc1 {La}""")
                self.kv_dma((1, 0))
                self.wo_reads(0, 40, 0); self.wo_reads(1, 44, 0)
                keep = list(a.lg)
                self.lds_signal(vCNT, C_RD)
                a.lg = keep
                vmw(1)
                a(f"s_branch {Lk}")
                a.label(La)
                keep = list(a.lg)
                self.lds_spin(12, C_KVL, 1, 7)
                a.lg = keep
                a.label(Lk)
                rdK(1); rdV(1)
                e(0, 8); c(0, 3); e(0, 9); e(0, 10)
                a.lg_wait("V0")
                pv(0, 0)
                e(0, 11); c(0, 4); e(0, 12)
                a.lg_wait("K1")
                qk(1)
                vmw(2)
                rdK(2)
                e(0, 13); c(0, 5); e(0, 14); e(0, 15); c(0, 6)
                continue
            e(p, 0)
            c(p - 1, 7)
            e(p, 1)
            e(p, 2)
            pv(p - 1, 1)
            if p == SPL:
                a.label("L_attn_mid")
            e(p, 3); c(p, 0)
            e(p, 4)
            if nx: rdV(p + 1)
            e(p, 5); c(p, 1)
            e(p, 6)
            if nx: a.lg_wait(f"K{p+1}")
            e(p, 7)
            if nx: qk(p + 1)
            c(p, 2)
            e(p, 8); c(p, 3)
            e(p, 9)
            if p + 2 <= 8:
                vmw(p + 2)
            e(p, 10)
            if p + 2 <= 8:
                rdK(p + 2)
            if f"V{p}" in a.lg: a.lg_wait(f"V{p}")
            e(p, 11)
            pv(p, 0)
            c(p, 4)
            e(p, 12)
            if p == HK:
                a("s_mov_b64 exec, 1")
                a.lds(f"ds_add_u32 v5, {v(vONE)} offset:{C_KVL}", "sig")
                a("s_mov_b64 exec, -1")
            e(p, 13); c(p, 5)
            e(p, 14)
            if p == SPL - 1 and SPL < 9:
                a(f"s_cmp_eq_u32 {s(sMode)}, 2")
            e(p, 15); c(p, 6)
            if p == SPL - 1 and SPL < 9:
                a(f"s_cbranch_scc1 L_attn_x")
        c(8, 7); pv(8, 1)
        if SPL < 9:
            a("s_branch L_attn_done")
            a.label("L_attn_enter")
            a.lg = []
            a.lds(f"ds_read_b128 {v(vQ,4)}, v14", "Q")
            rdK(SPL)
            Lo = a.newlabel()
            a(f"""s_cmp_ge_u32 {s(sRb)}, 4
                  s_cbranch_scc1 {Lo}""")
            for r in range(16):
                a(f"v_mov_b32 {v(vVf+r)}, {s(sOne)}")
            a.label(Lo)
            rdV(SPL)
            if SPL < 8: rdK(SPL + 1)
            for r in range(16):
                a(f"v_mov_b32 {v(O+r)}, 0")
            a.lg_wait(f"K{SPL}")
            qk(SPL)
            e(SPL, 0); e(SPL, 1); e(SPL, 2)
            a("s_branch L_attn_mid")
            a.label("L_attn_x")
            c(SPL - 1, 7); pv(SPL - 1, 1)
        a.label("L_attn_done")
        a.lg = []
        if SPL < 9:
            a(f"""s_cmp_eq_u32 {s(sMode)}, 1
                  s_cbranch_scc1 L_part
                  s_cmp_eq_u32 {s(sMode)}, 0
                  s_cbranch_scc1 L_attn_fin""")
            self.ts(8)
            self.lds_spin(12, C_PART, 1, 7)
            a(f"""ds_read_b128 v[16:19], v11
                  ds_read_b128 v[20:23], v11 offset:1024
                  ds_read_b32 v24, v11 offset:2048
                  s_waitcnt lgkmcnt(0)""")
            for q in range(4):
                a(f"v_pk_add_f32 {v(O+2*q,2)}, {v(O+2*q,2)}, {v(16+2*q,2)}")
            a(f"v_add_f32 {v(O+8)}, {v(O+8)}, v24")
        a.label("L_attn_fin")
        a(f"""s_mov_b32 {s(sT4)}, {f2u(2.0**-30):#x}
              s_mov_b32 {s(sT5)}, {f2u(2.0**30):#x}
              s_waitcnt lgkmcnt(0)
              v_mul_f32 v85, v84, {v(O+8)}
              v_cmp_nle_f32 vcc, {s(sT4)}, {v(O+8)}
              v_cmp_nge_f32 {s(sT0,2)}, {s(sT5)}, {v(O+8)}
              v_rcp_f32 v86, v85
              s_or_b64 vcc, vcc, {s(sT0,2)}""")
        if self.o.get("force_slow"):
            a("s_mov_b64 vcc, -1")
        a(f"""s_cbranch_vccnz L_attn_slow""")
        a.label("L_attn_ok")
        a("v_mov_b32 v87, v86")
        for q in range(4):
            a(f"v_pk_mul_f32 {v(O+2*q,2)}, {v(O+2*q,2)}, v[86:87]")
        for q in range(4):
            a(f"v_cvt_pk_bf16_f32 {v(O+q)}, {v(O+2*q)}, {v(O+2*q+1)}")
        a.vmem(f"buffer_store_dwordx4 {v(O,4)}, v2, {s(sWS,4)}, {s(sOO)} offen sc1", "o")

    def attn_slow(self):
        a = self.a
        S, ML, Kf, O, P = 16, 32, vKf, vO, vP
        sP, sM = sT2, sT3
        a.label("L_attn_slow")
        a(f"""s_cmp_lg_u32 {s(sRedo)}, 0
              s_cbranch_scc1 L_attn_ok
              s_mov_b32 {s(sRedo)}, 1
              s_mov_b32 {s(sM)}, 0
              s_mov_b32 {s(sT0)}, 0xf149f2ca
              v_mov_b32 v86, 0xff7fffff
              v_sub_u32 v87, v123, v120""")
        for r in range(16):
            a(f"v_xor_b32 {v(ML+r)}, {s(sT0)}, {v(vMU+r)}")
            a(f"v_mov_b32 {v(O+r)}, 0")
            a(f"v_mov_b32 {v(vVf+r)}, {s(sOne)}")
        a.label("L_sl_pass")
        a(f"s_mov_b32 {s(sP)}, 0")
        a.label("L_sl_tile")
        a(f"""s_sub_u32 {s(sT0)}, 8, {s(sP)}
              s_lshl_b32 {s(sT0)}, {s(sT0)}, 11
              v_add_u32 v3, {s(sT0)}, v122
              s_cmp_eq_u32 {s(sP)}, 1
              s_cselect_b64 vcc, -1, 0
              v_cndmask_b32 v3, v3, v121, vcc
              s_cmp_eq_u32 {s(sP)}, 0
              s_cselect_b64 vcc, -1, 0
              v_cndmask_b32 v3, v3, v120, vcc
              ds_read_b128 {v(Kf,4)}, v3
              v_add_u32 v3, v3, v87
              s_mov_b64 exec, {s(sEx,2)}
              ds_read_b128 {v(vVf,4)}, v3
              ds_read_b128 {v(vVf+4,4)}, v3 offset:512
              s_mov_b64 exec, -1
              s_waitcnt lgkmcnt(0)
              s_cbranch_scc1 L_sl_lo
              s_cmp_eq_u32 {s(sP)}, 8
              s_cbranch_scc1 L_sl_up
              v_mfma_f32_32x32x16_bf16 {v(S,16)}, {v(Kf,4)}, {v(vQ,4)}, 0
              s_branch L_sl_s""")
        a.label("L_sl_lo")
        a(f"""v_mfma_f32_32x32x16_bf16 {v(S,16)}, {v(Kf,4)}, {v(vQ,4)}, {v(ML,16)}
              s_branch L_sl_s""")
        a.label("L_sl_up")
        a(f"v_mfma_f32_32x32x16_bf16 {v(S,16)}, {v(Kf,4)}, {v(vQ,4)}, {v(vMU,16)}")
        a.label("L_sl_s")
        a(f"""s_cmp_lg_u32 {s(sM)}, 0
              s_cbranch_scc1 L_sl_pv""")
        for j in range(8):
            a(f"v_max3_f32 v86, v86, {v(S+2*j)}, {v(S+2*j+1)}")
        a("s_branch L_sl_next")
        a.label("L_sl_pv")
        for j in range(16):
            a(f"v_sub_f32 {v(S+j)}, {v(S+j)}, v86")
        for j in range(16):
            a(f"v_exp_f32 {v(S+j)}, {v(S+j)}")
        for q in range(8):
            a(f"v_cvt_pk_bf16_f32 {v(P+q)}, {v(S+2*q)}, {v(S+2*q+1)}")
        for hf in range(2):
            a(f"v_mfma_f32_32x32x16_bf16 {v(O,16)}, {v(vVf+4*hf,4)}, {v(P+4*hf,4)}, {v(O,16)}")
        a.label("L_sl_next")
        a(f"""s_add_u32 {s(sP)}, {s(sP)}, 1
              s_cmp_lt_u32 {s(sP)}, {s(sNt)}
              s_cbranch_scc1 L_sl_tile
              s_cmp_lg_u32 {s(sM)}, 0
              s_cbranch_scc1 L_attn_fin
              s_mov_b32 {s(sM)}, 1
              v_mov_b32 v85, v86
              v_permlane32_swap_b32 v85, v86
              v_max_f32 v86, v85, v86
              s_branch L_sl_pass""")

    def p3(self):
        a = self.a
        acc = [16, 32]; OF = 48
        wof = self.wof
        SPL = int(self.o.get("split", 9))
        self.tm("p3", 1)
        self.lds_spin(vCNT, C_FREE, 4, 3)
        self.tm("p3", 2)
        self.ts(6)
        for k in range(4):
            a.lds(f"ds_read_b128 {v(16+4*k,4)}, v240 offset:{2048*(k>>1) + 16*(k&1)}", f"y{k>>1}")
            a.lds(f"ds_read_b128 {v(32+4*k,4)}, v241 offset:{2048*(k>>1) + 16*(k&1)}", f"y{k>>1}")
        for rd in range(2):
            a.lg_wait(f"y{rd}")
            for q in range(4):
                a(f"v_pk_add_f32 {v(16+8*rd+2*q,2)}, {v(16+8*rd+2*q,2)}, {v(32+8*rd+2*q,2)}")
            for q in range(4):
                a(f"v_cvt_pk_bf16_f32 {v(vP+4*rd+q)}, {v(16+8*rd+2*q)}, {v(16+8*rd+2*q+1)}")
            a.vmem(f"buffer_store_dwordx4 {v(vP+4*rd,4)}, v2, {s(sWS,4)}, {s(sYO)} offen offset:{1024*rd} sc1", "ys")
        for q in (2, 3): self.issue_wo(q)
        a("s_setprio 0")
        vYT, vYS, vFA, vXR, vOO, vG = 120, 121, 122, 14, 123, 124
        sPend, sTodo, sProc = sNt, sXc, sWc
        a(f"""v_rcp_f32 {v(vG)}, v84
              v_mov_b32 {v(vYT)}, v242
              v_mov_b32 {v(vYS)}, v243
              v_mov_b32 {v(vFA)}, v244
              v_mov_b32 v112, v246
              v_mov_b32 {v(vXR)}, v247
              v_mov_b32 {v(vOO)}, v248
              v_mov_b32 v40, v249
              v_xor_b32 v42, 0x800, v249
              v_xor_b32 v41, 64, v249
              v_xor_b32 v43, 64, v42
              v_sub_f32 {v(vG)}, 1.0, {v(vG)}
              v_xor_b32 {v(vXR+1)}, 16, {v(vXR)}
              v_mov_b32 {v(vG+1)}, {v(vG)}
              v_mov_b32 v116, 0
              v_mov_b32 v117, 0
              v_mov_b32 v118, 0
              v_mov_b32 v119, 0""")
        a.vm_wait("o")
        self.flag_store(sOF, 4)
        self.tm("p3", 3)
        a(f"""s_add_u32 {s(sRedo)}, {s(sOt)}, 8192
              s_add_u32 {s(sYF2)}, {s(sYS)}, {0x10000 - 1024}
              s_mov_b32 {s(sPend)}, 7
              s_mov_b32 {s(sTodo)}, 0""")
        a.vm_wait("ys")
        self.flag_store(sYF, 4)
        self.ts(7)
        self.tm("p3", 4)
        a(f"""s_lshl_b32 {s(sT0)}, {s(sI)}, 11
              s_add_u32 m0, {s(sT0)}, {QF}""")
        if "wo3" in a.vm: a.vm_wait("wo3")
        self.tm("p3", 5)
        self.lds_signal(vCNT, C_WO)
        self.lds_spin(vCNT, C_WO, 4, 3)
        a(f"""v_mov_b32 v5, 0
              s_mov_b32 exec_hi, 0xffff
              buffer_atomic_or v5, {v(vFA)}, {s(sWS,4)}, 0 offen sc0 sc1
              s_mov_b64 exec, -1""")
        self.wo_reads(2, 40, 0); self.wo_reads(3, 40, FXS)
        self.lds_signal(vCNT, C_RD2)
        Lx, Ly = a.newlabel("Lep"), a.newlabel("Leb")
        a(f"""s_or_b32 {s(sT0)}, s2, {s(sWave)}
              s_cmp_eq_u32 {s(sT0)}, 0
              s_cbranch_scc1 {Lx}""")
        a.label(Ly)
        keep = (a.lines, list(a.vm))
        a.lines = self.tail
        a.label(Lx)
        a(f"""v_and_b32 v3, 7, v0
              v_lshlrev_b32 v3, 3, v3
              v_bfe_u32 v4, v0, 3, 2
              v_lshl_add_u32 v3, v4, 7, v3
              v_lshrrev_b32 v4, 5, v0
              v_lshl_add_u32 v3, v4, 10, v3""")
        Le, Lf = a.newlabel("Lel"), a.newlabel("Lef")
        a.label(Le)
        for k in range(4):
            a(f"""s_mov_b32 {s(sT0)}, {FKV + 2048*k}
                  buffer_load_dword {v(48+k)}, v3, {s(sWS,4)}, {s(sT0)} offen sc1""")
        a(f"""s_waitcnt vmcnt(0)
              v_xor_b32 v48, {s(sTag)}, v48
              v_xor_b32 v49, {s(sTag)}, v49
              v_xor_b32 v50, {s(sTag)}, v50
              v_xor_b32 v51, {s(sTag)}, v51
              v_or3_b32 v48, v48, v49, v50
              v_or_b32 v48, v48, v51
              v_cmp_ne_u32 vcc, 0, v48
              s_cbranch_vccz {Lf}
              s_sub_u32 {s(sBud)}, {s(sBud)}, 8
              s_cmp_gt_i32 {s(sBud)}, 0
              s_cbranch_scc1 {Le}""")
        a.label(Lf)
        a(f"s_mov_b32 {s(sT0)}, 0")
        self.flag_store(sT0, 4)
        a(f"s_branch {Ly}")
        a.lines, a.vm = keep
        self.lds_spin(vCNT, C_RD2, 4, 3)
        for ct in range(2):
            a(f"v_mfma_f32_32x32x16_bf16 {v(acc[ct],16)}, v[116:119], v[116:119], 0")
        self.ts(8)
        self.tm("p3", 6)
        OFS = [48, 80]
        def o_loads(late):
            so = sLO if late else sEO
            for j in range(8):
                a(f"buffer_load_dwordx4 {v(OFS[late]+4*j,4)}, v2, {s(sWS,4)}, {s(so)} offen offset:{2048*(j&1)} sc1")
                if j & 1 and j < 7:
                    a(f"s_add_u32 {s(so)}, {s(so)}, 4096")
        def o_mm(late):
            for j in range(8):
                for ct in range(2):
                    a(f"v_mfma_f32_32x32x16_bf16 {v(acc[ct],16)}, {v(wof(late,j,ct),4)}, {v(OFS[late]+4*j,4)}, {v(acc[ct],16)}")
        a("s_branch L_pl_w")
        a.label("L_pl")
        a(f"""v_mov_b32 v5, 0
              s_bitcmp1_b32 {s(sPend)}, 0
              s_cselect_b32 exec_lo, -1, 0
              s_mov_b32 exec_hi, 0xffff
              buffer_atomic_or v5, {v(vFA)}, {s(sWS,4)}, 0 offen sc0 sc1
              s_mov_b64 exec, -1""")
        a.label("L_pl_w")
        a(f"""s_mov_b32 {s(sProc)}, {s(sTodo)}
              s_sub_u32 {s(sBud)}, {s(sBud)}, 8
              s_waitcnt vmcnt(0)
              v_cmp_ne_u32 vcc, {s(sTag)}, v5
              s_cmp_gt_i32 {s(sBud)}, 0
              s_cselect_b64 vcc, vcc, 0
              s_cmp_eq_u32 vcc_lo, 0
              s_cselect_b32 {s(sT0)}, 1, 0
              s_and_b32 {s(sT1)}, vcc_hi, 0xff
              s_cselect_b32 {s(sT1)}, 0, 2
              s_or_b32 {s(sT0)}, {s(sT0)}, {s(sT1)}
              s_and_b32 {s(sT1)}, vcc_hi, 0xff00
              s_cselect_b32 {s(sT1)}, 0, 4
              s_or_b32 {s(sT0)}, {s(sT0)}, {s(sT1)}
              s_and_b32 {s(sTodo)}, {s(sT0)}, {s(sPend)}
              s_cbranch_scc0 L_pl_p
              s_andn2_b32 {s(sPend)}, {s(sPend)}, {s(sTodo)}
              s_bitcmp1_b32 {s(sTodo)}, 2
              s_cbranch_scc0 L_pl_i1""")
        self.ts(9)
        self.tm("p3", 9)
        o_loads(1)
        a.label("L_pl_i1")
        a(f"""s_bitcmp1_b32 {s(sTodo)}, 1
              s_cbranch_scc0 L_pl_i0""")
        self.tm("p3", 8)
        o_loads(0)
        a.label("L_pl_i0")
        a(f"""s_bitcmp1_b32 {s(sTodo)}, 0
              s_cbranch_scc0 L_pl_p
              buffer_load_dwordx4 {v(vYS)}, {s(sWS,4)}, {s(sYS)} offen sc1 lds
              buffer_load_dwordx4 {v(vYS)}, {s(sWS,4)}, {s(sYF2)} offen offset:1024 sc1 lds""")
        self.tm("p3", 7)
        a.label("L_pl_p")
        a(f"""s_cmp_eq_u32 {s(sProc)}, 0
              s_cbranch_scc1 L_pl_s
              s_bitcmp1_b32 {s(sProc)}, 0
              s_cbranch_scc0 L_pl_p1""")
        yt = [114, 116, 118, 4]
        for q in range(4):
            a(f"ds_read_b64_tr_b16 {v(yt[q],2)}, {v(vYT)} offset:{512*q}")
        for q in range(4):
            for d in range(2):
                xr, yr = 6 + 2 * q + d, yt[q] + d
                a(f"""v_lshlrev_b32 v0, 16, {v(xr)}
                      v_and_b32 v1, {s(sHi)}, {v(xr)}""")
                if d == 0: a(f"s_waitcnt lgkmcnt({3-q})")
                a(f"""v_pk_mul_f32 v[0:1], v[0:1], {v(vG,2)}
                      v_lshlrev_b32 v126, 16, {v(yr)}
                      v_and_b32 v127, {s(sHi)}, {v(yr)}
                      v_pk_fma_f32 {v(acc[0]+4*q+2*d,2)}, v[0:1], v[126:127], {v(acc[0]+4*q+2*d,2)}""")
        for q in range(1, 8):
            a(f"v_xor_b32 {v(112+q)}, {32*q}, v112")
        a.label("L_pl_p1")
        a(f"""s_bitcmp1_b32 {s(sProc)}, 1
              s_cbranch_scc0 L_pl_p2""")
        o_mm(0)
        a.label("L_pl_p2")
        a(f"""s_bitcmp1_b32 {s(sProc)}, 2
              s_cbranch_scc0 L_pl_n""")
        o_mm(1)
        a("s_branch L_pl_n")
        a.label("L_pl_s")
        a(f"""s_cmp_lg_u32 {s(sTodo)}, 0
              s_cbranch_scc1 L_pl_n
              s_sleep {int(self.o.get("psleep", 1))}""")
        a.label("L_pl_n")
        a(f"""s_cmp_lg_u32 {s(sPend)}, 0
              s_cbranch_scc1 L_pl
              s_cmp_eq_u32 {s(sTodo)}, 0
              s_cbranch_scc1 L_pl_x
              s_cmp_lg_u32 {s(sTodo)}, 4
              s_cbranch_scc1 L_pl_w""")
        for j in range(8):
            a(f"s_waitcnt vmcnt({7-j})")
            for ct in range(2):
                a(f"v_mfma_f32_32x32x16_bf16 {v(acc[ct],16)}, {v(wof(1,j,ct),4)}, {v(OFS[1]+4*j,4)}, {v(acc[ct],16)}")
        a.label("L_pl_x")
        self.tm("p3", 10)
        for ct in range(2):
            for q in range(4):
                a(f"ds_write_b128 {v(112+4*ct+q)}, {v(acc[ct]+4*q,4)}")
        a.lg_all()
        a("s_barrier")
        for rd in range(2):
            for src in range(2):
                for b in range(2):
                    a.lds(f"ds_read_b128 {v(48+16*rd+8*src+4*b,4)}, {v(vXR+b)} offset:{FXS*src + 2048*rd}", f"r{rd}")
        of = self.o.get("outflag", "")
        of = " " + of.replace("+", " ") if of else ""
        for rd in range(2):
            a.lg_wait(f"r{rd}")
            b = 48 + 16 * rd
            for q in range(0, 8, 2):
                a(f"v_pk_add_f32 {v(b+q,2)}, {v(b+q,2)}, {v(b+8+q,2)}")
            for q in range(4):
                a(f"v_cvt_pk_bf16_f32 {v(b+q)}, {v(b+2*q)}, {v(b+2*q+1)}")
            a(f"buffer_store_dwordx4 {v(b,4)}, {v(vOO)}, {s(sOUT,4)}, {s(sOt if rd == 0 else sRedo)} offen{of}")

    def dump_ts(self):
        a = self.a
        if self.o.get("padto") or (self.o.get("probe") and self.o["probe"][0] == self.role):
            self.o.setdefault("padto2", self.o.get("padto", 30))
            L = a.newlabel()
            a("s_waitcnt vmcnt(0)")
            a.label(L)
            a(f"""s_memrealtime s[4:5]
                  s_waitcnt lgkmcnt(0)
                  s_sub_u32 s4, s4, s100
                  s_cmp_lt_u32 s4, {int(self.o["padto2"])*100}
                  s_cbranch_scc1 {L}""")
        if not self.o.get("prof"):
            return
        a(f"""s_waitcnt vmcnt(0)
              s_memtime s[4:5]
              s_memrealtime s[6:7]
              s_waitcnt lgkmcnt(0)
              s_lshl_b32 {s(sT0)}, s2, 3
              s_add_u32 {s(sT0)}, {s(sT0)}, {s(sWave)}
              s_lshl_b32 {s(sT0)}, {s(sT0)}, 6
              s_add_u32 {s(sT0)}, {s(sT0)}, {DBG}
              v_mov_b32 v1, 0
              s_mov_b64 exec, 1""")
        for k in range(11):
            a(f"""v_mov_b32 v2, {s(sTS+2*k)}
                  buffer_store_dword v2, v1, {s(sWS,4)}, {s(sT0)} offen offset:{4*k}""")
        for k, r in ((11, 4), (12, 6), (13, sBud), (14, 26)):
            a(f"""v_mov_b32 v2, {s(r)}
                  buffer_store_dword v2, v1, {s(sWS,4)}, {s(sT0)} offen offset:{4*k}""")

    def build(self):
        a = self.a
        if self.o.get("padto") or self.o.get("probe"):
            a("s_memrealtime s[100:101]")
        self.prologue()
        self.role = "B"
        self.loader_phase1()
        self.b_start()
        a("s_branch L_attn")
        self.role = "A"
        self.compute_phase1()
        self.conv()
        self.role = "*"
        self.attention()
        self.ts(10)
        self.role = "A"
        a(f"""s_cmp_lg_u32 {s(sRole)}, 0
              s_cbranch_scc1 L_p3""")
        a.vm_all()
        self.flag_store(sOF, 4)
        self.dump_ts()
        a("s_endpgm")
        a.label("L_p3")
        self.role = "B"
        a.vm = ["o"]
        self.p3()
        self.dump_ts()
        a.label("L_end")
        a("s_endpgm")
        a.lines += self.tail
        self.attn_slow()
        a.label("L_codeend")
        i0, i1 = a.lines.index("L_compute:"), a.lines.index("@AEND@:")
        blk = a.lines[i0:i1]
        a.lines = a.lines[:i0] + a.lines[i1+1:]
        k = a.lines.index("@ASTART@:")
        a.lines = a.lines[:k] + blk + a.lines[k+1:]
        body = pad(a.lines, verbose=True)
        hdr = open("cdna_kernels/" + NAME + ".s.ref").read().split("\n")
        head = [l for l in hdr if l.startswith(";") and "@launch" not in l and "Override" not in l and "grid=ceil" not in l]
        out = head + [f"; @launch grid=(256,1,1) block=(512,1,1) lds={LDS_BYTES}",
                      '.amdgcn_target "amdgcn-amd-amdhsa--gfx950"', ".text", f".globl {NAME}_kernel", ".p2align 12" if not self.o.get("noal") else ".p2align 8",
                      f".type {NAME}_kernel,@function", f"{NAME}_kernel:"] + body + [
            '.section .rodata,"a"', ".p2align 6", f".amdhsa_kernel {NAME}_kernel",
            "  .amdhsa_next_free_vgpr 256", "  .amdhsa_next_free_sgpr 102", "  .amdhsa_accum_offset 256",
            "  .amdhsa_group_segment_fixed_size 0", "  .amdhsa_kernarg_size 104", "  .amdhsa_user_sgpr_count 2",
            "  .amdhsa_user_sgpr_kernarg_segment_ptr 1", "  .amdhsa_system_sgpr_workgroup_id_x 1",
            ".end_amdhsa_kernel", ""]
        txt = "\n".join(out)
        tab = [".p2align 8", ".type L_tab,@object", "L_tab:"]
        def longs(vals):
            for k in range(0, len(vals), 16):
                tab.append(".long " + ",".join(str(x) if x < 100000 else hex(x) for x in vals[k:k+16]))
        for w in range(8):
            st = self.stB if w < 4 else self.stA
            longs([c[w & 3] for c in st.wc] + [0] * (16 - len(st.wc)))
        tab.append(f".zero {T_PB - 512}")
        for st in (self.stB, self.stA):
            longs(st.data())
            tab.append(f".zero {8192 - 1024 * st.nq()}")
        for wg in range(256):
            for w in range(4):
                t = wg_table(wg, w)
                longs(t)
                tab.append(f".zero {128 - 4 * len(t)}")
        txt += "\n".join(tab) + "\n"
        print("patterns A/B:", len(self.stA.pat), len(self.stB.pat), "wave consts", len(self.stA.wc), len(self.stB.wc))
        return txt

if __name__ == "__main__":
    opt = {}
    outp = "cdna_kernels/" + NAME + ".s"
    for arg in sys.argv[1:]:
        if arg.startswith("-o"):
            outp = arg[2:]
        elif "=" in arg:
            k, val = arg.split("=", 1)
            opt[k] = val
        else:
            opt[arg] = True
    txt = Gen(opt).build()
    open(outp, "w").write(txt)
    print("wrote", outp, len(txt.split("\n")), "lines")
```

```python
import sys, struct
from asmlib import *

NAME = "gated_mix__sliding_block__ssm_conv_h3__prompt"

LB = 65536
QF = 81920
EX0 = 90112
KC = 98304
KCS = 4224
PY = 115200
RR = 131584
RS = 4576
EX1 = 150016
GW = 158208
GP = 159232
SW = 159744
CNT = 160256
XM = 160000 - 160000 % 256 + 256
LDS_BYTES = 163840
C_KVL, C_PART, C_FREE, C_WO, C_CONV, C_RD2 = 0, 16, 32, 36, 40, 44
WOB = EX0
YXB = LB + 16384
XXB = 155648
FX = KC
FXS = RR - KC

FKV, FO, FY, FU = 0x2000, 0x4000, 0x8000, 0x1000
def fidx(n): return (n >> 4) * 128 + (n & 15) * 4
UG, KVG, YG, OG, DBG = 0x100000, 0x300000, 0x700000, 0x900000, 0xC00000
WFG = 0xB00000
for _a in sys.argv:
    if _a.startswith("kvoff="): KVG = int(_a[6:], 0)
HQX = 3
for _a in sys.argv:
    if _a.startswith('hqx='): HQX = int(_a[4:])
WS_BYTES = 0x2000000
TAGC = 0x9E3779B9

sX, sW, sWO, sK, sV, sSK, sWS, sOUT = 32, 36, 40, 44, 48, 52, 56, 60
sWave, sRb, sHq, sRot, sTB, sTag, sI, sI4096, sBud, sHi = 64, 65, 66, 67, 68, 70, 71, 72, 73, 3
sT0, sT1, sT2, sT3, sT4, sT5 = 74, 75, 76, 77, 78, 79
sRole, sRedo, sOne = 31, 30, 27
sEx = 0
sOO, sOF, sNt = 4, 5, 6
sU0, sUF, sKO, sKO2, sKF = 7, 8, 9, 10, 11
sUS, sTs, sK4, sYO, sYF, sXS, sYS, sYF2, sOt, sEF, sEO, sKVF, sKVS, sWoS, sKt0 = 7, 9, 10, 11, 12, 13, 14, 15, 16, 17, 18, 19, 20, 21, 22
sD, sQFw, sPw, sKVLw = 32, 33, 34, 35
sTw = 23
sXc, sWc, sUbad, sRem, sKm, sWq1, sLO = 24, 25, 23, 44, 45, 46, 47
sWT = 80
sTS = 80
sFLS = [24, 13, 32, 33, 34, 35, 48, 49, 50]

def wg_decode(wg):
    xcd, loc = wg & 7, wg >> 3
    rb = 8 * (xcd >> 1) + (loc & 7); hq = (4 * (xcd & 1) + (loc >> 3)) ^ HQX
    return rb, hq, 32 * xcd + loc

def wg_table(wg, w):
    rb, hq, cp = wg_decode(wg)
    i = w & 3
    qt = (i & 1) if w < 4 else (i & 1) ^ 1
    tt = 2 * rb + qt
    t = [OG + (tt * 32 + 4 * hq + i) * 1024, FO + fidx(tt * 32 + 4 * hq + i), min(tt + 1, 9)]
    if w >= 4:
        rt, ct = i >> 1, i & 1
        g16 = 4 * hq + i
        pair, kt = 2 * hq + ct, 2 * rb + rt
        ko = KVG + (pair * 128 + kt) * 2048
        t += [UG + g16 * 65536 + (248 - 8 * rb) * 64, FU + (g16 * 32 + rb) * 128, ko, ko + 0x20000, FKV + (pair * 64 + kt) * 128]
    else:
        kh, rt = i >> 1, i & 1
        ch = 2 * cp + kh
        cb = 2 * hq + kh
        e = tt * 32 + 16 * kh + rt
        t += [UG + (cp >> 1) * 16384 + (cp & 1) * 32 + i * 4096,
              FU + (cp >> 3) * 128 + max(23 - 8 * i, 0) * 4,
              cp * 8192, ch * 4096 + 4 * rt + 4,
              YG + ch * 4096 + rt * 2048, FY + fidx(rt * 512 + ch),
              tt * 32768 + cb * 64,
              YG + cb * 131072 + tt * 64,
              FY + fidx((rb >> 4) * 512 + cb * 32),
              tt * 32768 + kh * 16384 + hq * 128,
              FO + fidx(e), OG + e * 1024,
              FKV + cb * 512,
              KVG + ((4 * hq + i) * 64 + 2 * rb - 8) * 2048,
              WFG + hq * 65536 + (16 * kh + rt) * 2048 + kh * 1024,
              (2 * rb - 8) & 0xffffffff,
              FU + hq * 512 + kh * 64 - 64]
    return t

class Setup:
    def __init__(self, tbase):
        self.pat = []; self.wc = []; self.ops = []; self.tbase = tbase
    def p(self, f):
        vals = [f(l) & 0xffffffff for l in range(64)]
        if vals not in self.pat: self.pat.append(vals)
        return self.tbase + self.pat.index(vals)
    def w(self, f):
        vals = [f(i) & 0xffffffff for i in range(4)]
        if vals not in self.wc: self.wc.append(vals)
        assert len(self.wc) <= 16
        return sWT + self.wc.index(vals)
    def add(self, d, pf, wf): self.ops.append(f"v_add_u32 {v(d)}, {s(self.w(wf))}, {v(self.p(pf))}")
    def xor(self, d, pf, wf): self.ops.append(f"v_xor_b32 {v(d)}, {s(self.w(wf))}, {v(self.p(pf))}")
    def mov(self, d, pf): self.ops.append(f"v_mov_b32 {v(d)}, {v(self.p(pf))}")
    def keep(self, d, wf): self.ops.append(f"s_mov_b32 {s(d)}, {s(self.w(wf))}")
    def raw(self, t): self.ops += [x.strip() for x in t.split("\n")]
    def nq(self): return (len(self.pat) + 3) // 4
    def data(self):
        pat = self.pat + [[0] * 64] * (4 * self.nq() - len(self.pat))
        return [pat[4 * q + c][l] for q in range(self.nq()) for l in range(64) for c in range(4)]
    def attn(self, qt):
        l16 = lambda l: l * 16
        vl = lambda l: 1024 + (l >> 5) * 256 + (l & 15) * 16
        pos = [lambda i: LB + i * 4096 + qt(i) * 2048,
               lambda i: LB + i * 4096 if qt(i) else i * 16384 + 7 * 2048,
               lambda i: i * 16384 + qt(i) * 2048]
        self.add(14, l16, lambda i: QF + (2 * i + qt(i)) * 1024)
        self.add(15, lambda l: (l & 31) * 8, lambda i: GP + qt(i) * 256)
        for k in range(3):
            self.add(120 + k, l16, pos[k]); self.add(123 + k, vl, pos[k])
        self.raw(f"""s_mov_b32 {s(sRedo)}, 0
                     s_mov_b32 {s(sOne)}, 0x3f803f80
                     s_mov_b32 {s(sEx)}, 0xffff
                     s_mov_b32 {s(sEx+1)}, 0xffff
                     s_mov_b32 {s(sBud)}, 0x40000
                     s_mov_b32 {s(sHi)}, 0xffff0000
                     v_mov_b32 {v(126)}, {CNT}
                     v_mov_b32 {v(127)}, 1""")

T_WAVE, T_PB, T_PA, T_WG = 0, 1024, 1024 + 8192, 1024 + 16384
NQ = 5

LOG2E = 1.4426950408889634

def f2u(x):
    return struct.unpack("<I", struct.pack("<f", x))[0]

vO, vVf, vQ, vP, vKf, vMU = 48, 64, 80, 88, 96, 104
vML = vO
vKA, vUA, vQA, vGA, vDF = 84, 85, 86, 87, 116
vAK, vAV, vCNT, vONE = 120, 123, 126, 127

class Gen:
    def __init__(self, opt):
        self.o = opt
        self.a = Asm()
        self.tail = []
        self.role = "*"

    def tss(self, st, pre):
        m = self.o.get("prof")
        if isinstance(m, str) and m.startswith("pre" if pre else "post"):
            base = int(m[3:] if pre else m[4:])
            if 0 <= st - base < 10:
                self.a(f"s_memtime {s(sTS + 2 * (st - base + 1), 2)}")

    def tm(self, mode, k):
        if self.o.get("prof") == mode:
            self.a(f"s_memtime {s(sTS + 2 * k, 2)}")

    def ts(self, k):
        pr = self.o.get("probe")
        if pr and int(pr[1:]) == k and (self.role == pr[0] or self.role == "*"):
            self.a("s_memrealtime s[100:101]")
        if self.o.get("prof") is True or (self.o.get("prof") and k == 0):
            self.a(f"s_memtime {s(sTS + 2 * k, 2)}")

    def lds_spin(self, vaddr, off, target, vt):
        a = self.a
        L, D = a.newlabel("Lsp"), a.newlabel("Lsd")
        a.label(L)
        a(f"""ds_read_b32 {v(vt)}, {v(vaddr)} offset:{off}
              s_waitcnt lgkmcnt(0)
              v_readfirstlane_b32 {s(sT5)}, {v(vt)}
              s_cmp_ge_u32 {s(sT5)}, {target}
              s_cbranch_scc1 {D}
              s_sleep 1
              s_sub_u32 {s(sBud)}, {s(sBud)}, 1
              s_cmp_gt_i32 {s(sBud)}, 0
              s_cbranch_scc1 {L}""")
        a.label(D)
        a.lg = []

    def lds_signal(self, vaddr, off):
        a = self.a
        a(f"""s_mov_b64 exec, 1
              ds_add_u32 {v(vaddr)}, {v(vONE)} offset:{off}
              s_mov_b64 exec, -1""")
        a.lg.append("sig")

    def look(self, vt, voff, soff, mask):
        return f"""v_mov_b32 {v(vt)}, {s(sTag)}
                   s_mov_b64 exec, {mask}
                   v_mov_b32 {v(vt)}, 0
                   buffer_atomic_or {v(vt)}, {v(voff)}, {s(sWS,4)}, {soff} offen sc0 sc1
                   s_mov_b64 exec, -1"""

    def poll(self, voff, soff, vt, mask, first_done=False):
        a = self.a
        L, C, D = a.newlabel("Lpl"), a.newlabel("Lpc"), a.newlabel("Lpd")
        if first_done:
            a(f"s_branch {C}")
        a.label(L)
        a(self.look(vt, voff, soff, mask))
        a("s_waitcnt vmcnt(0)")
        a.label(C)
        a(f"""v_cmp_ne_u32 vcc, {s(sTag)}, {v(vt)}
              s_cbranch_vccz {D}
              s_sleep {int(self.o.get("sleep", 1))}
              s_sub_u32 {s(sBud)}, {s(sBud)}, 8
              s_cmp_gt_i32 {s(sBud)}, 0
              s_cbranch_scc1 {L}""")
        a.label(D)
        if not first_done:
            a.vm = []

    def flag_store(self, soff, vt):
        a = self.a
        a(f"""v_mov_b32 {v(vt)}, {s(sTag)}
              s_mov_b64 exec, 1""")
        a.vmem(f"buffer_atomic_swap {v(vt)}, off, {s(sWS,4)}, {s(soff)} sc1", "flag")
        a("s_mov_b64 exec, -1")

    def srd_const(self, d, size):
        self.a(f"""s_mov_b32 {s(d+2)}, {size}
                   s_mov_b32 {s(d+3)}, 0x20000""")

    def srd_ptr(self, d, p):
        self.a(f"s_mov_b64 {s(d,2)}, {s(p,2)}")

    def prologue(self):
        a = self.a
        a(f"""s_load_dwordx16 s[4:19], s[0:1], 0
              s_load_dwordx8 s[20:27], s[0:1], 64
              s_load_dwordx2 s[28:29], s[0:1], 96
              s_cmp_ge_u32 s2, 256
              s_cbranch_scc1 L_end""")
        if self.o.get("prof"):
            a("s_memtime s[96:97]\ns_memrealtime s[98:99]")
        a(f"""v_lshrrev_b32 v1, 6, v0
              v_and_b32 v0, 63, v0
              v_readfirstlane_b32 {s(sWave)}, v1
              s_getpc_b64 {s(sTB,2)}
              s_add_u32 {s(sTB)}, {s(sTB)}, L_tab@rel32@lo+4
              s_addc_u32 {s(sTB+1)}, {s(sTB+1)}, L_tab@rel32@hi+12
              s_cmp_lt_u32 {s(sWave)}, 4
              s_cbranch_scc1 L_loader
              v_lshlrev_b32 v2, 4, v0
              v_add_u32 v1, {T_PA + 4096}, v2""")
        for q in range(NQ):
            a(f"global_load_dwordx4 {v(128+4*q,4)}, v1, {s(sTB,2)} offset:{1024*q - 4096}")
        if not self.o.get("notb"):
            a(f"""v_lshlrev_b32 v3, 7, v0
                  s_lshl_b32 {s(sT0)}, s2, 9
                  s_add_u32 {s(sT0)}, {s(sT0)}, {T_WG - 48 * 128}
                  v_add_u32 v4, {s(sT0)}, v3
                  s_lshl_b64 vcc, 15, 48
                  v_cndmask_b32 v3, v3, v4, vcc
                  s_lshl_b64 exec, 0x1fff, 39
                  s_or_b32 exec_hi, exec_hi, 0xff
                  s_mov_b32 exec_lo, -1
                  s_bitcmp1_b32 {s(sWave)}, 0
                  s_cselect_b64 exec, 1, exec
                  global_load_dword v255, v3, {s(sTB,2)}
                  s_mov_b64 exec, -1""")
        if not self.o.get("lateA"):
            self.scalar_tables()
        a("s_branch L_compute")
        a.label("L_loader")

    def decode(self):
        self.a(f"""s_bfe_u32 {s(sRb)}, s2, 0x20001                ; xcd >> 1
              s_bfe_u32 {s(sT2)}, s2, 0x30003                ; local & 7
              s_lshl3_add_u32 {s(sRb)}, {s(sRb)}, {s(sT2)}
              s_and_b32 {s(sHq)}, s2, 1
              s_lshr_b32 {s(sT2)}, s2, 6
              s_lshl2_add_u32 {s(sHq)}, {s(sHq)}, {s(sT2)}
              {"s_xor_b32 %s, %s, %d" % (s(sHq), s(sHq), HQX) if HQX else ""}
              s_lshl1_add_u32 {s(sRot)}, {s(sHq)}, {s(sRb)}
              s_and_b32 {s(sRot)}, {s(sRot)}, 7
              s_and_b32 {s(sI)}, {s(sWave)}, 3""")

    def scalar_tables(self):
        self.a(f"""s_lshl_b32 {s(sT0)}, {s(sWave)}, 6
              s_load_dwordx16 {s(sWT,16)}, {s(sTB,2)}, {s(sT0)}""")

    def setup_done(self):
        if self.o.get("prof"):
            self.a(f"s_mov_b32 {s(sTS)}, s96\ns_mov_b32 s26, s98")
            for k in range(1, 11):
                self.a(f"s_mov_b32 {s(sTS+2*k)}, 0")

    def mask_ops(self, vn, vz):
        out = [[f"v_mov_b32 {v(vn)}, 0xf149f2ca", f"v_mov_b32 {v(vz)}, 0"]]
        for r in range(16):
            jj = (r & 3) + 8 * (r >> 2)
            out.append([f"s_lshl_b32 vcc_lo, -1, {jj}", f"s_lshl_b32 vcc_hi, -1, {jj+4}",
                        f"v_cndmask_b32 {v(vML+r)}, {v(vn)}, {v(vz)}, vcc",
                        f"v_cndmask_b32 {v(vMU+r)}, {v(vz)}, {v(vn)}, vcc"])
        return out

    def const_ops(self):
        out = []
        for r in range(16):
            out.append([f"v_mov_b32 {v(vVf+r)}, {s(sOne)}"])
        return out

    def u_reads(self, j):
        a = self.a
        kq, vq = 200 + 10 * j, 206 + 10 * j
        if j == 1:
            a("v_xor_b32 v192, 16, v192\nv_xor_b32 v193, 16, v193")
        a.lds(f"ds_read_b64_tr_b16 {v(kq,2)}, v192 offset:512", f"u{j}")
        a.lds(f"ds_read_b64_tr_b16 {v(kq+2,2)}, v193 offset:1024", f"u{j}")
        a.lds(f"ds_read_b64_tr_b16 {v(kq+4,2)}, v193 offset:1536", f"u{j}")
        a.lds(f"ds_read_b64_tr_b16 {v(vq,2)}, v192 offset:9216", f"u{j}")
        a.lds(f"ds_read_b64_tr_b16 {v(vq+2,2)}, v192 offset:9728", f"u{j}")

    def u_math(self, j):
        a = self.a
        kq, vq, sw, kx, ks, vf, pk = 200 + 10 * j, 206 + 10 * j, 196 + 2 * j, 220, 226, 234, 244 + 4 * j
        a.lg_wait(f"u{j}")
        a(f"""v_alignbit_b32 {v(sw)}, {v(sw)}, {v(sw)}, 16
              v_alignbit_b32 {v(sw+1)}, {v(sw+1)}, {v(sw+1)}, 16""")
        for q in range(5):
            a(f"v_alignbit_b32 {v(kx+q)}, {v(kq+q+1)}, {v(kq+q)}, 16")
        def lo(t): return kq + (t + 1) // 2 if t & 1 else kx + t // 2
        def hi(t): return kq + (t + 3) // 2 if t & 1 else kx + (t + 2) // 2
        order = [1, 3, 5, 7, 0, 2, 4, 6]
        for t in order:
            a(f"v_dot2_f32_bf16 {v(ks+t)}, {v(lo(t))}, {v(sw+1)}, 0")
        for t in order:
            a(f"v_dot2_f32_bf16 {v(ks+t)}, {v(hi(t))}, {v(sw)}, {v(ks+t)}")
        for t in range(8):
            src = vq + (t >> 1)
            if t & 1: a(f"v_and_b32 {v(vf+t)}, {s(sHi)}, {v(src)}")
            else:     a(f"v_lshlrev_b32 {v(vf+t)}, 16, {v(src)}")
        for t in range(0, 8, 2):
            a(f"v_pk_mul_f32 {v(ks+t,2)}, {v(ks+t,2)}, {v(vf+t,2)}")
        for q in range(4):
            a(f"v_cvt_pk_bf16_f32 {v(pk+q)}, {v(ks+7-2*q)}, {v(ks+6-2*q)}")
        if j == 1:
            a(f"s_add_u32 {s(sU0)}, {s(sU0)}, 0x8000")
        a.vmem(f"buffer_store_dwordx4 {v(pk,4)}, v194, {s(sWS,4)}, {s(sU0)} offen sc1", "ust")

    def loader_phase1(self):
        a = self.a
        vXa, vXb, vWa, vWb, vKVo, vK0 = 16, 17, 18, 19, 20, 21
        vHd, vHa, vUo, vFo, vRa, vFu, vKc = 22, 23, 24, 25, 26, 27, 28
        a.vm = []; a.lg = []
        ldf = " nt" if self.o.get("ntkv") else ""
        ldx = " nt" if self.o.get("ntx") else ""
        ldw = " nt" if self.o.get("ntw") else ""
        st = self.stB = Setup(128)
        kh = lambda i: i >> 1
        rt = lambda i: i & 1
        l16 = lambda l: l * 16
        st.attn(rt)
        st.mov(2, l16)
        st.mov(28, lambda l: ((((l >> 4) & 1) + (l & 15) - 15) * 4) | ((l >> 5) << 12))
        st.mov(vHa, lambda l: KC + (l >> 4) * KCS + (l & 15) * 4)
        st.add(31, l16, lambda i: RR + 4096 + i * RS)
        st.add(vRa, lambda l: RR + (l & 1) * 2 * RS + (l >> 1) * 16, lambda i: i * 1024)
        st.mov(vUo, lambda l: (l >> 1) * 64 + (l & 1) * 16)
        st.mov(4, lambda l: (l >> 2) * 1024 + (((l >> 4) ^ l) & 3) * 16)
        st.add(11, lambda l: QF + (l & 31) * 64 + ((l >> 2) & 3) * 16 + (l >> 5) * 8, lambda i: i * 2048)
        ex = lambda i: (EX1 if kh(i) else EX0)
        st.add(6, lambda l: l * 32, lambda i: ex(i) + rt(i) * 4096)
        st.add(7, lambda l: l * 32, lambda i: PY + i * 4096)
        trc = lambda l: (l & 3) * 8 + ((l >> 4) & 1) * 32
        trr = lambda l: 4 * (l >> 5) + ((l >> 2) & 3)
        st.add(8, lambda l: QF + trr(l) * 64 + trc(l), lambda i: i * 2048)
        st.mov(9, lambda l: (l >> 2) * 4096 + (l & 3) * 16)
        st.mov(10, lambda l: fidx(l) if l < 32 else (l & 7) * 8 + ((l >> 3) & 1) * 4)
        st.add(12, lambda l: (l & 31) * 256 + (((l >> 5) ^ l) & 7) * 16, lambda i: FX + rt(i) * 8192 + kh(i) * (FXS + 128))
        st.add(13, lambda l: (l >> 3) * 256 + ((2 * (l & 7)) ^ (l >> 3)) * 16, lambda i: FX + rt(i) * 8192 + kh(i) * 4096)
        st.mov(1, lambda l: (l >> 3) * 1024 + (l & 7) * 16)
        st.keep(sKm, lambda i: KC + 64 + i * KCS)
        a("s_setprio 3")
        self.decode()
        a(f"""v_lshrrev_b32 v2, 3, v0            ; r
              v_and_b32 v3, 7, v0                ; c'
              v_lshrrev_b32 v4, 4, v0            ; r>>1
              v_and_b32 v5, 1, v4                ; (r>>1)&1
              s_lshl_b32 {s(sT0)}, {s(sI)}, 3
              v_add_u32 v6, {s(sT0)}, v2         ; 8i + r
              s_lshl_b32 {s(sT1)}, {s(sI)}, 1
              v_add_u32 v7, {s(sT1)}, v5
              v_xor_b32 v7, v7, v3
              v_lshlrev_b32 v7, 4, v7
              v_lshl_add_u32 {v(vKVo)}, v6, 10, v7
              s_lshl_b32 {s(sT2)}, {s(sRb)}, 16
              s_lshl_b32 {s(sT5)}, {s(sHq)}, 7
              s_add_u32 {s(sT2)}, {s(sT2)}, {s(sT5)}
              s_add_u32 {s(sT3)}, {s(sI)}, 1                 ; k rows sit one piece further in the staging area
              s_xor_b32 {s(sT3)}, {s(sT3)}, {s(sI)}
              s_and_b32 {s(sT3)}, {s(sT3)}, 3
              s_lshl_b32 {s(sT3)}, {s(sT3)}, 5
              v_xor_b32 {v(vK0)}, {s(sT3)}, {v(vKVo)}
              s_lshr_b32 {s(sT3)}, {s(sI)}, 1
              v_xor_b32 v8, {s(sT3)}, v0
              v_lshlrev_b32 v8, 4, v8
              s_lshl_b32 {s(sT3)}, {s(sI)}, 10
              s_add_u32 {s(sT3)}, {s(sT3)}, {s(sT2)}
              s_sub_u32 {s(sT3)}, {s(sT3)}, 0x1000
              v_add_u32 v8, {s(sT3)}, v8
              s_lshl2_add_u32 {s(sT3)}, {s(sHq)}, {s(sI)}
              s_lshl_b32 {s(sT3)}, {s(sT3)}, 7
              v_lshlrev_b32 v9, 4, v0
              v_add_u32 v9, {s(sT3)}, v9
              s_add_u32 {s(sT3)}, {s(sT1)}, {s(sRot)}
              v_add_u32 v10, {s(sT3)}, v2
              v_and_b32 v10, 7, v10
              v_lshlrev_b32 v10, 7, v10
              v_lshl_add_u32 v10, v3, 4, v10
              v_lshlrev_b32 v11, 2, v5
              v_xor_b32 v11, v11, v3
              v_lshlrev_b32 v11, 4, v11
              v_lshl_add_u32 v11, v2, 10, v11
              s_lshl2_add_u32 {s(sT3)}, {s(sRb)}, {s(sI)}
              s_lshl_b32 {s(sT3)}, {s(sT3)}, 12
              s_add_u32 {s(sT3)}, {s(sT3)}, {s(sT5)}
              v_add_u32 v11, {s(sT3)}, v11
              v_add_u32 v6, {s(sT0)}, v6         ; 16i + r
              v_xor_b32 v7, v4, v3
              v_lshlrev_b32 v7, 4, v7
              v_lshl_add_u32 {v(vXa)}, v6, 10, v7
              v_xor_b32 {v(vXb)}, 64, {v(vXa)}
              v_add_u32 {v(vXb)}, 7168, {v(vXb)}
              v_lshlrev_b32 v7, 2, v5
              v_xor_b32 v7, v7, v3
              v_lshlrev_b32 v7, 4, v7
              v_mul_u32_u24 {v(vWa)}, 0xc00, v6
              v_add_u32 {v(vWa)}, {v(vWa)}, v7
              v_add_u32 {v(vWb)}, 23552, {v(vWa)}
              s_lshl_b32 {s(sI4096)}, {s(sI)}, 12
              s_lshl_b32 {s(sT1)}, {s(sI)}, 10
              s_lshl_b32 {s(sT3)}, {s(sI)}, 7
              s_add_u32 {s(sT4)}, {s(sT2)}, 0x8000""")
        self.srd_const(sK, 0x200000); self.srd_const(sV, 0x200000)
        self.srd_const(sX, 0x200000); self.srd_const(sW, 0x180000 + 2048); self.srd_const(sOUT, 0x200000)
        a(f"""s_add_u32 m0, {s(sT3)}, {SW}
              s_mov_b64 exec, 0xff
              s_waitcnt lgkmcnt(0)""")
        a.vmem("global_load_lds_dwordx4 v9, s[16:17]", "kv")
        a(f"s_add_u32 m0, {s(sT3)}, {RR + 512}")
        self.srd_ptr(sK, 12)
        a.vmem(f"buffer_load_dwordx4 v8, {s(sK,4)}, 0 offen{ldf} lds", "kv")
        a(f"""s_lshl2_add_u32 m0, {s(sT3)}, {EX1}
              s_mov_b32 exec_lo, -1""")
        a.vmem("global_load_lds_dwordx4 v11, s[8:9]", "kv")
        a(f"""s_mov_b64 exec, -1
              s_add_u32 m0, {s(sT1)}, {RR + 1024}""")
        self.srd_ptr(sV, 14)
        a.vmem(f"buffer_load_dwordx4 {v(vK0)}, {s(sK,4)}, {s(sT2)} offen{ldf} lds", "kv")
        a(f"s_add_u32 m0, {s(sT1)}, {RR + 1024 + 4096}")
        self.srd_ptr(sX, 4)
        a.vmem(f"buffer_load_dwordx4 {v(vK0)}, {s(sK,4)}, {s(sT4)} offen{ldf} lds", "kv")
        a(f"""s_add_u32 m0, {s(sT1)}, {RR + 9216}
              s_lshl_b32 {s(sT3)}, {s(sT3)}, 1""")
        a.vmem(f"buffer_load_dwordx4 {v(vKVo)}, {s(sV,4)}, {s(sT2)} offen{ldf} lds", "kv")
        a(f"""s_add_u32 m0, {s(sT1)}, {RR + 9216 + 4096}
              s_nop 0""")
        a.vmem(f"buffer_load_dwordx4 {v(vKVo)}, {s(sV,4)}, {s(sT4)} offen{ldf} lds", "kv")
        a(f"""s_add_u32 m0, {s(sT3)}, {GW}
              s_mov_b64 exec, 0xffff""")
        a.vmem("global_load_lds_dwordx4 v10, s[22:23]", "st0")
        a(f"""s_mov_b64 exec, -1
              s_sub_u32 {s(sW)}, s6, 2048""")
        self.srd_ptr(sOUT, 24)
        a(f"""s_subb_u32 {s(sW+1)}, s7, 0
              s_lshl_b32 {s(sXc)}, {s(sRot)}, 7
              s_lshl_b32 {s(sT0)}, {s(sRb)}, 16
              s_add_u32 {s(sXc)}, {s(sXc)}, {s(sT0)}
              s_mul_i32 {s(sWc)}, {s(sRot)}, 0x30000
              s_add_u32 {s(sWc)}, {s(sWc)}, {s(sT5)}
              s_add_u32 {s(sWc)}, {s(sWc)}, 1024""")

        def adv_w():
            a(f"""s_add_u32 {s(sWc)}, {s(sWc)}, 0x30000
                  s_sub_u32 {s(sT0)}, {s(sWc)}, 0x180000
                  s_cselect_b32 {s(sWc)}, {s(sWc)}, {s(sT0)}""")
        def issue_stage(st):
            tag = f"st{st}"
            a(f"s_add_u32 m0, {s(sI4096)}, {(st % 6) * 16384}")
            if st < 8:
                a("s_nop 0")
                a.vmem(f"buffer_load_dwordx4 {v(vXa)}, {s(sX,4)}, {s(sXc)} offen{ldx} lds", tag)
                a.vmem(f"buffer_load_dwordx4 {v(vWa)}, {s(sW,4)}, {s(sWc)} offen offset:2048{ldw} lds", tag)
                a.vmem(f"buffer_load_dwordx4 {v(vXb)}, {s(sX,4)}, {s(sXc)} offen offset:1024{ldx} lds", tag)
                a.vmem(f"buffer_load_dwordx4 {v(vWb)}, {s(sW,4)}, {s(sWc)} offen offset:3072{ldw} lds", tag)
                a(f"""s_add_u32 {s(sT0)}, {s(sXc)}, 128
                      s_and_b32 {s(sT0)}, {s(sT0)}, 0x3ff
                      s_andn2_b32 {s(sXc)}, {s(sXc)}, 0x3ff
                      s_or_b32 {s(sXc)}, {s(sXc)}, {s(sT0)}""")
                adv_w()
            else:
                a(f"s_add_u32 {s(sT1)}, {s(sWc)}, 2048")
                a.vmem(f"buffer_load_dwordx4 {v(vWa)}, {s(sW,4)}, {s(sT1)} offen{ldw} lds", tag)
                a.vmem(f"buffer_load_dwordx4 {v(vWb)}, {s(sW,4)}, {s(sT1)} offen offset:1024{ldw} lds", tag)
                adv_w()
                a.vmem(f"buffer_load_dwordx4 {v(vWa)}, {s(sW,4)}, {s(sWc)} offen offset:2048{ldw} lds", tag)
                a.vmem(f"buffer_load_dwordx4 {v(vWb)}, {s(sW,4)}, {s(sWc)} offen offset:3072{ldw} lds", tag)
                adv_w()
            if st == 7:
                a(f"s_add_u32 {s(sWc)}, {s(sWc)}, 1024")
            if st == 11:
                a(f"s_sub_u32 {s(sWc)}, {s(sWc)}, 2048")

        D = int(self.o.get("depth", 2))
        D0 = int(self.o.get("depth0", 0))
        issue_stage(0)
        for st in range(1, D0 + 1):
            issue_stage(st)
        nissued = D0 + 1
        a("s_setprio 0")
        if self.o.get("skew"):
            a("""s_mov_b64 s[96:97], s[26:27]
                 s_not_b32 s98, s100
                 v_mov_b32 v11, s98
                 v_mov_b32 v12, 0
                 s_lshr_b32 s99, s2, 3
                 s_or_b32 s99, s99, s64
                 s_cmp_eq_u32 s99, 0
                 s_cselect_b32 s99, 0, 128
                 v_mov_b32 v12, s99
                 s_mov_b64 exec, 1
                 s_cbranch_scc0 L_nosk
                 global_atomic_umax v12, v11, s[96:97] sc1
                 L_nosk:""")
            a("s_mov_b64 exec, -1")
        self.srd_const(sWS, WS_BYTES); self.srd_ptr(sWS, 28)
        self.srd_const(sSK, 0x200000); self.srd_ptr(sSK, 18)
        self.scalar_tables()
        a(f"""s_load_dword {s(sTag)}, s[28:29], 0
              s_lshl2_add_u32 {s(sT0)}, s2, {s(sI)}
              s_lshl_b32 {s(sT0)}, {s(sT0)}, 7
              s_load_dwordx16 s[4:19], {s(sTB,2)}, {s(sT0)} offset:{T_WG}
              s_load_dwordx4 s[20:23], {s(sTB,2)}, {s(sT0)} offset:{T_WG + 64}""")
        a(f"""s_mov_b32 {s(sRole)}, 1
              s_lshl_b32 {s(sRem)}, {s(sI)}, 14
              v_mov_b32 v44, 0
              v_mov_b32 v45, 0
              v_mov_b32 v46, 0
              v_mov_b32 v47, 0
              v_lshlrev_b32 v8, 2, v0
              v_add_u32 v8, {CNT}, v8
              ds_write_b32 v8, v44
              v_and_b32 v39, 7, v0""")
        a(f"s_mov_b32 {s(sOne)}, 0x3f803f80")
        for g in self.mask_ops(4, 5) + self.const_ops():
            for l in g: a(l)
        a.vm_wait("kv")
        a("s_barrier")
        a("s_branch L_b1")
        a("@ASTART@:")
        a.label("L_b1")
        for st in range(nissued, int(self.o.get("depthk", 2)) + 1):
            issue_stage(st); nissued += 1
        a(f"""v_lshlrev_b32 v1, 4, v0
              v_add_u32 v1, {T_PB + 4096}, v1""")
        for q in range(self.stB.nq()):
            a.vmem(f"global_load_dwordx4 {v(128+4*q,4)}, v1, {s(sTB,2)} offset:{1024*q - 4096}", "tab")
        idle = [[l] for l in self.stB.ops]
        setup_open = True
        IB = int(self.o.get("idleb", 10))
        D1 = int(self.o.get("depth1", 2))

        def u_loads():
            a.vmem(f"buffer_load_dwordx4 v[128:131], {v(vUo)}, {s(sWS,4)}, {s(sUS)} offen sc1", "u")
            a.vmem(f"buffer_load_dwordx4 v[136:139], {v(vUo)}, {s(sWS,4)}, {s(sUS)} offen offset:2048 sc1", "u")
            a(f"""s_cmp_eq_u32 {s(sI)}, 3
                  s_cselect_b32 {s(sT1)}, {WS_BYTES}, {s(sUS)}
                  s_lshl_b64 exec, 3, 62""")
            a.vmem(f"buffer_load_dword v141, {v(vUo)}, {s(sWS,4)}, {s(sT1)} offen offset:{2048+64} sc1", "u")
            a("s_mov_b64 exec, -1")

        KC0 = int(self.o.get("kc0", 14))
        UL = int(self.o.get("ulook", 14))
        T0 = int(self.o.get("t0", 6))
        idle += [[f"s_add_u32 {s(sTag)}, {s(sTag)}, {TAGC}"], [f"s_xor_b32 {s(sLO)}, {s(sEO)}, 1024"],
                 [f"v_lshlrev_b32 v3, 2, v0", f"v_add_u32 {v(vFo)}, {s(sTw)}, v3", "s_mov_b64 exec, 0xffff",
                  f"v_add_u32 {v(vFo)}, {s(sUF)}, v3", "s_mov_b64 exec, -1"],
                 [f"s_xor_b32 s40, {s(sWoS)}, 1024"], [f"s_xor_b32 s41, {s(sWoS)}, 2048"], [f"s_xor_b32 s42, {s(sWoS)}, 3072"],
                 ["s_mov_b32 s48, 0xffff01ff", "s_mov_b32 s49, 0"],
                 [f"v_add_u32 v39, {s(sKt0)}, v39"], ["v_max_i32 v39, 0, v39"],
                 ["v_and_b32 v3, 0x70, v39", "v_add_lshl_u32 v39, v39, v3, 2"],
                 ["s_mov_b32 exec_hi, 0", f"v_add_u32 v10, {s(sYF2)}, v10", "s_not_b64 exec, exec",
                  f"v_xor_b32 v10, {s(sEF)}, v10", "s_mov_b64 exec, 0xfffffff", "ds_write_b128 v31, v[44:47]", "s_mov_b64 exec, -1"]]
        udone = False
        def ucheck():
            if "fu" in a.vm: a.vm_wait("fu")
            a(f"v_cmp_ne_u32 vcc, {s(sTag)}, {v(vFu)}")
            u_loads()
        for st in range(16):
            while nissued <= min(st + (D0 if st == 0 else D1 if st == 1 else D), 15):
                issue_stage(nissued); nissued += 1
            if st > UL and "fu" not in a.vm and not udone:
                ucheck(); udone = True
            if st == UL:
                assert not idle
                a.vmem(self.look(vFu, vFo, 0, 's[48:49]'), "fu")
            if st == KC0:
                a(f"s_mov_b32 m0, {s(sKm)}")
                a.vmem(f"buffer_load_dword {v(vHd)}, v28, {s(sSK,4)}, {s(sTs)} offen", "kc")
                for p in range(4):
                    a.vmem(f"buffer_load_dwordx4 v2, {s(sSK,4)}, {s(sK4)} offen offset:{1024*p}{ldf} lds", "kc")
            if st == T0:
                a("s_waitcnt lgkmcnt(0)")
            if "tab" not in a.vm and idle and st >= T0:
                n = 0
                while idle and n + len(idle[0]) <= IB:
                    for l in idle.pop(0):
                        n += 1; a(l)
                if not idle:
                    self.setup_done(); setup_open = False
            if f"st{st}" in a.vm:
                a.vm_wait(f"st{st}")
            if not setup_open: self.tss(st, True)
            a("s_barrier")
            if not setup_open: self.tss(st, False)
            if st == 12: self.ts(3)
        if not udone:
            ucheck()
        a("s_barrier")
        self.tm("p2", 1)
        self.ts(4)
        Lr, Lb = a.newlabel("Lur"), a.newlabel("Lub")
        a(f"""s_setprio 2
              s_cbranch_vccnz {Lr}""")
        a.label(Lb)
        keep = (a.lines, list(a.vm))
        a.lines = self.tail
        a.label(Lr)
        self.poll(vFo, 0, vFu, 's[48:49]')
        u_loads()
        a(f"s_branch {Lb}")
        a.lines, a.vm = keep
        a.vmem(self.look(5, 39, s(sKVF), 0xff), "fkv")
        a.vm_wait("u", "kc")
        dp = "wave_rol:1 row_mask:0xf bank_mask:0xf"
        a(f"""ds_write_b32 {v(vHa)}, {v(vHd)}
              v_mov_b32_dpp v133, v128 {dp}
              v_mov_b32_dpp v134, v136 {dp}
              s_lshl_b64 vcc, 3, 62
              v_mov_b32_dpp v132, v133 {dp}
              v_mov_b32_dpp v140, v134 {dp}
              v_cndmask_b32 v132, v132, v140, vcc
              v_cndmask_b32 v140, v140, v141, vcc""")
        for j, b in ((0, 128), (1, 136)):
            a(f"ds_write_b128 {v(vRa)}, {v(b,4)} offset:{RS + 512*j}")
            for q in range(4):
                a(f"v_alignbit_b32 {v(144+4*j+q)}, {v(b+q+1)}, {v(b+q)}, 16")
            a(f"ds_write_b128 {v(vRa)}, {v(144+4*j,4)} offset:{512*j}")
        self.lds_signal(vCNT, C_CONV)
        self.ts(2)

    def compute_phase1(self):
        a = self.a
        a.label("L_compute")
        self.decode()
        a.vm = []; a.lg = []
        vXA, vWA = 8, 12
        accK, accV, accQ, Wf = 16, 32, 48, 64
        NSET = 12
        st = self.stA = Setup(128)
        rt = lambda i: i >> 1
        ct = lambda i: i & 1
        l16 = lambda l: l * 16
        def ua(l, d):
            blk = 2 * (l >> 4) + (l & 1); r = (l >> 2) & 3
            return RR + (8 * blk + r) * 128 + ((((blk + d) & 3) * 2 + (r >> 1)) * 16) + ((l >> 1) & 1) * 8
        st.xor(192, lambda l: ua(l, 0), lambda i: i * 32)
        st.xor(193, lambda l: ua(l, 1), lambda i: i * 32)
        st.mov(194, lambda l: (7 - (2 * (l >> 4) + ((l >> 2) & 1))) * 64 + (l & 3) * 16 + ((l >> 3) & 1) * 16384)
        st.xor(vXA, lambda l: ((l >> 4) & 1) * 4096 + ((l >> 3) & 1) * 1024 + (l & 7) * 128 + ((((l >> 1) & 7) ^ (l >> 5)) * 16),
               lambda i: rt(i) * 8192 + ct(i) * 64)
        st.raw(f"v_xor_b32 {v(vXA+1)}, 32, {v(vXA)}\nv_xor_b32 {v(vXA+2)}, 64, {v(vXA)}\nv_xor_b32 {v(vXA+3)}, 0x60, {v(vXA)}")
        st.xor(vWA, lambda l: (8 * (l >> 5) + ((l >> 2) & 3)) * 128 + (l & 3) * 8 + ((l >> 4) & 1) * 32 + ((l >> 3) & 1) * 64,
               lambda i: ct(i) * (8192 + 64))
        st.raw(f"v_xor_b32 {v(vWA+1)}, 0x2000, {v(vWA)}\nv_add_u32 v3, 0x10000, {v(vWA)}\nv_add_u32 v4, 0x10000, {v(vWA+1)}")
        st.add(1, lambda l: GW + (l >> 5) * 16, lambda i: ct(i) * 64)
        st.mov(5, lambda l: ((l >> 4) & 1) * 131072 + (l >> 5) * 256 + (l & 15) * 16)
        st.add(6, lambda l: ((l >> 4) & 1) * 4096 + (l >> 5) * 256 + (l & 15) * 16, lambda i: LB + ct(i) * 8192 + rt(i) * 2048)
        st.add(7, l16, lambda i: LB + ct(i) * 8192 + rt(i) * 2048)
        st.add(114, lambda l: (l & 31) * 8, lambda i: GP + rt(i) * 256 + ct(i) * 4)
        st.add(112, lambda l: KC + (l & 1) * KCS + ((l >> 1) & 7) * 8 + (l >> 4) * 16, lambda i: rt(i) * 2 * KCS + ct(i) * 256)
        st.add(113, lambda l: RR + 448 + (l & 1) * RS + (l >> 4) * 16 - ((l >> 1) & 7) * 64, lambda i: rt(i) * 2 * RS + ct(i) * 256)
        st.attn(lambda i: ct(i) ^ 1)
        st.keep(sQFw, lambda i: QF + ct(i) * 4096 + rt(i) * 1024)
        st.keep(sPw, lambda i: (PY + rt(i) * 8192) if ct(i) else (EX1 if rt(i) else EX0))
        for rr in range(4):
            st.ops.append(f"v_and_b32 {v(116+rr)}, {s(sD)}, {v(st.p(lambda l: 0xffff if (l & 15) + 4 * (l >> 4) == 15 - rr else 0))}")
        st.mov(190, lambda l: EX1 + (4 * (l >> 5) + ((l >> 2) & 3)) * 128 + (l & 3) * 8 + ((l >> 4) & 1) * 32 + ((l >> 3) & 1) * 64)
        st.add(195, lambda l: SW + ((l & 3) + 4 * ((l >> 3) & 1)) * 8, lambda i: i * 128)
        assert st.nq() == NQ
        a.vm = ["tab"] * NQ + ([] if self.o.get("notb") else ["tb"])
        a(f"""
              s_and_b32 {s(sT2)}, s2, 7
              s_lshl_b32 {s(sT2)}, {s(sT2)}, 5
              s_lshr_b32 {s(sT1)}, s2, 3
              s_add_u32 {s(sT2)}, {s(sT2)}, {s(sT1)}
              s_lshr_b32 {s(sT1)}, {s(sI)}, 1
              s_lshl1_add_u32 {s(sT2)}, {s(sT2)}, {s(sT1)}
              s_lshl_b32 {s(sT2)}, {s(sT2)}, 1
              s_lshl_b32 s46, {s(sT2)}, 11
              v_mov_b32 v252, {s(sT2)}
              v_mov_b32 v253, 0
              s_bitcmp0_b32 {s(sI)}, 0
              s_cselect_b32 {s(sD)}, -1, 0
              s_mov_b32 {s(sRole)}, 0""")
        a(f"""s_and_b32 {s(sT0)}, {s(sI)}, 1                 ; ct
              s_lshr_b32 {s(sT1)}, {s(sI)}, 1                ; rt
              s_lshl2_add_u32 {s(sT2)}, {s(sHq)}, {s(sI)}
              s_lshl_b32 {s(sU0+32)}, {s(sT2)}, 16
              s_lshl_b32 {s(sT3)}, {s(sRb)}, 9
              s_sub_u32 {s(sU0+32)}, {s(sU0+32)}, {s(sT3)}
              s_add_u32 {s(sU0+32)}, {s(sU0+32)}, {UG + 248*64}
              s_lshl_b32 {s(sUF+32)}, {s(sT2)}, 5
              s_add_u32 {s(sUF+32)}, {s(sUF+32)}, {s(sRb)}
              s_lshl_b32 {s(sUF+32)}, {s(sUF+32)}, 2
              s_add_u32 {s(sUF+32)}, {s(sUF+32)}, {FU}
              s_xor_b32 {s(sT3)}, {s(sT0)}, 1
              s_lshl1_add_u32 {s(sT3)}, {s(sRb)}, {s(sT3)}   ; tt
              s_add_u32 {s(sNt+32)}, {s(sT3)}, 1
              s_min_u32 {s(sNt+32)}, {s(sNt+32)}, 9
              s_lshl_b32 {s(sT3)}, {s(sT3)}, 5
              s_add_u32 {s(sT3)}, {s(sT3)}, {s(sT2)}
              s_lshl_b32 {s(sOO+32)}, {s(sT3)}, 10
              s_add_u32 {s(sOO+32)}, {s(sOO+32)}, {OG}
              s_andn2_b32 {s(sOF+32)}, {s(sT3)}, 15
              s_add_u32 {s(sOF+32)}, {s(sOF+32)}, {s(sT3)}
              s_lshl_b32 {s(sOF+32)}, {s(sOF+32)}, 2
              s_add_u32 {s(sOF+32)}, {s(sOF+32)}, {FO}
              s_lshl1_add_u32 {s(sT2)}, {s(sHq)}, {s(sT0)}   ; pair
              s_lshl1_add_u32 {s(sT3)}, {s(sRb)}, {s(sT1)}   ; kt
              s_lshl_b32 {s(sKO+32)}, {s(sT2)}, 7
              s_add_u32 {s(sKO+32)}, {s(sKO+32)}, {s(sT3)}
              s_lshl_b32 {s(sKO+32)}, {s(sKO+32)}, 11
              s_add_u32 {s(sKO+32)}, {s(sKO+32)}, {KVG}
              s_add_u32 {s(sKO2+32)}, {s(sKO+32)}, 0x20000
              s_lshl_b32 {s(sKF+32)}, {s(sT2)}, 6
              s_add_u32 {s(sKF+32)}, {s(sKF+32)}, {s(sT3)}
              s_andn2_b32 {s(sT3)}, {s(sKF+32)}, 15
              s_add_u32 {s(sKF+32)}, {s(sKF+32)}, {s(sT3)}
              s_lshl_b32 {s(sKF+32)}, {s(sKF+32)}, 2
              s_add_u32 {s(sKF+32)}, {s(sKF+32)}, {FKV}""")
        if self.o.get("pg"):
            a(f"""v_mov_b32 v254, {s(sU0+32)}
                  v_writelane_b32 v254, {s(sKO+32)}, 1
                  v_writelane_b32 v254, {s(sOO+32)}, 2
                  s_lshl_b32 {s(sT0)}, {s(sHq)}, 5
                  s_add_u32 {s(sT0)}, {s(sT0)}, {s(sRb)}
                  s_lshl_b32 {s(sT0)}, {s(sT0)}, 11
                  s_add_u32 {s(sT0)}, {s(sT0)}, {WFG}
                  v_writelane_b32 v254, {s(sT0)}, 3
                  v_lshlrev_b32 v251, 11, v252
                  v_add_u32 v250, {YG}, v251
                  s_mov_b64 vcc, 16
                  v_cndmask_b32 v254, v254, v250, vcc
                  s_lshl_b32 {s(sT0)}, {s(sRb)}, 9
                  s_add_u32 {s(sT0)}, {s(sT0)}, {s(sHq)}
                  s_lshl_b32 {s(sT0)}, {s(sT0)}, 7
                  v_mov_b32 v250, {s(sT0)}""")
        if self.o.get("lateA"):
            a("s_setprio 3")
        self.srd_const(sWS, WS_BYTES)
        a("s_waitcnt lgkmcnt(0)")
        if self.o.get("pg"):
            a("s_mov_b64 exec, 31")
            a.vmem("global_load_dword v255, v254, s[28:29]", "ed")
            a("s_mov_b64 exec, 1")
            a.vmem("global_load_dword v255, v251, s[18:19]", "ed")
            a.vmem("global_load_dword v255, v250, s[24:25]", "ed")
            a("s_mov_b64 exec, -1")
        a.vmem("global_load_ushort v252, v252, s[20:21]", "ed")
        a.vmem("global_load_dword v253, v253, s[28:29]", "ed")
        self.srd_ptr(sWS, 28)
        def wtouch():
            kinds = self.o.get("wt", "")
            a(f"""s_lshl2_add_u32 {s(sT1)}, {s(sRot)}, {s(sI)}
                  s_mul_i32 {s(sT1)}, {s(sT1)}, {16*3072}
                  s_lshl_b32 {s(sT0)}, {s(sHq)}, 7
                  s_add_u32 {s(sT1)}, {s(sT1)}, {s(sT0)}
                  v_and_b32 v188, 15, v0
                  v_mul_u32_u24 v188, 0xc00, v188
                  v_xor_b32 v189, 16, v0
                  v_and_b32 v189, 16, v189
                  v_lshl_add_u32 v188, v189, 7, v188
                  v_add_u32 v188, {s(sT1)}, v188
                  s_mov_b32 exec_hi, 0
                  s_mov_b32 exec_lo, {"-1" if "q" in kinds else "0xffff"}""")
            a.vmem("global_load_dword v115, v188, s[44:45]", "ed")
            if "s" in kinds:
                a(f"""s_mov_b32 exec_lo, 0xffff
                      v_lshlrev_b32 v188, 7, v0
                      s_and_b32 {s(sT0)}, {s(sI)}, 1
                      s_lshl_b32 {s(sT0)}, {s(sT0)}, 11
                      s_add_u32 {s(sT0)}, {s(sT0)}, s46
                      v_add_u32 v188, {s(sT0)}, v188""")
                a.vmem("global_load_dword v115, v188, s[18:19]", "ed")
            a("s_mov_b64 exec, -1")
        a("s_mov_b64 s[44:45], s[6:7]")
        if self.o.get("wt") and self.o.get("wtp", "0") == "0": wtouch()
        a("s_mov_b64 s[4:5], s[36:37]\ns_mov_b64 s[6:7], s[38:39]\ns_mov_b64 s[8:9], s[40:41]\ns_mov_b64 s[10:11], s[42:43]")
        if self.o.get("lateA"):
            self.scalar_tables()
            a("s_setprio 0\ns_waitcnt lgkmcnt(0)")
        a.vm_wait("tab")
        for l in st.ops: a(l)
        a("s_setprio 1")
        self.setup_done()
        self.tm("ld", 5)
        if self.o.get("wt") and self.o.get("wtp") == "1": wtouch()
        fillers = []
        a("s_barrier")
        self.tm("ld", 7)
        a.lds("ds_read_b64 v[196:197], v195", "sw")
        a.lds("ds_read_b64 v[198:199], v195 offset:64", "sw")
        self.u_reads(0); self.u_reads(1)
        Lw = a.newlabel("Lwf")
        a(f"""s_cmp_lg_u32 {s(sI)}, 0
              s_cbranch_scc1 {Lw}
              v_xor_b32 v191, 64, v190
              ds_read_b64_tr_b16 v[176:177], v190
              ds_read_b64_tr_b16 v[178:179], v190 offset:1024
              ds_read_b64_tr_b16 v[180:181], v191
              ds_read_b64_tr_b16 v[182:183], v191 offset:1024
              s_lshl_b32 {s(sT0)}, {s(sHq)}, 5
              s_add_u32 {s(sT0)}, {s(sT0)}, {s(sRb)}
              s_lshl_b32 {s(sT0)}, {s(sT0)}, 11
              s_add_u32 {s(sT0)}, {s(sT0)}, {WFG}
              s_waitcnt lgkmcnt(0)
              buffer_store_dwordx4 v[176:179], v2, {s(sWS,4)}, {s(sT0)} offen sc1
              buffer_store_dwordx4 v[180:183], v2, {s(sWS,4)}, {s(sT0)} offen offset:1024 sc1""")
        a.label(Lw)
        self.u_math(0); self.u_math(1)
        if self.o.get("wt") and self.o.get("wtp") == "2":
            a("s_nop 1"); wtouch()
        self.tm("ld", 8)
        a("s_branch L_a1")
        a("@AEND@:")
        a.label("L_a1")
        fq = []
        def fill(n):
            while n > 0 and fq:
                l = fq.pop(0); n -= 1
                if self.o.get("nost") and l.startswith("@kvst"): continue
                if self.o.get("nolw") and l.startswith("#w ds_write_b128"): continue
                if l.startswith("@"):
                    tag, rest = l[1:].split(" ", 1); a.vmem(rest, tag)
                elif l.startswith("#"):
                    tag, rest = l[1:].split(" ", 1); a.lds(rest, tag)
                else:
                    a(l)
        nset = [0]
        def reads(st, n):
            slot = st % 6
            tag = f"s{st}_{n}"
            hi, so = (0, slot * 16384) if slot < 4 else (2, (slot - 4) * 16384)
            if st < 8 and n >= 4:
                gb = accV + 8 * (st & 1) + 4 * (n - 4)
                a.lds(f"ds_read_b128 {v(gb,4)}, v1 offset:{st*128 + (n-4)*32}", tag)
                return ("g", 4 * st + n - 4, gb, tag), 1
            wb = Wf + 4 * (nset[0] % NSET); nset[0] += 1
            base = (3 if hi else vWA) + ((n >> 1) & 1)
            if st < 8:
                k = 4 * st + n
                a.lds(f"ds_read_b128 {v(128+4*k,4)}, {v(vXA+n)} offset:{so}", tag)
                o = so + (n & 1) * 4096 + 2048
            else:
                k = 8 * ((st - 8) & 3) + n
                o = so + (n & 1) * 4096 + (n >> 2) * 2048
            a.lds(f"ds_read_b64_tr_b16 {v(wb,2)}, {v(base)} offset:{o}", tag)
            a.lds(f"ds_read_b64_tr_b16 {v(wb+2,2)}, {v(base)} offset:{o+512}", tag)
            return ("k" if st < 8 else "v" if st < 12 else "q", k, wb, tag), (3 if st < 8 else 2)
        def mm(g):
            kind, k, wb, tag = g
            a.lg_wait(tag)
            acc = {"k": accK, "v": accV, "q": accQ, "g": accQ}[kind]
            c = "0" if k == 0 else v(acc, 16)
            if kind == "v":
                a(f"v_mfma_f32_32x32x16_bf16 {v(acc,16)}, {v(128+4*k,4)}, {v(wb,4)}, {c}")
            else:
                a(f"v_mfma_f32_32x32x16_bf16 {v(acc,16)}, {v(wb,4)}, {v(128+4*k,4)}, {c}")
        def lines(t):
            return [x.strip() for x in t.split("\n") if x.strip()]
        pend = []
        UF = int(self.o.get("uflag", 5))
        KVF = int(self.o.get("kvflag", 14))
        DEF = int(self.o.get("defer", 4))
        BUD = int(self.o.get("budget", 5))
        for st in range(16):
            self.tss(st, True)
            a("s_barrier")
            self.tss(st, False)
            if st == 0: self.ts(1)
            if st == 8: self.ts(2)
            if st == 12: self.ts(3)
            nit = 6 if st < 8 else 8
            nd = 6 if st < 8 else 0 if st == 15 else DEF
            gs = []
            if st == 0:
                for n in range(6): gs.append(reads(st, n)[0])
            if st == 1:
                for f in fillers: fq += lines(f)
            npend = len(pend)
            for i in range(npend + nit - nd):
                used = 0
                if len(gs) < nit:
                    g, used = reads(st, len(gs)); gs.append(g)
                mm(pend[i] if i < npend else gs[i - npend])
                if st == 8 and i == 6:
                    fq += [f"v_cvt_pk_bf16_f32 {v(accK+q)}, {v(accK+2*q)}, {v(accK+2*q+1)}" for q in range(8)]
                    fq += [f"v_mov_b32 v1, {v(accQ)}"]
                if st == 12 and i == npend + 1:
                    fq += [f"v_cvt_pk_bf16_f32 {v(accV+q)}, {v(accV+2*q)}, {v(accV+2*q+1)}" for q in range(8)]
                stf = self.o.get("stf", "sc1").replace("+", " ")
                stores = [f"@kvst buffer_store_dwordx4 {v(accK,4)}, v2, {s(sWS,4)}, {s(sKO)} offen {stf}",
                          f"@kvst buffer_store_dwordx4 {v(accK+4,4)}, v2, {s(sWS,4)}, {s(sKO2)} offen {stf}",
                          f"@kvst buffer_store_dwordx4 {v(accV,4)}, v5, {s(sWS,4)}, {s(sKO)} offen offset:1024 {stf}",
                          f"@kvst buffer_store_dwordx4 {v(accV+4,4)}, v5, {s(sWS,4)}, {s(sKO)} offen offset:1536 {stf}"]
                SP = [int(x) for x in self.o.get("sp", "9,11,12,12").split(",")]
                for k in range(4):
                    if st == SP[k] and i == (6 if st == 8 else npend + 1):
                        fq.append(stores[k])
                if st == 15 and i >= 7:
                    fq += [[f"#w ds_write_b32 v114, v1"],
                           [f"#w ds_write_b128 v7, {v(accK,4)}"],
                           [f"#w ds_write_b128 v7, {v(accK+4,4)} offset:4096"],
                           [f"#w ds_write_b128 v6, {v(accV,4)} offset:1024"],
                           [f"#w ds_write_b128 v6, {v(accV+4,4)} offset:1536"]][i - 7]
                if st in (3, 5) and i == 4:
                    op = "v_add_u32" if st == 3 else "v_subrev_u32"
                    for n in range(4): a(f"{op} {v(vXA+n)}, 0x10000, {v(vXA+n)}")
                    used += 4
                fill(BUD - used - (1 if i >= npend else 0))
            assert len(gs) == nit
            if st in (7, 12, 14):
                fill(100)
            pend = gs[nit - nd:]
            if st < 15:
                a.lg_all()
            if st == UF:
                a.vm_wait("ust")
                a(f"v_readfirstlane_b32 {s(sTag)}, v253")
                for rr in range(4):
                    a(f"v_and_b32 {v(116+rr)}, {v(116+rr)}, v252")
                a(f"s_add_u32 {s(sTag)}, {s(sTag)}, {TAGC}")
                self.flag_store(sUF, 255)
            if st == KVF:
                a.vm_all()
                self.flag_store(sKF, 115)
        assert not fq
        self.ts(4)
        a(f"""s_mov_b32 {s(sT0)}, {f2u(0.25 * LOG2E):#x}
              s_mov_b32 {s(sT1)}, {s(sT0)}
              v_add_u32 v3, {s(sQFw)}, v2""")
        for q in range(8):
            a(f"v_pk_mul_f32 {v(accQ+2*q,2)}, {v(accQ+2*q,2)}, {s(sT0,2)}")
        for q in range(8):
            a(f"v_cvt_pk_bf16_f32 {v(accQ+q)}, {v(accQ+2*q)}, {v(accQ+2*q+1)}")
            if q == 3:
                a(f"ds_write_b128 v3, {v(accQ,4)}")
        a(f"""ds_write_b128 v3, {v(accQ+4,4)} offset:2048
              v_mov_b32 v8, v112
              v_mov_b32 v9, v113
              v_mov_b32 v84, v116
              v_mov_b32 v85, v117
              v_mov_b32 v86, v118
              v_mov_b32 v87, v119
              s_setprio 0""")
        a.lg_all()
        a("s_barrier")
        self.ts(5)

    def conv(self):
        a = self.a
        a.lg = []
        vKA, vUA = 8, 9
        acc = 16
        KVC = int(self.o.get("kvconv", -1))
        def fr(buf, kind, i):
            return 128 + 64 * buf + (0 if kind == "k" else 32) + 4 * i
        issued = set()
        def rd(r, kind, i):
            issued.add((r, kind, i))
            buf = r & 1
            if kind == "k":
                a.lds(f"ds_read_b64 {v(fr(buf,'k',i),2)}, {v(vKA)} offset:{512*i + 64*r}", f"{r}k{i}")
                a.lds(f"ds_read_b64 {v(fr(buf,'k',i)+2,2)}, {v(vKA)} offset:{512*i + 64*r + 8}", f"{r}k{i}")
            else:
                a.lds(f"ds_read_b128 {v(fr(buf,'u',i),4)}, {v(vUA)} offset:{512*(7-i) + 64*r}", f"{r}u{i}")
        order = []
        for i in range(8):
            order += [("k", i), ("u", i)]
        NPRE = int(self.o.get("cpre", 33))
        pre = self.mask_ops(3, 7) + self.const_ops()
        if int(self.o.get("kvflag", 14)) == 16:
            a.vm_all()
            self.flag_store(sKF, 13)
        for g in pre[:NPRE]:
            for l in g: a(l)
        if int(self.o.get("kvflag", 14)) == 17:
            a.vm_all()
            self.flag_store(sKF, 13)
        self.lds_spin(vCNT, C_CONV, 4, 4)
        self.ts(8)
        for kind, i in order[:8]:
            rd(0, kind, i)
        fill = [[x.strip()] for x in f"""#q ds_read_b128 {v(vQ,4)}, v14
              v_and_b32 v10, 15, v0
              v_lshlrev_b32 v10, 3, v10
              v_lshrrev_b32 v11, 4, v0
              v_lshl_add_u32 v10, v11, 8, v10
              v_add_u32 v10, {s(sPw)}, v10
              s_lshl_b32 {s(sT2)}, {s(sI)}, 2
              v_add_u32 v12, {s(sT2)}, {v(vCNT)}
              s_nop 0""".split("\n")]
        for g in pre[NPRE:]:
            fill += [g[:2], g[2:]] if len(g) == 4 else [g]
        pend_r = [(0, k, i) for k, i in order[8:]]
        first = [True] * 8
        for r in range(4):
            self.tm("p2", 1 + r)
            buf = r & 1
            nxt = [(r + 1, k, i) for k, i in order] if r < 3 else []
            queue = pend_r + nxt
            pend_r = []
            seq = []
            for m in range(8):
                for d in range(m + 1):
                    for s_ in range(m + 1):
                        if max(d, s_) == m and d + s_ <= 7:
                            seq.append((d, s_))
            assert len(seq) == 36
            for n, (d, s_) in enumerate(seq):
                T = d + s_
                if r * 36 + n == KVC:
                    a.vm_all()
                    self.flag_store(sKF, 13)
                assert (r, "k", d) in issued and (r, "u", s_) in issued
                a.lg_wait(f"{r}k{d}", f"{r}u{s_}")
                c = "0" if first[T] else v(acc + 4 * T, 4)
                first[T] = False
                a(f"v_mfma_f32_16x16x32_bf16 {v(acc+4*T,4)}, {v(fr(buf,'u',s_),4)}, {v(fr(buf,'k',d),4)}, {c}")
                if queue and (n % 2 == 0 or queue[0][0] == r):
                    if len(a.lg) > 12:
                        a.lg_wait(a.lg[5])
                    rd(*queue.pop(0))
                elif fill:
                    for l in fill.pop(0):
                        if l.startswith("#"):
                            tag, rest = l[1:].split(" ", 1); a.lds(rest, tag)
                        else:
                            a(l)
            if r == 0:
                for T in range(8):
                    a(f"v_mfma_f32_16x16x32_bf16 {v(acc+4*T,4)}, {v(fr(0,'u',T),4)}, v[84:87], {v(acc+4*T,4)}")
            pend_r = queue
            assert all(q[0] == r + 1 for q in pend_r)
        assert not fill and not pend_r
        self.tm("p2", 5)
        self.ts(6)
        a("s_setprio 1")
        for T in range(8):
            for r in range(2):
                a(f"ds_write_b64 v10, {v(acc+4*T+2*r,2)} offset:{1024*T + 128*r}")
        self.lds_signal(vCNT, C_FREE)
        self.ts(7)

    def wof(self, late, j, ct):
        return 128 + ((late * 8 + j) * 2 + ct) * 4

    def kv_dma(self, groups):
        a = self.a
        for g in groups:
            a(f"""s_add_u32 m0, {s(sRem)}, {4096*g}
                  s_add_u32 {s(sT2)}, {s(sKVS)}, {4096*g}
                  s_cmp_lt_u32 {s(sRb)}, {4-g}
                  s_cselect_b32 {s(sT2)}, {WS_BYTES}, {s(sT2)}""")
            for o in (2048, 3072, 0, 1024):
                a.vmem(f"buffer_load_dwordx4 v2, {s(sWS,4)}, {s(sT2)} offen offset:{o} sc1 lds", f"r{2*g + (o >> 11)}")

    def b_start(self):
        a = self.a
        a.lg = []
        a(f"ds_read_b128 {v(vQ,4)}, v14")
        Ls = a.newlabel()
        a.vm_all()
        a(f"""s_cmp_eq_u32 {s(sRb)}, 0
              s_cbranch_scc1 {Ls}""")
        self.poll(39, s(sKVF), 5, 0xff, first_done=True)
        a.label(Ls)
        self.ts(5)
        self.tm("p2", 2)
        self.kv_dma((3, 2))
        a(f"""s_lshl_b32 {s(sT2)}, {s(sI)}, 2
              v_add_u32 v5, {s(sT2)}, {v(vCNT)}""")
        self.tm("p2", 3)

    def attention(self, role):
        a = self.a
        a.lg = []
        B = role == "B"
        S = [16, 32]; O, P, Kf, Vf = vO, vP, [vKf, vKf + 4], [vVf, vVf + 8]
        HK = int(self.o.get("hook", 4))
        def kaddr(p):
            return (120, 0) if p == 0 else (121, 0) if p == 1 else (122, (8 - p) * 2048)
        def rdK(p):
            r, o = kaddr(p)
            a.lds(f"ds_read_b128 {v(Kf[p&1],4)}, {v(r)} offset:{o}", f"K{p}")
        def rdV(p):
            r, o = kaddr(p)
            if p == 0:
                a(f"s_mov_b64 exec, {s(sEx,2)}")
            else:
                a(f"""s_cmp_gt_u32 {s(sNt)}, {p}
                      s_cselect_b64 exec, {s(sEx,2)}, -1""")
            a.lds(f"ds_read_b128 {v(Vf[p&1],4)}, {v(r+3)} offset:{o}", f"V{p}")
            a.lds(f"ds_read_b128 {v(Vf[p&1]+4,4)}, {v(r+3)} offset:{o+512}", f"V{p}")
            a("s_mov_b64 exec, -1")
        def qk(p):
            c = v(vML, 16) if p == 0 else v(vMU, 16) if p == 8 else "0"
            a(f"v_mfma_f32_32x32x16_bf16 {v(S[p&1],16)}, {v(Kf[p&1],4)}, {v(vQ,4)}, {c}")
        def e(p, j): a(f"v_exp_f32 {v(S[p&1]+j)}, {v(S[p&1]+j)}")
        def c(p, q): a(f"v_cvt_pk_bf16_f32 {v(P+q)}, {v(S[p&1]+2*q)}, {v(S[p&1]+2*q+1)}")
        def pv(p, hf):
            cc = "0" if (p == 0 and hf == 0) else v(O, 16)
            a(f"v_mfma_f32_32x32x16_bf16 {v(O,16)}, {v(Vf[p&1]+4*hf,4)}, {v(P+4*hf,4)}, {cc}")
        def vmw(q):
            if not B: return
            t = "r0" if q == HK + 2 else f"r{8-q}"
            if t in a.vm: a.vm_wait(t)
        wq = list(range(8)) if B else []
        W0 = int(self.o.get("w0", 3))
        def wload():
            if not wq: return
            j = wq.pop(0)
            a(f"v_add_u32 v3, {4096*j}, v2")
            for late in range(2):
                for ct in range(2):
                    so = [sWoS, 40, 41, 42][2 * late + ct]
                    a.vmem(f"buffer_load_dwordx4 {v(self.wof(late,j,ct),4)}, v3, {s(sWS,4)}, {s(so)} offen sc1", "wf")
        rdK(0)
        a.lds("ds_read_b64 v[84:85], v15", "g")
        rdV(0)
        a.lg_wait("K0")
        qk(0)
        a.lg_wait("g")
        a(f"""v_add_f32 v84, v84, v85
              v_mul_f32 v84, {f2u(-LOG2E):#x}, v84
              v_exp_f32 v84, v84
              s_nop 0
              v_add_f32 v84, 1.0, v84""")
        for p in range(9):
            nx = p + 1 <= 8
            if p % 2 == 0: self.tm("p2", 6 + p // 2)
            if p == 0:
                for j in range(8):
                    e(0, j)
                    if j >= 3 and j & 1: c(0, (j - 3) // 2)
                if B:
                    self.kv_dma((1, 0))
                    vmw(1)
                else:
                    self.lds_spin(12, C_KVL, 1, 7)
                rdK(1); rdV(1)
                e(0, 8); c(0, 3); e(0, 9); e(0, 10)
                a.lg_wait("V0")
                pv(0, 0)
                e(0, 11); c(0, 4); e(0, 12)
                a.lg_wait("K1")
                qk(1)
                vmw(2)
                rdK(2)
                e(0, 13); c(0, 5); e(0, 14); e(0, 15); c(0, 6)
                continue
            e(p, 0)
            c(p - 1, 7)
            e(p, 1)
            e(p, 2)
            pv(p - 1, 1)
            e(p, 3); c(p, 0)
            if p > W0: wload()
            e(p, 4)
            if nx: rdV(p + 1)
            e(p, 5); c(p, 1)
            e(p, 6)
            if nx: a.lg_wait(f"K{p+1}")
            e(p, 7)
            if nx: qk(p + 1)
            c(p, 2)
            e(p, 8); c(p, 3)
            e(p, 9)
            if p + 2 <= 8:
                vmw(p + 2)
            e(p, 10)
            if p + 2 <= 8:
                rdK(p + 2)
            if f"V{p}" in a.lg: a.lg_wait(f"V{p}")
            e(p, 11)
            pv(p, 0)
            c(p, 4)
            e(p, 12)
            if p == HK and B:
                self.lds_signal(5, C_KVL)
            if p >= W0 and int(self.o.get("w2x", 1)): wload()
            e(p, 13); c(p, 5)
            e(p, 14)
            e(p, 15); c(p, 6)
        c(8, 7); pv(8, 1)
        while wq: wload()
        a.label(f"L_attn_fin{role}")
        a.lg = []
        a(f"""s_mov_b32 {s(sT4)}, {f2u(2.0**-30):#x}
              s_mov_b32 {s(sT5)}, {f2u(2.0**30):#x}
              s_waitcnt lgkmcnt(0)
              v_mul_f32 v85, v84, {v(O+8)}
              v_cmp_nle_f32 vcc, {s(sT4)}, {v(O+8)}
              v_cmp_nge_f32 {s(sT0,2)}, {s(sT5)}, {v(O+8)}
              v_rcp_f32 v86, v85
              s_or_b64 vcc, vcc, {s(sT0,2)}""")
        if self.o.get("force_slow"):
            a("s_mov_b64 vcc, -1")
        a(f"""s_cbranch_vccnz L_attn_slow""")
        a.label(f"L_attn_ok{role}")
        for q in range(8):
            a(f"v_mul_f32 {v(O+q)}, {v(O+q)}, v86")
        for q in range(4):
            a(f"v_cvt_pk_bf16_f32 {v(O+q)}, {v(O+2*q)}, {v(O+2*q+1)}")
        a.vmem(f"buffer_store_dwordx4 {v(O,4)}, v2, {s(sWS,4)}, {s(sOO)} offen sc1", "o")
        self.ts(10)

    def attn_slow(self):
        a = self.a
        S, ML, Kf, O, P = 16, 32, vKf, vO, vP
        sP, sM = sT2, sT3
        a.label("L_attn_slow")
        a(f"""s_cmp_lg_u32 {s(sRedo)}, 0
              s_cbranch_scc1 L_sl_ok
              s_mov_b32 {s(sRedo)}, 1
              s_mov_b32 {s(sM)}, 0
              s_mov_b32 {s(sT0)}, 0xf149f2ca
              v_mov_b32 v86, 0xff7fffff
              v_sub_u32 v87, v123, v120""")
        for r in range(16):
            a(f"v_xor_b32 {v(ML+r)}, {s(sT0)}, {v(vMU+r)}")
            a(f"v_mov_b32 {v(O+r)}, 0")
            a(f"v_mov_b32 {v(vVf+r)}, {s(sOne)}")
        a.label("L_sl_pass")
        a(f"s_mov_b32 {s(sP)}, 0")
        a.label("L_sl_tile")
        a(f"""s_sub_u32 {s(sT0)}, 8, {s(sP)}
              s_lshl_b32 {s(sT0)}, {s(sT0)}, 11
              v_add_u32 v3, {s(sT0)}, v122
              s_cmp_eq_u32 {s(sP)}, 1
              s_cselect_b64 vcc, -1, 0
              v_cndmask_b32 v3, v3, v121, vcc
              s_cmp_eq_u32 {s(sP)}, 0
              s_cselect_b64 vcc, -1, 0
              v_cndmask_b32 v3, v3, v120, vcc
              ds_read_b128 {v(Kf,4)}, v3
              v_add_u32 v3, v3, v87
              s_mov_b64 exec, {s(sEx,2)}
              ds_read_b128 {v(vVf,4)}, v3
              ds_read_b128 {v(vVf+4,4)}, v3 offset:512
              s_mov_b64 exec, -1
              s_waitcnt lgkmcnt(0)
              s_cbranch_scc1 L_sl_lo
              s_cmp_eq_u32 {s(sP)}, 8
              s_cbranch_scc1 L_sl_up
              v_mfma_f32_32x32x16_bf16 {v(S,16)}, {v(Kf,4)}, {v(vQ,4)}, 0
              s_branch L_sl_s""")
        a.label("L_sl_lo")
        a(f"""v_mfma_f32_32x32x16_bf16 {v(S,16)}, {v(Kf,4)}, {v(vQ,4)}, {v(ML,16)}
              s_branch L_sl_s""")
        a.label("L_sl_up")
        a(f"v_mfma_f32_32x32x16_bf16 {v(S,16)}, {v(Kf,4)}, {v(vQ,4)}, {v(vMU,16)}")
        a.label("L_sl_s")
        a(f"""s_cmp_lg_u32 {s(sM)}, 0
              s_cbranch_scc1 L_sl_pv""")
        for j in range(8):
            a(f"v_max3_f32 v86, v86, {v(S+2*j)}, {v(S+2*j+1)}")
        a("s_branch L_sl_next")
        a.label("L_sl_pv")
        for j in range(16):
            a(f"v_sub_f32 {v(S+j)}, {v(S+j)}, v86")
        for j in range(16):
            a(f"v_exp_f32 {v(S+j)}, {v(S+j)}")
        for q in range(8):
            a(f"v_cvt_pk_bf16_f32 {v(P+q)}, {v(S+2*q)}, {v(S+2*q+1)}")
        for hf in range(2):
            a(f"v_mfma_f32_32x32x16_bf16 {v(O,16)}, {v(vVf+4*hf,4)}, {v(P+4*hf,4)}, {v(O,16)}")
        a.label("L_sl_next")
        a(f"""s_add_u32 {s(sP)}, {s(sP)}, 1
              s_cmp_lt_u32 {s(sP)}, {s(sNt)}
              s_cbranch_scc1 L_sl_tile
              s_cmp_lg_u32 {s(sM)}, 0
              s_cbranch_scc1 L_sl_fin
              s_mov_b32 {s(sM)}, 1
              v_mov_b32 v85, v86
              v_permlane32_swap_b32 v85, v86
              v_max_f32 v86, v85, v86
              s_branch L_sl_pass""")
        for nm, tg in (("L_sl_ok", "L_attn_ok"), ("L_sl_fin", "L_attn_fin")):
            a.label(nm)
            a(f"""s_cmp_eq_u32 {s(sRole)}, 0
                  s_cbranch_scc1 {tg}A
                  s_branch {tg}B""")

    def p3(self):
        a = self.a
        acc = [16, 32]; OF = 48
        wof = self.wof
        SPL = int(self.o.get("split", 9))
        self.tm("p3", 1)
        self.lds_spin(vCNT, C_FREE, 4, 3)
        self.tm("p3", 2)
        self.ts(6)
        for k in range(4):
            a.lds(f"ds_read_b128 {v(16+4*k,4)}, v6 offset:{2048*(k>>1) + 16*(k&1)}", f"y{k>>1}")
            a.lds(f"ds_read_b128 {v(32+4*k,4)}, v7 offset:{2048*(k>>1) + 16*(k&1)}", f"y{k>>1}")
        for rd in range(2):
            a.lg_wait(f"y{rd}")
            for q in range(8):
                a(f"v_add_f32 {v(16+8*rd+q)}, {v(16+8*rd+q)}, {v(32+8*rd+q)}")
            for q in range(4):
                a(f"v_cvt_pk_bf16_f32 {v(vP+4*rd+q)}, {v(16+8*rd+2*q)}, {v(16+8*rd+2*q+1)}")
            a.vmem(f"buffer_store_dwordx4 {v(vP+4*rd,4)}, v2, {s(sWS,4)}, {s(sYO)} offen offset:{1024*rd} sc1", "ys")
        a(f"""s_lshl_b32 {s(sT1)}, {s(sI)}, 11
              s_add_u32 m0, {s(sT1)}, {QF}
              s_add_u32 {s(sT0)}, {s(sXS)}, {16384 - 1024}""")
        a.vmem(f"buffer_load_dwordx4 v4, {s(sX,4)}, {s(sXS)} offen lds", "xm")
        a.vmem(f"buffer_load_dwordx4 v4, {s(sX,4)}, {s(sT0)} offen offset:1024 lds", "xm")
        a(f"s_setprio {self.o.get('bprio', 2)}")
        vYT, vYS, vFA, vXR, vOO, vG = 120, 121, 122, 14, 123, 124
        sPend, sTodo, sProc = sNt, sXc, sWc
        a(f"""v_rcp_f32 {v(vG)}, v84
              v_mov_b32 {v(vYT)}, v8
              v_mov_b32 {v(vYS)}, v9
              v_mov_b32 {v(vFA)}, v10
              v_mov_b32 v112, v12
              v_mov_b32 {v(vXR)}, v13
              v_mov_b32 {v(vOO)}, v1
              v_mov_b32 v32, v11
              v_xor_b32 v33, 16, v11
              v_xor_b32 v34, 32, v11
              v_xor_b32 v35, 48, v11
              v_sub_f32 {v(vG)}, 1.0, {v(vG)}
              v_xor_b32 {v(vXR+1)}, 16, {v(vXR)}
              v_mov_b32 {v(vG+1)}, {v(vG)}
              v_mov_b32 v116, 0
              v_mov_b32 v117, 0
              v_mov_b32 v118, 0
              v_mov_b32 v119, 0""")
        a.vm_wait("o")
        self.flag_store(sOF, 4)
        self.tm("p3", 3)
        a(f"""s_add_u32 {s(sRedo)}, {s(sOt)}, 8192
              s_add_u32 {s(sYF2)}, {s(sYS)}, {0x10000 - 1024}
              s_mov_b32 {s(sPend)}, 7
              s_mov_b32 {s(sTodo)}, 0
              s_mov_b32 {s(sProc)}, 8""")
        a.vm_wait("ys")
        self.flag_store(sYF, 4)
        self.ts(7)
        self.tm("p3", 4)
        OFS = [48, 80]
        def o_loads(late):
            so = sLO if late else sEO
            for j in range(8):
                a(f"buffer_load_dwordx4 {v(OFS[late]+4*j,4)}, v2, {s(sWS,4)}, {s(so)} offen offset:{2048*(j&1)} sc1")
                if j & 1 and j < 7:
                    a(f"s_add_u32 {s(so)}, {s(so)}, 4096")
        def o_mm(late):
            for j in range(8):
                for ct in range(2):
                    a(f"v_mfma_f32_32x32x16_bf16 {v(acc[ct],16)}, {v(wof(late,j,ct),4)}, {v(OFS[late]+4*j,4)}, {v(acc[ct],16)}")
        a("s_branch L_pl_p")
        a.label("L_pl_w")
        a(f"""s_mov_b32 {s(sProc)}, {s(sTodo)}
              s_sub_u32 {s(sBud)}, {s(sBud)}, 8
              s_waitcnt vmcnt(0)
              v_cmp_ne_u32 vcc, {s(sTag)}, v5
              s_cmp_gt_i32 {s(sBud)}, 0
              s_cselect_b64 vcc, vcc, 0
              s_cmp_eq_u32 vcc_lo, 0
              s_cselect_b32 {s(sT0)}, 1, 0
              s_and_b32 {s(sT1)}, vcc_hi, 0xff
              s_cselect_b32 {s(sT1)}, 0, 2
              s_or_b32 {s(sT0)}, {s(sT0)}, {s(sT1)}
              s_and_b32 {s(sT1)}, vcc_hi, 0xff00
              s_cselect_b32 {s(sT1)}, 0, 4
              s_or_b32 {s(sT0)}, {s(sT0)}, {s(sT1)}
              s_and_b32 {s(sTodo)}, {s(sT0)}, {s(sPend)}
              s_cbranch_scc0 L_pl_p
              s_andn2_b32 {s(sPend)}, {s(sPend)}, {s(sTodo)}
              s_bitcmp1_b32 {s(sTodo)}, 2
              s_cbranch_scc0 L_pl_i1""")
        self.ts(9)
        self.tm("p3", 9)
        o_loads(1)
        a.label("L_pl_i1")
        a(f"""s_bitcmp1_b32 {s(sTodo)}, 1
              s_cbranch_scc0 L_pl_i0""")
        self.tm("p3", 8)
        o_loads(0)
        a.label("L_pl_i0")
        a(f"""s_bitcmp1_b32 {s(sTodo)}, 0
              s_cbranch_scc0 L_pl_p
              buffer_load_dwordx4 {v(vYS)}, {s(sWS,4)}, {s(sYS)} offen sc1 lds
              buffer_load_dwordx4 {v(vYS)}, {s(sWS,4)}, {s(sYF2)} offen offset:1024 sc1 lds""")
        self.tm("p3", 7)
        a.label("L_pl_p")
        a(f"""s_cmp_eq_u32 {s(sPend)}, 0
              s_cbranch_scc1 L_pl_q
              v_mov_b32 v5, 0
              s_bitcmp1_b32 {s(sPend)}, 0
              s_cselect_b32 exec_lo, -1, 0
              s_mov_b32 exec_hi, 0xffff
              buffer_atomic_or v5, {v(vFA)}, {s(sWS,4)}, 0 offen sc0 sc1
              s_mov_b64 exec, -1""")
        a.label("L_pl_q")
        a(f"""s_cmp_eq_u32 {s(sProc)}, 0
              s_cbranch_scc1 L_pl_n
              s_bitcmp1_b32 {s(sProc)}, 3
              s_cbranch_scc0 L_pl_p0""")
        self.tm("p3", 5)
        a("s_waitcnt vmcnt(3)")
        for q in range(4):
            a(f"ds_read_b64 {v(6+2*q,2)}, {v(32+q)}")
        Lx, Ly = a.newlabel("Lep"), a.newlabel("Leb")
        a(f"""s_or_b32 {s(sT0)}, s2, {s(sWave)}
              s_cmp_eq_u32 {s(sT0)}, 0
              s_cbranch_scc1 {Lx}""")
        a.label(Ly)
        keep = (a.lines, list(a.vm))
        a.lines = self.tail
        a.label(Lx)
        a(f"""v_and_b32 v3, 7, v0
              v_lshlrev_b32 v3, 3, v3
              v_bfe_u32 v4, v0, 3, 2
              v_lshl_add_u32 v3, v4, 7, v3
              v_lshrrev_b32 v4, 5, v0
              v_lshl_add_u32 v3, v4, 10, v3""")
        Le, Lf = a.newlabel("Lel"), a.newlabel("Lef")
        a.label(Le)
        for k in range(4):
            a(f"""s_mov_b32 {s(sT0)}, {FKV + 2048*k}
                  buffer_load_dword {v(16+k)}, v3, {s(sWS,4)}, {s(sT0)} offen sc1""")
        a(f"""s_waitcnt vmcnt(0)
              v_xor_b32 v16, {s(sTag)}, v16
              v_xor_b32 v17, {s(sTag)}, v17
              v_xor_b32 v18, {s(sTag)}, v18
              v_xor_b32 v19, {s(sTag)}, v19
              v_or3_b32 v16, v16, v17, v18
              v_or_b32 v16, v16, v19
              v_cmp_ne_u32 vcc, 0, v16
              s_cbranch_vccz {Lf}
              s_sub_u32 {s(sBud)}, {s(sBud)}, 8
              s_cmp_gt_i32 {s(sBud)}, 0
              s_cbranch_scc1 {Le}""")
        a.label(Lf)
        a(f"s_mov_b32 {s(sT0)}, 0")
        self.flag_store(sT0, 4)
        a(f"s_branch {Ly}")
        a.lines, a.vm = keep
        a("s_waitcnt lgkmcnt(0)")
        for ct in range(2):
            a(f"v_mfma_f32_32x32x16_bf16 {v(acc[ct],16)}, v[116:119], v[116:119], 0")
        self.ts(8)
        self.tm("p3", 6)
        a("s_branch L_pl_n")
        a.label("L_pl_p0")
        a(f"""s_bitcmp1_b32 {s(sProc)}, 0
              s_cbranch_scc0 L_pl_p1""")
        yt = [114, 116, 118, 120]
        for q in range(4):
            a(f"ds_read_b64_tr_b16 {v(yt[q],2)}, {v(vYT)} offset:{512*q}")
        for q in range(4):
            for d in range(2):
                xr, yr = 6 + 2 * q + d, yt[q] + d
                a(f"""v_lshlrev_b32 v0, 16, {v(xr)}
                      v_and_b32 v1, {s(sHi)}, {v(xr)}""")
                if d == 0: a(f"s_waitcnt lgkmcnt({3-q})")
                a(f"""v_pk_mul_f32 v[0:1], v[0:1], {v(vG,2)}
                      v_lshlrev_b32 v126, 16, {v(yr)}
                      v_and_b32 v127, {s(sHi)}, {v(yr)}
                      v_pk_fma_f32 {v(acc[0]+4*q+2*d,2)}, v[0:1], v[126:127], {v(acc[0]+4*q+2*d,2)}""")
        for q in range(1, 8):
            a(f"v_xor_b32 {v(112+q)}, {32*q}, v112")
        a.label("L_pl_p1")
        a(f"""s_bitcmp1_b32 {s(sProc)}, 1
              s_cbranch_scc0 L_pl_p2""")
        o_mm(0)
        a.label("L_pl_p2")
        a(f"""s_bitcmp1_b32 {s(sProc)}, 2
              s_cbranch_scc0 L_pl_n""")
        o_mm(1)
        a.label("L_pl_n")
        a(f"""s_cmp_lg_u32 {s(sPend)}, 0
              s_cbranch_scc1 L_pl_w
              s_cmp_eq_u32 {s(sTodo)}, 0
              s_cbranch_scc1 L_pl_x
              s_cmp_lg_u32 {s(sTodo)}, 4
              s_cbranch_scc1 L_pl_w""")
        for j in range(8):
            a(f"s_waitcnt vmcnt({7-j})")
            for ct in range(2):
                a(f"v_mfma_f32_32x32x16_bf16 {v(acc[ct],16)}, {v(wof(1,j,ct),4)}, {v(OFS[1]+4*j,4)}, {v(acc[ct],16)}")
        a.label("L_pl_x")
        self.tm("p3", 10)
        for ct in range(2):
            for q in range(4):
                a(f"ds_write_b128 {v(112+4*ct+q)}, {v(acc[ct]+4*q,4)}")
        a.lg_all()
        a("s_barrier")
        for rd in range(2):
            for src in range(2):
                for b in range(2):
                    a.lds(f"ds_read_b128 {v(48+16*rd+8*src+4*b,4)}, {v(vXR+b)} offset:{FXS*src + 2048*rd}", f"r{rd}")
        of = self.o.get("outflag", "")
        of = " " + of.replace("+", " ") if of else ""
        for rd in range(2):
            a.lg_wait(f"r{rd}")
            b = 48 + 16 * rd
            for q in range(0, 8, 2):
                a(f"v_pk_add_f32 {v(b+q,2)}, {v(b+q,2)}, {v(b+8+q,2)}")
            for q in range(4):
                a(f"v_cvt_pk_bf16_f32 {v(b+q)}, {v(b+2*q)}, {v(b+2*q+1)}")
            a(f"buffer_store_dwordx4 {v(b,4)}, {v(vOO)}, {s(sOUT,4)}, {s(sOt if rd == 0 else sRedo)} offen{of}")

    def dump_ts(self):
        a = self.a
        if self.o.get("padto") or (self.o.get("probe") and self.o["probe"][0] == self.role):
            self.o.setdefault("padto2", self.o.get("padto", 30))
            L = a.newlabel()
            a("s_waitcnt vmcnt(0)")
            if self.o.get("skew"):
                a("""v_mov_b32 v11, 0
                     v_mov_b32 v12, 0
                     s_mov_b64 exec, 1
                     global_load_dword v11, v12, s[96:97] sc1
                     s_waitcnt vmcnt(0)
                     v_readfirstlane_b32 s100, v11
                     s_not_b32 s100, s100""")
            a.label(L)
            a(f"""s_memrealtime s[4:5]
                  s_waitcnt lgkmcnt(0)
                  s_sub_u32 s4, s4, s100
                  s_cmp_lt_u32 s4, {int(self.o["padto2"])*100}
                  s_cbranch_scc1 {L}""")
        if not self.o.get("prof"):
            return
        a(f"""s_waitcnt vmcnt(0)
              s_memtime s[4:5]
              s_memrealtime s[6:7]
              s_waitcnt lgkmcnt(0)
              s_lshl_b32 {s(sT0)}, s2, 3
              s_add_u32 {s(sT0)}, {s(sT0)}, {s(sWave)}
              s_lshl_b32 {s(sT0)}, {s(sT0)}, 6
              s_add_u32 {s(sT0)}, {s(sT0)}, {DBG}
              v_mov_b32 v1, 0
              s_mov_b64 exec, 1""")
        for k in range(11):
            a(f"""v_mov_b32 v2, {s(sTS+2*k)}
                  buffer_store_dword v2, v1, {s(sWS,4)}, {s(sT0)} offen offset:{4*k}""")
        for k, r in ((11, 4), (12, 6), (13, sBud), (14, 26)):
            a(f"""v_mov_b32 v2, {s(r)}
                  buffer_store_dword v2, v1, {s(sWS,4)}, {s(sT0)} offen offset:{4*k}""")

    def build(self):
        a = self.a
        if self.o.get("padto") or self.o.get("probe"):
            a("s_memrealtime s[100:101]")
        self.prologue()
        self.role = "B"
        self.loader_phase1()
        self.b_start()
        self.attention("B")
        self.p3()
        self.dump_ts()
        a.label("L_end")
        a("s_endpgm")
        self.role = "A"
        self.compute_phase1()
        self.conv()
        self.attention("A")
        a.vm_all()
        self.flag_store(sOF, 4)
        self.dump_ts()
        a("s_endpgm")
        a.lines += self.tail
        self.attn_slow()
        a.label("L_codeend")
        i0, i1 = a.lines.index("L_compute:"), a.lines.index("@AEND@:")
        blk = a.lines[i0:i1]
        a.lines = a.lines[:i0] + a.lines[i1+1:]
        k = a.lines.index("@ASTART@:")
        a.lines = a.lines[:k] + blk + a.lines[k+1:]
        body = pad(a.lines, verbose=True)
        hdr = open("cdna_kernels/" + NAME + ".s.ref").read().split("\n")
        head = [l for l in hdr if l.startswith(";") and "@launch" not in l and "Override" not in l and "grid=ceil" not in l]
        out = head + [f"; @launch grid=(256,1,1) block=(512,1,1) lds={LDS_BYTES}",
                      '.amdgcn_target "amdgcn-amd-amdhsa--gfx950"', ".text", f".globl {NAME}_kernel", ".p2align 12" if not self.o.get("noal") else ".p2align 8",
                      f".type {NAME}_kernel,@function", f"{NAME}_kernel:"] + body + [
            '.section .rodata,"a"', ".p2align 6", f".amdhsa_kernel {NAME}_kernel",
            "  .amdhsa_next_free_vgpr 256", "  .amdhsa_next_free_sgpr 102", "  .amdhsa_accum_offset 256",
            "  .amdhsa_group_segment_fixed_size 0", "  .amdhsa_kernarg_size 104", "  .amdhsa_user_sgpr_count 2",
            "  .amdhsa_user_sgpr_kernarg_segment_ptr 1", "  .amdhsa_system_sgpr_workgroup_id_x 1",
            ".end_amdhsa_kernel", ""]
        txt = "\n".join(out)
        tab = [".p2align 8", ".type L_tab,@object", "L_tab:"]
        def longs(vals):
            for k in range(0, len(vals), 16):
                tab.append(".long " + ",".join(str(x) if x < 100000 else hex(x) for x in vals[k:k+16]))
        for w in range(8):
            st = self.stB if w < 4 else self.stA
            longs([c[w & 3] for c in st.wc] + [0] * (16 - len(st.wc)))
        tab.append(f".zero {T_PB - 512}")
        for st in (self.stB, self.stA):
            longs(st.data())
            tab.append(f".zero {8192 - 1024 * st.nq()}")
        for wg in range(256):
            for w in range(4):
                t = wg_table(wg, w)
                longs(t)
                tab.append(f".zero {128 - 4 * len(t)}")
        txt += "\n".join(tab) + "\n"
        print("patterns A/B:", len(self.stA.pat), len(self.stB.pat), "wave consts", len(self.stA.wc), len(self.stB.wc))
        return txt

if __name__ == "__main__":
    opt = {}
    outp = "cdna_kernels/" + NAME + ".s"
    for arg in sys.argv[1:]:
        if arg.startswith("-o"):
            outp = arg[2:]
        elif "=" in arg:
            k, val = arg.split("=", 1)
            opt[k] = val
        else:
            opt[arg] = True
    txt = Gen(opt).build()
    open(outp, "w").write(txt)
    print("wrote", outp, len(txt.split("\n")), "lines")
```

```python
import sys, struct
from asmlib import *

NAME = "gated_mix__sliding_block__ssm_conv_h3__prompt"

LB = 65536
QF = 81920
EX0 = 90112
KC = 98304
KCS = 4224
PY = 115200
RR = 131584
RS = 4576
EX1 = 150016
GW = 158208
GP = 159232
SW = 159744
CNT = 160256
XM = 160000 - 160000 % 256 + 256
LDS_BYTES = 163840
C_KVL, C_PART, C_FREE, C_WO, C_CONV, C_RD2 = 0, 16, 32, 36, 40, 44
WOB = EX0
YXB = LB + 16384
XXB = 155648
FX = KC
FXS = RR - KC

FKV, FO, FY, FU = 0x2000, 0x4000, 0x8000, 0x1000
def fidx(n): return (n >> 4) * 128 + (n & 15) * 4
UG, KVG, YG, OG, DBG = 0x100000, 0x300000, 0x700000, 0x900000, 0xC00000
WFG = 0xB00000
for _a in sys.argv:
    if _a.startswith("kvoff="): KVG = int(_a[6:], 0)
HQX = 3
for _a in sys.argv:
    if _a.startswith('hqx='): HQX = int(_a[4:])
WS_BYTES = 0x2000000
TAGC = 0x9E3779B9

sX, sW, sWO, sK, sV, sSK, sWS, sOUT = 32, 36, 40, 44, 48, 52, 56, 60
sWave, sRb, sHq, sRot, sTB, sTag, sI, sI4096, sBud, sHi = 64, 65, 66, 67, 68, 70, 71, 72, 73, 3
sT0, sT1, sT2, sT3, sT4, sT5 = 74, 75, 76, 77, 78, 79
sRole, sRedo, sOne = 31, 30, 27
sEx = 0
sOO, sOF, sNt = 4, 5, 6
sU0, sUF, sKO, sKO2, sKF = 7, 8, 9, 10, 11
sUS, sTs, sK4, sYO, sYF, sXS, sYS, sYF2, sOt, sEF, sEO, sKVF, sKVS, sWoS, sKt0 = 7, 9, 10, 11, 12, 13, 14, 15, 16, 17, 18, 19, 20, 21, 22
sD, sQFw, sPw, sKVLw = 32, 33, 34, 35
sTw = 23
sXc, sWc, sUbad, sRem, sKm, sWq1, sLO = 24, 25, 23, 44, 45, 46, 47
sWT = 80
sTS = 80
sFLS = [24, 13, 32, 33, 34, 35, 48, 49, 50]

def wg_decode(wg):
    xcd, loc = wg & 7, wg >> 3
    rb = 8 * (xcd >> 1) + (loc & 7); hq = (4 * (xcd & 1) + (loc >> 3)) ^ HQX
    return rb, hq, 32 * xcd + loc

def wg_table(wg, w):
    rb, hq, cp = wg_decode(wg)
    i = w & 3
    qt = (i & 1) if w < 4 else (i & 1) ^ 1
    tt = 2 * rb + qt
    t = [OG + (tt * 32 + 4 * hq + i) * 1024, FO + fidx(tt * 32 + 4 * hq + i), min(tt + 1, 9)]
    if w >= 4:
        rt, ct = i >> 1, i & 1
        g16 = 4 * hq + i
        pair, kt = 2 * hq + ct, 2 * rb + rt
        ko = KVG + (pair * 128 + kt) * 2048
        t += [UG + g16 * 65536 + (248 - 8 * rb) * 64, FU + (g16 * 32 + rb) * 128, ko, ko + 0x20000, FKV + (pair * 64 + kt) * 128]
    else:
        kh, rt = i >> 1, i & 1
        ch = 2 * cp + kh
        cb = 2 * hq + kh
        e = tt * 32 + 16 * kh + rt
        t += [UG + (cp >> 1) * 16384 + (cp & 1) * 32 + i * 4096,
              FU + (cp >> 3) * 128 + max(23 - 8 * i, 0) * 4,
              cp * 8192, ch * 4096 + 4 * rt + 4,
              YG + ch * 4096 + rt * 2048, FY + fidx(rt * 512 + ch),
              tt * 32768 + cb * 64,
              YG + cb * 131072 + tt * 64,
              FY + fidx((rb >> 4) * 512 + cb * 32),
              tt * 32768 + kh * 16384 + hq * 128,
              FO + fidx(e), OG + e * 1024,
              FKV + cb * 512,
              KVG + ((4 * hq + i) * 64 + 2 * rb - 8) * 2048,
              WFG + hq * 65536 + (16 * kh + rt) * 2048 + kh * 1024,
              (2 * rb - 8) & 0xffffffff,
              FU + hq * 512 + kh * 64 - 64]
    return t

class Setup:
    def __init__(self, tbase):
        self.pat = []; self.wc = []; self.ops = []; self.tbase = tbase
    def p(self, f):
        vals = [f(l) & 0xffffffff for l in range(64)]
        if vals not in self.pat: self.pat.append(vals)
        return self.tbase + self.pat.index(vals)
    def w(self, f):
        vals = [f(i) & 0xffffffff for i in range(4)]
        if vals not in self.wc: self.wc.append(vals)
        assert len(self.wc) <= 16
        return sWT + self.wc.index(vals)
    def add(self, d, pf, wf): self.ops.append(f"v_add_u32 {v(d)}, {s(self.w(wf))}, {v(self.p(pf))}")
    def xor(self, d, pf, wf): self.ops.append(f"v_xor_b32 {v(d)}, {s(self.w(wf))}, {v(self.p(pf))}")
    def mov(self, d, pf): self.ops.append(f"v_mov_b32 {v(d)}, {v(self.p(pf))}")
    def keep(self, d, wf): self.ops.append(f"s_mov_b32 {s(d)}, {s(self.w(wf))}")
    def raw(self, t): self.ops += [x.strip() for x in t.split("\n")]
    def nq(self): return (len(self.pat) + 3) // 4
    def data(self):
        pat = self.pat + [[0] * 64] * (4 * self.nq() - len(self.pat))
        return [pat[4 * q + c][l] for q in range(self.nq()) for l in range(64) for c in range(4)]
    def attn(self, qt):
        l16 = lambda l: l * 16
        vl = lambda l: 1024 + (l >> 5) * 256 + (l & 15) * 16
        pos = [lambda i: LB + i * 4096 + qt(i) * 2048,
               lambda i: LB + i * 4096 if qt(i) else i * 16384 + 7 * 2048,
               lambda i: i * 16384 + qt(i) * 2048]
        self.add(14, l16, lambda i: QF + (2 * i + qt(i)) * 1024)
        self.add(15, lambda l: (l & 31) * 8, lambda i: GP + qt(i) * 256)
        for k in range(3):
            self.add(120 + k, l16, pos[k]); self.add(123 + k, vl, pos[k])
        self.raw(f"""s_mov_b32 {s(sRedo)}, 0
                     s_mov_b32 {s(sOne)}, 0x3f803f80
                     s_mov_b32 {s(sEx)}, 0xffff
                     s_mov_b32 {s(sEx+1)}, 0xffff
                     s_mov_b32 {s(sBud)}, 0x40000
                     s_mov_b32 {s(sHi)}, 0xffff0000
                     v_mov_b32 {v(126)}, {CNT}
                     v_mov_b32 {v(127)}, 1""")

T_WAVE, T_PB, T_PA, T_WG = 0, 1024, 1024 + 8192, 1024 + 16384
NQ = 5

LOG2E = 1.4426950408889634

def f2u(x):
    return struct.unpack("<I", struct.pack("<f", x))[0]

vO, vVf, vQ, vP, vKf, vMU = 48, 64, 80, 88, 96, 104
vML = vO
vKA, vUA, vQA, vGA, vDF = 84, 85, 86, 87, 116
vAK, vAV, vCNT, vONE = 120, 123, 126, 127

class Gen:
    def __init__(self, opt):
        self.o = opt
        self.a = Asm()
        self.tail = []
        self.role = "*"

    def tss(self, st, pre):
        m = self.o.get("prof")
        if isinstance(m, str) and m.startswith("pre" if pre else "post"):
            base = int(m[3:] if pre else m[4:])
            if 0 <= st - base < 10:
                self.a(f"s_memtime {s(sTS + 2 * (st - base + 1), 2)}")

    def tm(self, mode, k):
        if self.o.get("prof") == mode:
            self.a(f"s_memtime {s(sTS + 2 * k, 2)}")

    def ts(self, k):
        pr = self.o.get("probe")
        if pr and int(pr[1:]) == k and (self.role == pr[0] or self.role == "*"):
            self.a("s_memrealtime s[100:101]")
        if self.o.get("prof") is True or (self.o.get("prof") and k == 0):
            self.a(f"s_memtime {s(sTS + 2 * k, 2)}")

    def lds_spin(self, vaddr, off, target, vt):
        a = self.a
        L, D = a.newlabel("Lsp"), a.newlabel("Lsd")
        a.label(L)
        a(f"""ds_read_b32 {v(vt)}, {v(vaddr)} offset:{off}
              s_waitcnt lgkmcnt(0)
              v_readfirstlane_b32 {s(sT5)}, {v(vt)}
              s_cmp_ge_u32 {s(sT5)}, {target}
              s_cbranch_scc1 {D}
              s_sleep 1
              s_sub_u32 {s(sBud)}, {s(sBud)}, 1
              s_cmp_gt_i32 {s(sBud)}, 0
              s_cbranch_scc1 {L}""")
        a.label(D)
        a.lg = []

    def lds_signal(self, vaddr, off):
        a = self.a
        a(f"""s_mov_b64 exec, 1
              ds_add_u32 {v(vaddr)}, {v(vONE)} offset:{off}
              s_mov_b64 exec, -1""")
        a.lg.append("sig")

    def look(self, vt, voff, soff, mask):
        return f"""v_mov_b32 {v(vt)}, {s(sTag)}
                   s_mov_b64 exec, {mask}
                   v_mov_b32 {v(vt)}, 0
                   buffer_atomic_or {v(vt)}, {v(voff)}, {s(sWS,4)}, {soff} offen sc0 sc1
                   s_mov_b64 exec, -1"""

    def poll(self, voff, soff, vt, mask, first_done=False):
        a = self.a
        L, C, D = a.newlabel("Lpl"), a.newlabel("Lpc"), a.newlabel("Lpd")
        if first_done:
            a(f"s_branch {C}")
        a.label(L)
        a(self.look(vt, voff, soff, mask))
        a("s_waitcnt vmcnt(0)")
        a.label(C)
        a(f"""v_cmp_ne_u32 vcc, {s(sTag)}, {v(vt)}
              s_cbranch_vccz {D}
              s_sleep {int(self.o.get("sleep", 1))}
              s_sub_u32 {s(sBud)}, {s(sBud)}, 8
              s_cmp_gt_i32 {s(sBud)}, 0
              s_cbranch_scc1 {L}""")
        a.label(D)
        if not first_done:
            a.vm = []

    def flag_store(self, soff, vt):
        a = self.a
        a(f"""v_mov_b32 {v(vt)}, {s(sTag)}
              s_mov_b64 exec, 1""")
        a.vmem(f"buffer_atomic_swap {v(vt)}, off, {s(sWS,4)}, {s(soff)} sc1", "flag")
        a("s_mov_b64 exec, -1")

    def srd_const(self, d, size):
        self.a(f"""s_mov_b32 {s(d+2)}, {size}
                   s_mov_b32 {s(d+3)}, 0x20000""")

    def srd_ptr(self, d, p):
        self.a(f"s_mov_b64 {s(d,2)}, {s(p,2)}")

    def prologue(self):
        a = self.a
        a(f"""s_load_dwordx16 s[4:19], s[0:1], 0
              s_load_dwordx8 s[20:27], s[0:1], 64
              s_load_dwordx2 s[28:29], s[0:1], 96
              s_cmp_ge_u32 s2, 256
              s_cbranch_scc1 L_end""")
        if self.o.get("prof"):
            a("s_memtime s[96:97]\ns_memrealtime s[98:99]")
        a(f"""v_lshrrev_b32 v1, 6, v0
              v_and_b32 v0, 63, v0
              v_readfirstlane_b32 {s(sWave)}, v1
              s_getpc_b64 {s(sTB,2)}
              s_add_u32 {s(sTB)}, {s(sTB)}, L_tab@rel32@lo+4
              s_addc_u32 {s(sTB+1)}, {s(sTB+1)}, L_tab@rel32@hi+12
              s_cmp_lt_u32 {s(sWave)}, 4
              s_cbranch_scc1 L_loader
              v_lshlrev_b32 v2, 4, v0
              v_add_u32 v1, {T_PA + 4096}, v2""")
        for q in range(NQ):
            a(f"global_load_dwordx4 {v(128+4*q,4)}, v1, {s(sTB,2)} offset:{1024*q - 4096}")
        if not self.o.get("notb"):
            a(f"""v_lshlrev_b32 v3, 7, v0
                  s_lshl_b32 {s(sT0)}, s2, 9
                  s_add_u32 {s(sT0)}, {s(sT0)}, {T_WG - 48 * 128}
                  v_add_u32 v4, {s(sT0)}, v3
                  s_lshl_b64 vcc, 15, 48
                  v_cndmask_b32 v3, v3, v4, vcc
                  s_lshl_b64 exec, 0x1fff, 39
                  s_or_b32 exec_hi, exec_hi, 0xff
                  s_mov_b32 exec_lo, -1
                  s_bitcmp1_b32 {s(sWave)}, 0
                  s_cselect_b64 exec, 1, exec
                  global_load_dword v255, v3, {s(sTB,2)}
                  s_mov_b64 exec, -1""")
        if (not self.o.get("nocw")):
            a(f"""s_bfe_u32 {s(sT0)}, s2, 0x30003
                  s_mul_i32 {s(sT0)}, {s(sT0)}, {24*128}
                  v_lshlrev_b32 v3, 7, v0
                  v_add_u32 v3, {s(sT0)}, v3
                  v_min_u32 v3, @CODEMAX@, v3
                  s_getpc_b64 {s(sT2,2)}
                  s_and_b32 {s(sT2)}, {s(sT2)}, 0xffffff00
                  s_cmp_eq_u32 {s(sWave)}, 5
                  s_cselect_b64 exec, 0xffffff, 1
                  global_load_dword v255, v3, {s(sT2,2)}
                  s_mov_b64 exec, -1""")
        if not self.o.get("lateA"):
            self.scalar_tables()
        a("s_branch L_compute")
        a.label("L_loader")

    def decode(self):
        self.a(f"""s_bfe_u32 {s(sRb)}, s2, 0x20001                ; xcd >> 1
              s_bfe_u32 {s(sT2)}, s2, 0x30003                ; local & 7
              s_lshl3_add_u32 {s(sRb)}, {s(sRb)}, {s(sT2)}
              s_and_b32 {s(sHq)}, s2, 1
              s_lshr_b32 {s(sT2)}, s2, 6
              s_lshl2_add_u32 {s(sHq)}, {s(sHq)}, {s(sT2)}
              {"s_xor_b32 %s, %s, %d" % (s(sHq), s(sHq), HQX) if HQX else ""}
              s_lshl1_add_u32 {s(sRot)}, {s(sHq)}, {s(sRb)}
              s_and_b32 {s(sRot)}, {s(sRot)}, 7
              s_and_b32 {s(sI)}, {s(sWave)}, 3""")

    def scalar_tables(self):
        self.a(f"""s_lshl_b32 {s(sT0)}, {s(sWave)}, 6
              s_load_dwordx16 {s(sWT,16)}, {s(sTB,2)}, {s(sT0)}""")

    def setup_done(self):
        if self.o.get("prof"):
            self.a(f"s_mov_b32 {s(sTS)}, s96\ns_mov_b32 s26, s98")
            for k in range(1, 11):
                self.a(f"s_mov_b32 {s(sTS+2*k)}, 0")

    def mask_ops(self, vn, vz):
        out = [[f"v_mov_b32 {v(vn)}, 0xf149f2ca", f"v_mov_b32 {v(vz)}, 0"]]
        for r in range(16):
            jj = (r & 3) + 8 * (r >> 2)
            out.append([f"s_lshl_b32 vcc_lo, -1, {jj}", f"s_lshl_b32 vcc_hi, -1, {jj+4}",
                        f"v_cndmask_b32 {v(vML+r)}, {v(vn)}, {v(vz)}, vcc",
                        f"v_cndmask_b32 {v(vMU+r)}, {v(vz)}, {v(vn)}, vcc"])
        return out

    def const_ops(self):
        out = []
        for r in range(16):
            out.append([f"v_mov_b32 {v(vVf+r)}, {s(sOne)}"])
        return out

    def u_reads(self, j):
        a = self.a
        kq, vq = 200 + 10 * j, 206 + 10 * j
        if j == 1:
            a("v_xor_b32 v192, 16, v192\nv_xor_b32 v193, 16, v193")
        a.lds(f"ds_read_b64_tr_b16 {v(kq,2)}, v192 offset:512", f"u{j}")
        a.lds(f"ds_read_b64_tr_b16 {v(kq+2,2)}, v193 offset:1024", f"u{j}")
        a.lds(f"ds_read_b64_tr_b16 {v(kq+4,2)}, v193 offset:1536", f"u{j}")
        a.lds(f"ds_read_b64_tr_b16 {v(vq,2)}, v192 offset:9216", f"u{j}")
        a.lds(f"ds_read_b64_tr_b16 {v(vq+2,2)}, v192 offset:9728", f"u{j}")

    def u_math(self, j):
        a = self.a
        kq, vq, sw, kx, ks, vf, pk = 200 + 10 * j, 206 + 10 * j, 196 + 2 * j, 220, 226, 234, 244 + 4 * j
        a.lg_wait(f"u{j}")
        a(f"""v_alignbit_b32 {v(sw)}, {v(sw)}, {v(sw)}, 16
              v_alignbit_b32 {v(sw+1)}, {v(sw+1)}, {v(sw+1)}, 16""")
        for q in range(5):
            a(f"v_alignbit_b32 {v(kx+q)}, {v(kq+q+1)}, {v(kq+q)}, 16")
        def lo(t): return kq + (t + 1) // 2 if t & 1 else kx + t // 2
        def hi(t): return kq + (t + 3) // 2 if t & 1 else kx + (t + 2) // 2
        order = [1, 3, 5, 7, 0, 2, 4, 6]
        for t in order:
            a(f"v_dot2_f32_bf16 {v(ks+t)}, {v(lo(t))}, {v(sw+1)}, 0")
        for t in order:
            a(f"v_dot2_f32_bf16 {v(ks+t)}, {v(hi(t))}, {v(sw)}, {v(ks+t)}")
        for t in range(8):
            src = vq + (t >> 1)
            if t & 1: a(f"v_and_b32 {v(vf+t)}, {s(sHi)}, {v(src)}")
            else:     a(f"v_lshlrev_b32 {v(vf+t)}, 16, {v(src)}")
        for t in range(0, 8, 2):
            a(f"v_pk_mul_f32 {v(ks+t,2)}, {v(ks+t,2)}, {v(vf+t,2)}")
        for q in range(4):
            a(f"v_cvt_pk_bf16_f32 {v(pk+q)}, {v(ks+7-2*q)}, {v(ks+6-2*q)}")
        if j == 1:
            a(f"s_add_u32 {s(sU0)}, {s(sU0)}, 0x8000")
        a.vmem(f"buffer_store_dwordx4 {v(pk,4)}, v194, {s(sWS,4)}, {s(sU0)} offen sc1", "ust")

    def loader_phase1(self):
        a = self.a
        vXa, vXb, vWa, vWb, vKVo, vK0 = 16, 17, 18, 19, 20, 21
        vHd, vHa, vUo, vFo, vRa, vFu, vKc = 22, 23, 24, 25, 26, 27, 28
        a.vm = []; a.lg = []
        ldf = " nt" if self.o.get("ntkv") else ""
        ldx = " nt" if self.o.get("ntx") else ""
        ldw = " nt" if self.o.get("ntw") else ""
        st = self.stB = Setup(128)
        kh = lambda i: i >> 1
        rt = lambda i: i & 1
        l16 = lambda l: l * 16
        st.attn(rt)
        st.mov(2, l16)
        st.mov(28, lambda l: ((((l >> 4) & 1) + (l & 15) - 15) * 4) | ((l >> 5) << 12))
        st.mov(vHa, lambda l: KC + (l >> 4) * KCS + (l & 15) * 4)
        st.add(31, l16, lambda i: RR + 4096 + i * RS)
        st.add(vRa, lambda l: RR + (l & 1) * 2 * RS + (l >> 1) * 16, lambda i: i * 1024)
        st.mov(vUo, lambda l: (l >> 1) * 64 + (l & 1) * 16)
        st.mov(4, lambda l: (l >> 2) * 1024 + (((l >> 4) ^ l) & 3) * 16)
        st.add(11, lambda l: QF + (l & 31) * 64 + ((l >> 2) & 3) * 16 + (l >> 5) * 8, lambda i: i * 2048)
        ex = lambda i: (EX1 if kh(i) else EX0)
        st.add(6, lambda l: l * 32, lambda i: ex(i) + rt(i) * 4096)
        st.add(7, lambda l: l * 32, lambda i: PY + i * 4096)
        trc = lambda l: (l & 3) * 8 + ((l >> 4) & 1) * 32
        trr = lambda l: 4 * (l >> 5) + ((l >> 2) & 3)
        st.add(8, lambda l: QF + trr(l) * 64 + trc(l), lambda i: i * 2048)
        st.mov(9, lambda l: (l >> 2) * 4096 + (l & 3) * 16)
        st.mov(10, lambda l: fidx(l) if l < 32 else (l & 7) * 8 + ((l >> 3) & 1) * 4)
        st.add(12, lambda l: (l & 31) * 256 + (((l >> 5) ^ l) & 7) * 16, lambda i: FX + rt(i) * 8192 + kh(i) * (FXS + 128))
        st.add(13, lambda l: (l >> 3) * 256 + ((2 * (l & 7)) ^ (l >> 3)) * 16, lambda i: FX + rt(i) * 8192 + kh(i) * 4096)
        st.mov(1, lambda l: (l >> 3) * 1024 + (l & 7) * 16)
        st.keep(sKm, lambda i: KC + 64 + i * KCS)
        a("s_setprio 3")
        self.decode()
        a(f"""v_lshrrev_b32 v2, 3, v0            ; r
              v_and_b32 v3, 7, v0                ; c'
              v_lshrrev_b32 v4, 4, v0            ; r>>1
              v_and_b32 v5, 1, v4                ; (r>>1)&1
              s_lshl_b32 {s(sT0)}, {s(sI)}, 3
              v_add_u32 v6, {s(sT0)}, v2         ; 8i + r
              s_lshl_b32 {s(sT1)}, {s(sI)}, 1
              v_add_u32 v7, {s(sT1)}, v5
              v_xor_b32 v7, v7, v3
              v_lshlrev_b32 v7, 4, v7
              v_lshl_add_u32 {v(vKVo)}, v6, 10, v7
              s_lshl_b32 {s(sT2)}, {s(sRb)}, 16
              s_lshl_b32 {s(sT5)}, {s(sHq)}, 7
              s_add_u32 {s(sT2)}, {s(sT2)}, {s(sT5)}
              s_add_u32 {s(sT3)}, {s(sI)}, 1                 ; k rows sit one piece further in the staging area
              s_xor_b32 {s(sT3)}, {s(sT3)}, {s(sI)}
              s_and_b32 {s(sT3)}, {s(sT3)}, 3
              s_lshl_b32 {s(sT3)}, {s(sT3)}, 5
              v_xor_b32 {v(vK0)}, {s(sT3)}, {v(vKVo)}
              s_lshr_b32 {s(sT3)}, {s(sI)}, 1
              v_xor_b32 v8, {s(sT3)}, v0
              v_lshlrev_b32 v8, 4, v8
              s_lshl_b32 {s(sT3)}, {s(sI)}, 10
              s_add_u32 {s(sT3)}, {s(sT3)}, {s(sT2)}
              s_sub_u32 {s(sT3)}, {s(sT3)}, 0x1000
              v_add_u32 v8, {s(sT3)}, v8
              s_lshl2_add_u32 {s(sT3)}, {s(sHq)}, {s(sI)}
              s_lshl_b32 {s(sT3)}, {s(sT3)}, 7
              v_lshlrev_b32 v9, 4, v0
              v_add_u32 v9, {s(sT3)}, v9
              s_add_u32 {s(sT3)}, {s(sT1)}, {s(sRot)}
              v_add_u32 v10, {s(sT3)}, v2
              v_and_b32 v10, 7, v10
              v_lshlrev_b32 v10, 7, v10
              v_lshl_add_u32 v10, v3, 4, v10
              v_lshlrev_b32 v11, 2, v5
              v_xor_b32 v11, v11, v3
              v_lshlrev_b32 v11, 4, v11
              v_lshl_add_u32 v11, v2, 10, v11
              s_lshl2_add_u32 {s(sT3)}, {s(sRb)}, {s(sI)}
              s_lshl_b32 {s(sT3)}, {s(sT3)}, 12
              s_add_u32 {s(sT3)}, {s(sT3)}, {s(sT5)}
              v_add_u32 v11, {s(sT3)}, v11
              v_add_u32 v6, {s(sT0)}, v6         ; 16i + r
              v_xor_b32 v7, v4, v3
              v_lshlrev_b32 v7, 4, v7
              v_lshl_add_u32 {v(vXa)}, v6, 10, v7
              v_xor_b32 {v(vXb)}, 64, {v(vXa)}
              v_add_u32 {v(vXb)}, 7168, {v(vXb)}
              v_lshlrev_b32 v7, 2, v5
              v_xor_b32 v7, v7, v3
              v_lshlrev_b32 v7, 4, v7
              v_mul_u32_u24 {v(vWa)}, 0xc00, v6
              v_add_u32 {v(vWa)}, {v(vWa)}, v7
              v_add_u32 {v(vWb)}, 23552, {v(vWa)}
              s_lshl_b32 {s(sI4096)}, {s(sI)}, 12
              s_lshl_b32 {s(sT1)}, {s(sI)}, 10
              s_lshl_b32 {s(sT3)}, {s(sI)}, 7
              s_add_u32 {s(sT4)}, {s(sT2)}, 0x8000""")
        self.srd_const(sK, 0x200000); self.srd_const(sV, 0x200000)
        self.srd_const(sX, 0x200000); self.srd_const(sW, 0x180000 + 2048); self.srd_const(sOUT, 0x200000)
        a(f"""s_add_u32 m0, {s(sT3)}, {SW}
              s_mov_b64 exec, 0xff
              s_waitcnt lgkmcnt(0)""")
        a.vmem("global_load_lds_dwordx4 v9, s[16:17]", "kv")
        a(f"s_add_u32 m0, {s(sT3)}, {RR + 512}")
        self.srd_ptr(sK, 12)
        a.vmem(f"buffer_load_dwordx4 v8, {s(sK,4)}, 0 offen{ldf} lds", "kv")
        a(f"""s_lshl2_add_u32 m0, {s(sT3)}, {EX1}
              s_mov_b32 exec_lo, -1""")
        a.vmem("global_load_lds_dwordx4 v11, s[8:9]", "kv")
        a(f"""s_mov_b64 exec, -1
              s_add_u32 m0, {s(sT1)}, {RR + 1024}""")
        self.srd_ptr(sV, 14)
        a.vmem(f"buffer_load_dwordx4 {v(vK0)}, {s(sK,4)}, {s(sT2)} offen{ldf} lds", "kv")
        a(f"s_add_u32 m0, {s(sT1)}, {RR + 1024 + 4096}")
        self.srd_ptr(sX, 4)
        a.vmem(f"buffer_load_dwordx4 {v(vK0)}, {s(sK,4)}, {s(sT4)} offen{ldf} lds", "kv")
        a(f"""s_add_u32 m0, {s(sT1)}, {RR + 9216}
              s_lshl_b32 {s(sT3)}, {s(sT3)}, 1""")
        a.vmem(f"buffer_load_dwordx4 {v(vKVo)}, {s(sV,4)}, {s(sT2)} offen{ldf} lds", "kv")
        a(f"""s_add_u32 m0, {s(sT1)}, {RR + 9216 + 4096}
              s_nop 0""")
        a.vmem(f"buffer_load_dwordx4 {v(vKVo)}, {s(sV,4)}, {s(sT4)} offen{ldf} lds", "kv")
        a(f"""s_add_u32 m0, {s(sT3)}, {GW}
              s_mov_b64 exec, 0xffff""")
        a.vmem("global_load_lds_dwordx4 v10, s[22:23]", "st0")
        a(f"""s_mov_b64 exec, -1
              s_sub_u32 {s(sW)}, s6, 2048""")
        self.srd_ptr(sOUT, 24)
        a(f"""s_subb_u32 {s(sW+1)}, s7, 0
              s_lshl_b32 {s(sXc)}, {s(sRot)}, 7
              s_lshl_b32 {s(sT0)}, {s(sRb)}, 16
              s_add_u32 {s(sXc)}, {s(sXc)}, {s(sT0)}
              s_mul_i32 {s(sWc)}, {s(sRot)}, 0x30000
              s_add_u32 {s(sWc)}, {s(sWc)}, {s(sT5)}
              s_add_u32 {s(sWc)}, {s(sWc)}, 1024""")

        def adv_w():
            a(f"""s_add_u32 {s(sWc)}, {s(sWc)}, 0x30000
                  s_sub_u32 {s(sT0)}, {s(sWc)}, 0x180000
                  s_cselect_b32 {s(sWc)}, {s(sWc)}, {s(sT0)}""")
        def issue_stage(st):
            tag = f"st{st}"
            a(f"s_add_u32 m0, {s(sI4096)}, {(st % 6) * 16384}")
            if st < 8:
                a("s_nop 0")
                a.vmem(f"buffer_load_dwordx4 {v(vXa)}, {s(sX,4)}, {s(sXc)} offen{ldx} lds", tag)
                a.vmem(f"buffer_load_dwordx4 {v(vWa)}, {s(sW,4)}, {s(sWc)} offen offset:2048{ldw} lds", tag)
                a.vmem(f"buffer_load_dwordx4 {v(vXb)}, {s(sX,4)}, {s(sXc)} offen offset:1024{ldx} lds", tag)
                a.vmem(f"buffer_load_dwordx4 {v(vWb)}, {s(sW,4)}, {s(sWc)} offen offset:3072{ldw} lds", tag)
                a(f"""s_add_u32 {s(sT0)}, {s(sXc)}, 128
                      s_and_b32 {s(sT0)}, {s(sT0)}, 0x3ff
                      s_andn2_b32 {s(sXc)}, {s(sXc)}, 0x3ff
                      s_or_b32 {s(sXc)}, {s(sXc)}, {s(sT0)}""")
                adv_w()
            else:
                a(f"s_add_u32 {s(sT1)}, {s(sWc)}, 2048")
                a.vmem(f"buffer_load_dwordx4 {v(vWa)}, {s(sW,4)}, {s(sT1)} offen{ldw} lds", tag)
                a.vmem(f"buffer_load_dwordx4 {v(vWb)}, {s(sW,4)}, {s(sT1)} offen offset:1024{ldw} lds", tag)
                adv_w()
                a.vmem(f"buffer_load_dwordx4 {v(vWa)}, {s(sW,4)}, {s(sWc)} offen offset:2048{ldw} lds", tag)
                a.vmem(f"buffer_load_dwordx4 {v(vWb)}, {s(sW,4)}, {s(sWc)} offen offset:3072{ldw} lds", tag)
                adv_w()
            if st == 7:
                a(f"s_add_u32 {s(sWc)}, {s(sWc)}, 1024")
            if st == 11:
                a(f"s_sub_u32 {s(sWc)}, {s(sWc)}, 2048")

        D = int(self.o.get("depth", 3))
        D0 = int(self.o.get("depth0", 0))
        issue_stage(0)
        for st in range(1, D0 + 1):
            issue_stage(st)
        nissued = D0 + 1
        a("s_setprio 0")
        if self.o.get("skew"):
            a("""s_mov_b64 s[96:97], s[26:27]
                 s_not_b32 s98, s100
                 v_mov_b32 v11, s98
                 v_mov_b32 v12, 0
                 s_lshr_b32 s99, s2, 3
                 s_or_b32 s99, s99, s64
                 s_cmp_eq_u32 s99, 0
                 s_cselect_b32 s99, 0, 128
                 v_mov_b32 v12, s99
                 s_mov_b64 exec, 1
                 s_cbranch_scc0 L_nosk
                 global_atomic_umax v12, v11, s[96:97] sc1
                 L_nosk:""")
            a("s_mov_b64 exec, -1")
        self.srd_const(sWS, WS_BYTES); self.srd_ptr(sWS, 28)
        self.srd_const(sSK, 0x200000); self.srd_ptr(sSK, 18)
        self.scalar_tables()
        a(f"""s_load_dword {s(sTag)}, s[28:29], 0
              s_lshl2_add_u32 {s(sT0)}, s2, {s(sI)}
              s_lshl_b32 {s(sT0)}, {s(sT0)}, 7
              s_load_dwordx16 s[4:19], {s(sTB,2)}, {s(sT0)} offset:{T_WG}
              s_load_dwordx4 s[20:23], {s(sTB,2)}, {s(sT0)} offset:{T_WG + 64}""")
        a(f"""s_mov_b32 {s(sRole)}, 1
              s_lshl_b32 {s(sRem)}, {s(sI)}, 14
              v_mov_b32 v44, 0
              v_mov_b32 v45, 0
              v_mov_b32 v46, 0
              v_mov_b32 v47, 0
              v_lshlrev_b32 v8, 2, v0
              v_add_u32 v8, {CNT}, v8
              ds_write_b32 v8, v44
              v_and_b32 v39, 7, v0""")
        a(f"s_mov_b32 {s(sOne)}, 0x3f803f80")
        for g in self.mask_ops(4, 5) + self.const_ops():
            for l in g: a(l)
        a.vm_wait("kv")
        a("s_barrier")
        a("s_branch L_b1")
        a("@ASTART@:")
        a.label("L_b1")
        for st in range(nissued, int(self.o.get("depthk", 3)) + 1):
            issue_stage(st); nissued += 1
        a(f"""v_lshlrev_b32 v1, 4, v0
              v_add_u32 v1, {T_PB + 4096}, v1""")
        for q in range(self.stB.nq()):
            a.vmem(f"global_load_dwordx4 {v(128+4*q,4)}, v1, {s(sTB,2)} offset:{1024*q - 4096}", "tab")
        idle = [[l] for l in self.stB.ops]
        setup_open = True
        IB = int(self.o.get("idleb", 14))
        D1 = int(self.o.get("depth1", 3))

        def u_loads():
            a.vmem(f"buffer_load_dwordx4 v[128:131], {v(vUo)}, {s(sWS,4)}, {s(sUS)} offen sc1", "u")
            a.vmem(f"buffer_load_dwordx4 v[136:139], {v(vUo)}, {s(sWS,4)}, {s(sUS)} offen offset:2048 sc1", "u")
            a(f"""s_cmp_eq_u32 {s(sI)}, 3
                  s_cselect_b32 {s(sT1)}, {WS_BYTES}, {s(sUS)}
                  s_lshl_b64 exec, 3, 62""")
            a.vmem(f"buffer_load_dword v141, {v(vUo)}, {s(sWS,4)}, {s(sT1)} offen offset:{2048+64} sc1", "u")
            a("s_mov_b64 exec, -1")

        KC0 = int(self.o.get("kc0", 14))
        UL = int(self.o.get("ulook", 14))
        T0 = int(self.o.get("t0", 5))
        idle += [[f"s_add_u32 {s(sTag)}, {s(sTag)}, {TAGC}"], [f"s_xor_b32 {s(sLO)}, {s(sEO)}, 1024"],
                 [f"s_xor_b32 s40, {s(sWoS)}, 1024"], [f"s_xor_b32 s41, {s(sWoS)}, 2048"], [f"s_xor_b32 s42, {s(sWoS)}, 3072"],
                 ["s_mov_b32 s48, 0xffff00ff", "s_mov_b32 s49, 0", f"s_cmp_eq_u32 {s(sRb)}, 0", "s_cselect_b32 s48, 0xffff0000, s48"],
                 [f"v_lshlrev_b32 {v(vFo)}, 2, v0"],
                 [f"v_add_u32 v39, {s(sKt0)}, v39"], ["v_max_i32 v39, 0, v39"],
                 ["v_and_b32 v3, 0x70, v39", "v_add_lshl_u32 v39, v39, v3, 2"],
                 [f"v_add_u32 v39, {s(sKVF)}, v39", "s_mov_b32 exec_lo, 0xffff0000", f"v_add_u32 v39, {s(sTw)}, {v(vFo)}", "s_mov_b32 exec_lo, -1"],
                 ["s_mov_b32 exec_hi, 0", f"v_add_u32 v10, {s(sYF2)}, v10", "s_not_b64 exec, exec",
                  f"v_xor_b32 v10, {s(sEF)}, v10", "s_mov_b64 exec, 0xfffffff", "ds_write_b128 v31, v[44:47]", "s_mov_b64 exec, -1"]]
        US = int(self.o.get('uscal', 10))
        for st in range(17):
            while nissued <= min(st + (D0 if st == 0 else D1 if st == 1 else D), 15):
                issue_stage(nissued); nissued += 1
            if st == US:
                assert not idle
                a(f"""s_load_dwordx8 s[88:95], s[28:29], {s(sUF)}
                      s_load_dword s51, s[28:29], {s(sUF)} offset:32""")
            if st == KC0:
                a(f"s_mov_b32 m0, {s(sKm)}")
                a.vmem(f"buffer_load_dword {v(vHd)}, v28, {s(sSK,4)}, {s(sTs)} offen", "kc")
                for p in range(4):
                    a.vmem(f"buffer_load_dwordx4 v2, {s(sSK,4)}, {s(sK4)} offen offset:{1024*p}{ldf} lds", "kc")
            if st == UL:
                a("s_waitcnt lgkmcnt(0)")
                u_loads()
            if st == 16:
                break
            if st == T0:
                a("s_waitcnt lgkmcnt(0)")
            if "tab" not in a.vm and idle and st >= T0:
                n = 0
                while idle and n + len(idle[0]) <= IB:
                    for l in idle.pop(0):
                        n += 1; a(l)
                if not idle:
                    self.setup_done(); setup_open = False
            if f"st{st}" in a.vm:
                a.vm_wait(f"st{st}")
            if not setup_open and st >= 14: self.tss(st, True)
            a("s_barrier")
            if st == 12: self.ts(3)
        a(f"s_xor_b32 s50, s51, {s(sTag)}")
        for k in range(8):
            a(f"""s_xor_b32 {s(sT0)}, s{88+k}, {s(sTag)}
                  s_or_b32 s50, s50, {s(sT0)}""")
        if self.o.get("prof"):
            for k in range(4): a(f"s_mov_b32 s{88+2*k}, 0")
        if self.o.get("klook", "0") == "1":
            a.vmem(self.look(5, 39, 0, 's[48:49]'), "fkv")
        a("s_barrier")
        self.tm("p2", 1)
        self.ts(4)
        Lr, Lb = a.newlabel("Lur"), a.newlabel("Lub")
        a(f"""s_setprio 2
              s_cmp_lg_u32 s50, 0
              s_cbranch_scc1 {Lr}""")
        a.label(Lb)
        keep = (a.lines, list(a.vm))
        a.lines = self.tail
        a.label(Lr)
        self.poll(vFo, s(sUF), vFu, 0x1ff)
        u_loads()
        a(f"""s_waitcnt vmcnt(0)
              s_branch {Lb}""")
        a.lines, a.vm = keep
        if self.o.get("klook", "0") != "1":
            a.vmem(self.look(5, 39, 0, 's[48:49]'), "fkv")
        a.vm_wait("u", "kc")
        dp = "wave_rol:1 row_mask:0xf bank_mask:0xf"
        a(f"""ds_write_b32 {v(vHa)}, {v(vHd)}
              v_mov_b32_dpp v133, v128 {dp}
              v_mov_b32_dpp v134, v136 {dp}
              s_lshl_b64 vcc, 3, 62
              v_mov_b32_dpp v132, v133 {dp}
              v_mov_b32_dpp v140, v134 {dp}
              v_cndmask_b32 v132, v132, v140, vcc
              v_cndmask_b32 v140, v140, v141, vcc""")
        for j, b in ((0, 128), (1, 136)):
            a(f"ds_write_b128 {v(vRa)}, {v(b,4)} offset:{RS + 512*j}")
            for q in range(4):
                a(f"v_alignbit_b32 {v(144+4*j+q)}, {v(b+q+1)}, {v(b+q)}, 16")
            a(f"ds_write_b128 {v(vRa)}, {v(144+4*j,4)} offset:{512*j}")
        self.lds_signal(vCNT, C_CONV)
        self.ts(2)

    def compute_phase1(self):
        a = self.a
        a.label("L_compute")
        self.decode()
        a.vm = []; a.lg = []
        vXA, vWA = 8, 12
        accK, accV, accQ, Wf = 16, 32, 48, 64
        NSET = 12
        st = self.stA = Setup(128)
        rt = lambda i: i >> 1
        ct = lambda i: i & 1
        l16 = lambda l: l * 16
        def ua(l, d):
            blk = 2 * (l >> 4) + (l & 1); r = (l >> 2) & 3
            return RR + (8 * blk + r) * 128 + ((((blk + d) & 3) * 2 + (r >> 1)) * 16) + ((l >> 1) & 1) * 8
        st.xor(192, lambda l: ua(l, 0), lambda i: i * 32)
        st.xor(193, lambda l: ua(l, 1), lambda i: i * 32)
        st.mov(194, lambda l: (7 - (2 * (l >> 4) + ((l >> 2) & 1))) * 64 + (l & 3) * 16 + ((l >> 3) & 1) * 16384)
        st.xor(vXA, lambda l: ((l >> 4) & 1) * 4096 + ((l >> 3) & 1) * 1024 + (l & 7) * 128 + ((((l >> 1) & 7) ^ (l >> 5)) * 16),
               lambda i: rt(i) * 8192 + ct(i) * 64)
        st.raw(f"v_xor_b32 {v(vXA+1)}, 32, {v(vXA)}\nv_xor_b32 {v(vXA+2)}, 64, {v(vXA)}\nv_xor_b32 {v(vXA+3)}, 0x60, {v(vXA)}")
        st.xor(vWA, lambda l: (8 * (l >> 5) + ((l >> 2) & 3)) * 128 + (l & 3) * 8 + ((l >> 4) & 1) * 32 + ((l >> 3) & 1) * 64,
               lambda i: ct(i) * (8192 + 64))
        st.raw(f"v_xor_b32 {v(vWA+1)}, 0x2000, {v(vWA)}\nv_add_u32 v3, 0x10000, {v(vWA)}\nv_add_u32 v4, 0x10000, {v(vWA+1)}")
        st.add(1, lambda l: GW + (l >> 5) * 16, lambda i: ct(i) * 64)
        st.mov(5, lambda l: ((l >> 4) & 1) * 131072 + (l >> 5) * 256 + (l & 15) * 16)
        st.add(6, lambda l: ((l >> 4) & 1) * 4096 + (l >> 5) * 256 + (l & 15) * 16, lambda i: LB + ct(i) * 8192 + rt(i) * 2048)
        st.add(7, l16, lambda i: LB + ct(i) * 8192 + rt(i) * 2048)
        st.add(114, lambda l: (l & 31) * 8, lambda i: GP + rt(i) * 256 + ct(i) * 4)
        st.add(112, lambda l: KC + (l & 1) * KCS + ((l >> 1) & 7) * 8 + (l >> 4) * 16, lambda i: rt(i) * 2 * KCS + ct(i) * 256)
        st.add(113, lambda l: RR + 448 + (l & 1) * RS + (l >> 4) * 16 - ((l >> 1) & 7) * 64, lambda i: rt(i) * 2 * RS + ct(i) * 256)
        st.attn(lambda i: ct(i) ^ 1)
        st.keep(sQFw, lambda i: QF + ct(i) * 4096 + rt(i) * 1024)
        st.keep(sPw, lambda i: (PY + rt(i) * 8192) if ct(i) else (EX1 if rt(i) else EX0))
        for rr in range(4):
            st.ops.append(f"v_and_b32 {v(116+rr)}, {s(sD)}, {v(st.p(lambda l: 0xffff if (l & 15) + 4 * (l >> 4) == 15 - rr else 0))}")
        st.mov(190, lambda l: EX1 + (4 * (l >> 5) + ((l >> 2) & 3)) * 128 + (l & 3) * 8 + ((l >> 4) & 1) * 32 + ((l >> 3) & 1) * 64)
        st.add(195, lambda l: SW + ((l & 3) + 4 * ((l >> 3) & 1)) * 8, lambda i: i * 128)
        assert st.nq() == NQ
        a.vm = ["tab"] * NQ + ([] if self.o.get("notb") else ["tb"]) + (["tb"] if (not self.o.get("nocw")) else [])
        a(f"""
              s_and_b32 {s(sT2)}, s2, 7
              s_lshl_b32 {s(sT2)}, {s(sT2)}, 5
              s_lshr_b32 {s(sT1)}, s2, 3
              s_add_u32 {s(sT2)}, {s(sT2)}, {s(sT1)}
              s_lshr_b32 {s(sT1)}, {s(sI)}, 1
              s_lshl1_add_u32 {s(sT2)}, {s(sT2)}, {s(sT1)}
              s_lshl_b32 {s(sT2)}, {s(sT2)}, 1
              s_lshl_b32 s46, {s(sT2)}, 11
              v_mov_b32 v252, {s(sT2)}
              v_mov_b32 v253, 0
              s_bitcmp0_b32 {s(sI)}, 0
              s_cselect_b32 {s(sD)}, -1, 0
              s_mov_b32 {s(sRole)}, 0""")
        a(f"""s_and_b32 {s(sT0)}, {s(sI)}, 1                 ; ct
              s_lshr_b32 {s(sT1)}, {s(sI)}, 1                ; rt
              s_lshl2_add_u32 {s(sT2)}, {s(sHq)}, {s(sI)}
              s_lshl_b32 {s(sU0+32)}, {s(sT2)}, 16
              s_lshl_b32 {s(sT3)}, {s(sRb)}, 9
              s_sub_u32 {s(sU0+32)}, {s(sU0+32)}, {s(sT3)}
              s_add_u32 {s(sU0+32)}, {s(sU0+32)}, {UG + 248*64}
              s_lshl_b32 {s(sUF+32)}, {s(sT2)}, 5
              s_add_u32 {s(sUF+32)}, {s(sUF+32)}, {s(sRb)}
              s_lshl_b32 {s(sUF+32)}, {s(sUF+32)}, 2
              s_add_u32 {s(sUF+32)}, {s(sUF+32)}, {FU}
              s_xor_b32 {s(sT3)}, {s(sT0)}, 1
              s_lshl1_add_u32 {s(sT3)}, {s(sRb)}, {s(sT3)}   ; tt
              s_add_u32 {s(sNt+32)}, {s(sT3)}, 1
              s_min_u32 {s(sNt+32)}, {s(sNt+32)}, 9
              s_lshl_b32 {s(sT3)}, {s(sT3)}, 5
              s_add_u32 {s(sT3)}, {s(sT3)}, {s(sT2)}
              s_lshl_b32 {s(sOO+32)}, {s(sT3)}, 10
              s_add_u32 {s(sOO+32)}, {s(sOO+32)}, {OG}
              s_andn2_b32 {s(sOF+32)}, {s(sT3)}, 15
              s_add_u32 {s(sOF+32)}, {s(sOF+32)}, {s(sT3)}
              s_lshl_b32 {s(sOF+32)}, {s(sOF+32)}, 2
              s_add_u32 {s(sOF+32)}, {s(sOF+32)}, {FO}
              s_lshl1_add_u32 {s(sT2)}, {s(sHq)}, {s(sT0)}   ; pair
              s_lshl1_add_u32 {s(sT3)}, {s(sRb)}, {s(sT1)}   ; kt
              s_lshl_b32 {s(sKO+32)}, {s(sT2)}, 7
              s_add_u32 {s(sKO+32)}, {s(sKO+32)}, {s(sT3)}
              s_lshl_b32 {s(sKO+32)}, {s(sKO+32)}, 11
              s_add_u32 {s(sKO+32)}, {s(sKO+32)}, {KVG}
              s_add_u32 {s(sKO2+32)}, {s(sKO+32)}, 0x20000
              s_lshl_b32 {s(sKF+32)}, {s(sT2)}, 6
              s_add_u32 {s(sKF+32)}, {s(sKF+32)}, {s(sT3)}
              s_andn2_b32 {s(sT3)}, {s(sKF+32)}, 15
              s_add_u32 {s(sKF+32)}, {s(sKF+32)}, {s(sT3)}
              s_lshl_b32 {s(sKF+32)}, {s(sKF+32)}, 2
              s_add_u32 {s(sKF+32)}, {s(sKF+32)}, {FKV}""")
        if self.o.get("pg"):
            a(f"""v_mov_b32 v254, {s(sU0+32)}
                  v_writelane_b32 v254, {s(sKO+32)}, 1
                  v_writelane_b32 v254, {s(sOO+32)}, 2
                  s_lshl_b32 {s(sT0)}, {s(sHq)}, 5
                  s_add_u32 {s(sT0)}, {s(sT0)}, {s(sRb)}
                  s_lshl_b32 {s(sT0)}, {s(sT0)}, 11
                  s_add_u32 {s(sT0)}, {s(sT0)}, {WFG}
                  v_writelane_b32 v254, {s(sT0)}, 3
                  v_lshlrev_b32 v251, 11, v252
                  v_add_u32 v250, {YG}, v251
                  s_mov_b64 vcc, 16
                  v_cndmask_b32 v254, v254, v250, vcc
                  s_lshl_b32 {s(sT0)}, {s(sRb)}, 9
                  s_add_u32 {s(sT0)}, {s(sT0)}, {s(sHq)}
                  s_lshl_b32 {s(sT0)}, {s(sT0)}, 7
                  v_mov_b32 v250, {s(sT0)}""")
        if self.o.get("lateA"):
            a("s_setprio 3")
        self.srd_const(sWS, WS_BYTES)
        a("s_waitcnt lgkmcnt(0)")
        if self.o.get("pg"):
            a("s_mov_b64 exec, 31")
            a.vmem("global_load_dword v255, v254, s[28:29]", "ed")
            a("s_mov_b64 exec, 1")
            a.vmem("global_load_dword v255, v251, s[18:19]", "ed")
            a.vmem("global_load_dword v255, v250, s[24:25]", "ed")
            a("s_mov_b64 exec, -1")
        a.vmem("global_load_ushort v252, v252, s[20:21]", "ed")
        a.vmem("global_load_dword v253, v253, s[28:29]", "ed")
        self.srd_ptr(sWS, 28)
        def wtouch():
            kinds = self.o.get("wt", "")
            a(f"""s_lshl2_add_u32 {s(sT1)}, {s(sRot)}, {s(sI)}
                  s_mul_i32 {s(sT1)}, {s(sT1)}, {16*3072}
                  s_lshl_b32 {s(sT0)}, {s(sHq)}, 7
                  s_add_u32 {s(sT1)}, {s(sT1)}, {s(sT0)}
                  v_and_b32 v188, 15, v0
                  v_mul_u32_u24 v188, 0xc00, v188
                  v_xor_b32 v189, 16, v0
                  v_and_b32 v189, 16, v189
                  v_lshl_add_u32 v188, v189, 7, v188
                  v_add_u32 v188, {s(sT1)}, v188
                  s_mov_b32 exec_hi, 0
                  s_mov_b32 exec_lo, {"-1" if "q" in kinds else "0xffff"}""")
            a.vmem("global_load_dword v115, v188, s[44:45]", "ed")
            if "s" in kinds:
                a(f"""s_mov_b32 exec_lo, 0xffff
                      v_lshlrev_b32 v188, 7, v0
                      s_and_b32 {s(sT0)}, {s(sI)}, 1
                      s_lshl_b32 {s(sT0)}, {s(sT0)}, 11
                      s_add_u32 {s(sT0)}, {s(sT0)}, s46
                      v_add_u32 v188, {s(sT0)}, v188""")
                a.vmem("global_load_dword v115, v188, s[18:19]", "ed")
            a("s_mov_b64 exec, -1")
        a("s_mov_b64 s[44:45], s[6:7]")
        if self.o.get("wt") and self.o.get("wtp", "0") == "0": wtouch()
        a("s_mov_b64 s[4:5], s[36:37]\ns_mov_b64 s[6:7], s[38:39]\ns_mov_b64 s[8:9], s[40:41]\ns_mov_b64 s[10:11], s[42:43]")
        if self.o.get("lateA"):
            self.scalar_tables()
            a("s_setprio 0\ns_waitcnt lgkmcnt(0)")
        a.vm_wait("tab")
        for l in st.ops: a(l)
        a("s_setprio 1")
        self.setup_done()
        if self.o.get("iw"):
            a("@IWARM@:")
        self.tm("ld", 5)
        if self.o.get("wt") and self.o.get("wtp") == "1": wtouch()
        fillers = []
        a("s_barrier")
        self.tm("ld", 7)
        a.lds("ds_read_b64 v[196:197], v195", "sw")
        a.lds("ds_read_b64 v[198:199], v195 offset:64", "sw")
        self.u_reads(0); self.u_reads(1)
        Lw = a.newlabel("Lwf")
        a(f"""s_cmp_lg_u32 {s(sI)}, 0
              s_cbranch_scc1 {Lw}
              v_xor_b32 v191, 64, v190
              ds_read_b64_tr_b16 v[176:177], v190
              ds_read_b64_tr_b16 v[178:179], v190 offset:1024
              ds_read_b64_tr_b16 v[180:181], v191
              ds_read_b64_tr_b16 v[182:183], v191 offset:1024
              s_lshl_b32 {s(sT0)}, {s(sHq)}, 5
              s_add_u32 {s(sT0)}, {s(sT0)}, {s(sRb)}
              s_lshl_b32 {s(sT0)}, {s(sT0)}, 11
              s_add_u32 {s(sT0)}, {s(sT0)}, {WFG}
              s_waitcnt lgkmcnt(0)
              buffer_store_dwordx4 v[176:179], v2, {s(sWS,4)}, {s(sT0)} offen sc1
              buffer_store_dwordx4 v[180:183], v2, {s(sWS,4)}, {s(sT0)} offen offset:1024 sc1""")
        a.label(Lw)
        self.u_math(0); self.u_math(1)
        if self.o.get("wt") and self.o.get("wtp") == "2":
            a("s_nop 1"); wtouch()
        self.tm("ld", 8)
        a("s_branch L_a1")
        a("@AEND@:")
        a.label("L_a1")
        fq = []
        def fill(n):
            while n > 0 and fq:
                l = fq.pop(0); n -= 1
                if self.o.get("nost") and l.startswith("@kvst"): continue
                if self.o.get("nolw") and l.startswith("#w ds_write_b128"): continue
                if l.startswith("@"):
                    tag, rest = l[1:].split(" ", 1); a.vmem(rest, tag)
                elif l.startswith("#"):
                    tag, rest = l[1:].split(" ", 1); a.lds(rest, tag)
                else:
                    a(l)
        nset = [0]
        def reads(st, n):
            slot = st % 6
            tag = f"s{st}_{n}"
            hi, so = (0, slot * 16384) if slot < 4 else (2, (slot - 4) * 16384)
            if st < 8 and n >= 4:
                gb = accV + 8 * (st & 1) + 4 * (n - 4)
                a.lds(f"ds_read_b128 {v(gb,4)}, v1 offset:{st*128 + (n-4)*32}", tag)
                return ("g", 4 * st + n - 4, gb, tag), 1
            wb = Wf + 4 * (nset[0] % NSET); nset[0] += 1
            base = (3 if hi else vWA) + ((n >> 1) & 1)
            if st < 8:
                k = 4 * st + n
                a.lds(f"ds_read_b128 {v(128+4*k,4)}, {v(vXA+n)} offset:{so}", tag)
                o = so + (n & 1) * 4096 + 2048
            else:
                k = 8 * ((st - 8) & 3) + n
                o = so + (n & 1) * 4096 + (n >> 2) * 2048
            a.lds(f"ds_read_b64_tr_b16 {v(wb,2)}, {v(base)} offset:{o}", tag)
            a.lds(f"ds_read_b64_tr_b16 {v(wb+2,2)}, {v(base)} offset:{o+512}", tag)
            return ("k" if st < 8 else "v" if st < 12 else "q", k, wb, tag), (3 if st < 8 else 2)
        def mm(g):
            kind, k, wb, tag = g
            a.lg_wait(tag)
            acc = {"k": accK, "v": accV, "q": accQ, "g": accQ}[kind]
            c = "0" if k == 0 else v(acc, 16)
            if kind == "v":
                a(f"v_mfma_f32_32x32x16_bf16 {v(acc,16)}, {v(128+4*k,4)}, {v(wb,4)}, {c}")
            else:
                a(f"v_mfma_f32_32x32x16_bf16 {v(acc,16)}, {v(wb,4)}, {v(128+4*k,4)}, {c}")
        def lines(t):
            return [x.strip() for x in t.split("\n") if x.strip()]
        pend = []
        UF = int(self.o.get("uflag", 4))
        KVF = int(self.o.get("kvflag", 14))
        DEF = int(self.o.get("defer", 4))
        BUD = int(self.o.get("budget", 5))
        for st in range(16):
            self.tss(st, True)
            a("s_barrier")
            self.tss(st, False)
            if st == 0: self.ts(1)
            if st == 8: self.ts(2)
            if st == 12: self.ts(3)
            nit = 6 if st < 8 else 8
            nd = 6 if st < 8 else 0 if st == 15 else DEF
            gs = []
            if st == 0:
                for n in range(6): gs.append(reads(st, n)[0])
            if st == 1:
                for f in fillers: fq += lines(f)
            npend = len(pend)
            for i in range(npend + nit - nd):
                used = 0
                if len(gs) < nit:
                    g, used = reads(st, len(gs)); gs.append(g)
                mm(pend[i] if i < npend else gs[i - npend])
                if st == 8 and i == 6:
                    fq += [f"v_cvt_pk_bf16_f32 {v(accK+q)}, {v(accK+2*q)}, {v(accK+2*q+1)}" for q in range(8)]
                    fq += [f"v_mov_b32 v1, {v(accQ)}"]
                if st == 12 and i == npend + 1:
                    fq += [f"v_cvt_pk_bf16_f32 {v(accV+q)}, {v(accV+2*q)}, {v(accV+2*q+1)}" for q in range(8)]
                stf = self.o.get("stf", "sc1").replace("+", " ")
                stores = [f"@kvst buffer_store_dwordx4 {v(accK,4)}, v2, {s(sWS,4)}, {s(sKO)} offen {stf}",
                          f"@kvst buffer_store_dwordx4 {v(accK+4,4)}, v2, {s(sWS,4)}, {s(sKO2)} offen {stf}",
                          f"@kvst buffer_store_dwordx4 {v(accV,4)}, v5, {s(sWS,4)}, {s(sKO)} offen offset:1024 {stf}",
                          f"@kvst buffer_store_dwordx4 {v(accV+4,4)}, v5, {s(sWS,4)}, {s(sKO)} offen offset:1536 {stf}"]
                SP = [int(x) for x in self.o.get("sp", "9,11,12,12").split(",")]
                for k in range(4):
                    if st == SP[k] and i == (6 if st == 8 else npend + 1):
                        fq.append(stores[k])
                if st == 15 and i >= 7:
                    fq += [[f"#w ds_write_b32 v114, v1"],
                           [f"#w ds_write_b128 v7, {v(accK,4)}"],
                           [f"#w ds_write_b128 v7, {v(accK+4,4)} offset:4096"],
                           [f"#w ds_write_b128 v6, {v(accV,4)} offset:1024"],
                           [f"#w ds_write_b128 v6, {v(accV+4,4)} offset:1536"]][i - 7]
                if st in (3, 5) and i == 4:
                    op = "v_add_u32" if st == 3 else "v_subrev_u32"
                    for n in range(4): a(f"{op} {v(vXA+n)}, 0x10000, {v(vXA+n)}")
                    used += 4
                fill(BUD - used - (1 if i >= npend else 0))
            assert len(gs) == nit
            if st in (7, 12, 14):
                fill(100)
            pend = gs[nit - nd:]
            if st < 15:
                a.lg_all()
            if st == UF:
                a.vm_wait("ust")
                a(f"v_readfirstlane_b32 {s(sTag)}, v253")
                for rr in range(4):
                    a(f"v_and_b32 {v(116+rr)}, {v(116+rr)}, v252")
                a(f"s_add_u32 {s(sTag)}, {s(sTag)}, {TAGC}")
                self.flag_store(sUF, 255)
            if st == KVF:
                a.vm_all()
                self.flag_store(sKF, 115)
        assert not fq
        self.ts(4)
        a(f"""s_mov_b32 {s(sT0)}, {f2u(0.25 * LOG2E):#x}
              s_mov_b32 {s(sT1)}, {s(sT0)}
              v_add_u32 v3, {s(sQFw)}, v2""")
        for q in range(8):
            a(f"v_pk_mul_f32 {v(accQ+2*q,2)}, {v(accQ+2*q,2)}, {s(sT0,2)}")
        for q in range(8):
            a(f"v_cvt_pk_bf16_f32 {v(accQ+q)}, {v(accQ+2*q)}, {v(accQ+2*q+1)}")
            if q == 3:
                a(f"ds_write_b128 v3, {v(accQ,4)}")
        a(f"""ds_write_b128 v3, {v(accQ+4,4)} offset:2048
              v_mov_b32 v8, v112
              v_mov_b32 v9, v113
              v_mov_b32 v84, v116
              v_mov_b32 v85, v117
              v_mov_b32 v86, v118
              v_mov_b32 v87, v119
              s_setprio 0""")
        a.lg_all()
        a("s_barrier")
        self.ts(5)

    def conv(self):
        a = self.a
        a.lg = []
        vKA, vUA = 8, 9
        acc = 16
        KVC = int(self.o.get("kvconv", -1))
        def fr(buf, kind, i):
            return 128 + 64 * buf + (0 if kind == "k" else 32) + 4 * i
        issued = set()
        def rd(r, kind, i):
            issued.add((r, kind, i))
            buf = r & 1
            if kind == "k":
                a.lds(f"ds_read_b64 {v(fr(buf,'k',i),2)}, {v(vKA)} offset:{512*i + 64*r}", f"{r}k{i}")
                a.lds(f"ds_read_b64 {v(fr(buf,'k',i)+2,2)}, {v(vKA)} offset:{512*i + 64*r + 8}", f"{r}k{i}")
            else:
                a.lds(f"ds_read_b128 {v(fr(buf,'u',i),4)}, {v(vUA)} offset:{512*(7-i) + 64*r}", f"{r}u{i}")
        order = []
        for i in range(8):
            order += [("k", i), ("u", i)]
        NPRE = int(self.o.get("cpre", 33))
        pre = self.mask_ops(3, 7) + self.const_ops()
        if int(self.o.get("kvflag", 14)) == 16:
            a.vm_all()
            self.flag_store(sKF, 13)
        a.lds(f"ds_read_b128 {v(vQ,4)}, v14", "q")
        for g in pre:
            for l in g: a(l)
        self.attention("A", 0)
        if int(self.o.get("kvflag", 14)) == 17:
            a.vm_all()
            self.flag_store(sKF, 13)
        self.lds_spin(vCNT, C_CONV, 4, 3)
        self.ts(8)
        for kind, i in order[:8]:
            rd(0, kind, i)
        fill = [[x.strip()] for x in f"""v_and_b32 v10, 15, v0
              v_lshlrev_b32 v10, 3, v10
              v_lshrrev_b32 v11, 4, v0
              v_lshl_add_u32 v10, v11, 8, v10
              v_add_u32 v10, {s(sPw)}, v10
              s_lshl_b32 {s(sT2)}, {s(sI)}, 2
              v_add_u32 v12, {s(sT2)}, {v(vCNT)}
              s_nop 0""".split("\n")]
        pend_r = [(0, k, i) for k, i in order[8:]]
        first = [True] * 8
        for r in range(4):
            self.tm("p2", 1 + r)
            buf = r & 1
            nxt = [(r + 1, k, i) for k, i in order] if r < 3 else []
            queue = pend_r + nxt
            pend_r = []
            seq = []
            for m in range(8):
                for d in range(m + 1):
                    for s_ in range(m + 1):
                        if max(d, s_) == m and d + s_ <= 7:
                            seq.append((d, s_))
            assert len(seq) == 36
            for n, (d, s_) in enumerate(seq):
                T = d + s_
                if r * 36 + n == KVC:
                    a.vm_all()
                    self.flag_store(sKF, 13)
                assert (r, "k", d) in issued and (r, "u", s_) in issued
                a.lg_wait(f"{r}k{d}", f"{r}u{s_}")
                c = "0" if first[T] else v(acc + 4 * T, 4)
                first[T] = False
                a(f"v_mfma_f32_16x16x32_bf16 {v(acc+4*T,4)}, {v(fr(buf,'u',s_),4)}, {v(fr(buf,'k',d),4)}, {c}")
                KN = int(self.o.get("kn", 22))
                if r == 3 and n == KN:
                    a.lds(f"ds_read_b32 v7, v12 offset:{C_KVL}", "kvl")
                if r == 3 and n == KN + 6:
                    Lq, Lz = a.newlabel("Lkq"), a.newlabel("Lkz")
                    a.lg_wait("kvl")
                    a(f"""v_readfirstlane_b32 {s(sT5)}, v7
                          s_cmp_eq_u32 {s(sT5)}, 0
                          s_cbranch_scc1 {Lq}""")
                    a.label(Lz)
                    keep = (a.lines, list(a.lg))
                    a.lines = self.tail
                    a.label(Lq)
                    self.lds_spin(12, C_KVL, 1, 7)
                    a(f"s_branch {Lz}")
                    a.lines, a.lg = keep
                    pref = self.attention("A", 1)
                if r == 3 and n > KN + 6 and pref:
                    pref.pop(0)()
                if queue and (n % 2 == 0 or queue[0][0] == r):
                    rd(*queue.pop(0))
                elif fill:
                    for l in fill.pop(0):
                        if l.startswith("#"):
                            tag, rest = l[1:].split(" ", 1); a.lds(rest, tag)
                        else:
                            a(l)
            if r == 0:
                for T in range(8):
                    a(f"v_mfma_f32_16x16x32_bf16 {v(acc+4*T,4)}, {v(fr(0,'u',T),4)}, v[84:87], {v(acc+4*T,4)}")
            pend_r = queue
            assert all(q[0] == r + 1 for q in pend_r)
        assert not fill and not pend_r
        self.tm("p2", 5)
        self.ts(6)
        a(f"s_setprio {self.o.get('aprio', 1)}")
        assert not pref
        wr = [(lambda T=T, r=r: a.lds(f"ds_write_b64 v10, {v(acc+4*T+2*r,2)} offset:{1024*T + 128*r}", "pw")) for T in range(8) for r in range(2)]
        wr.append(lambda: self.lds_signal(vCNT, C_FREE))
        self.attention("A", 2, wr)

    def wof(self, late, j, ct):
        return 128 + ((late * 8 + j) * 2 + ct) * 4

    def kv_dma(self, groups):
        a = self.a
        for g in groups:
            a(f"""s_add_u32 m0, {s(sRem)}, {4096*g}
                  s_add_u32 {s(sT2)}, {s(sKVS)}, {4096*g}
                  s_cmp_lt_u32 {s(sRb)}, {4-g}
                  s_cselect_b32 {s(sT2)}, {WS_BYTES}, {s(sT2)}""")
            for o in (2048, 3072, 0, 1024):
                a.vmem(f"buffer_load_dwordx4 v2, {s(sWS,4)}, {s(sT2)} offen offset:{o} sc1 lds", f"r{2*g + (o >> 11)}")

    def b_fetch(self):
        a = self.a
        a.vm_all()
        self.poll(39, 0, 5, 's[48:49]', first_done=True)
        self.ts(5)
        self.tm("p2", 2)
        self.kv_dma((3, 2))
        a(f"""s_lshl_b32 {s(sT2)}, {s(sI)}, 2
              v_add_u32 v5, {s(sT2)}, {v(vCNT)}""")
        self.tm("p2", 3)

    def b_start(self):
        a = self.a
        a.lg = []
        a(f"ds_read_b128 {v(vQ,4)}, v14")
        if self.o.get("bearly"):
            self.b_fetch()

    def attention(self, role, part=None, extra=()):
        a = self.a
        B = role == "B"
        if B: a.lg = []
        extra = list(extra)
        S = [16, 32] if (B or part == 0) else [144, 128]; O, P, Kf, Vf = vO, vP, [vKf, vKf + 4], [vVf, vVf + 8]
        HK = int(self.o.get("hook", 4))
        def kaddr(p):
            return (120, 0) if p == 0 else (121, 0) if p == 1 else (122, (8 - p) * 2048)
        def rdK(p):
            r, o = kaddr(p)
            a.lds(f"ds_read_b128 {v(Kf[p&1],4)}, {v(r)} offset:{o}", f"K{p}")
        def rdV(p):
            r, o = kaddr(p)
            if p == 0:
                a(f"s_mov_b64 exec, {s(sEx,2)}")
            else:
                a(f"""s_cmp_gt_u32 {s(sNt)}, {p}
                      s_cselect_b64 exec, {s(sEx,2)}, -1""")
            a.lds(f"ds_read_b128 {v(Vf[p&1],4)}, {v(r+3)} offset:{o}", f"V{p}")
            a.lds(f"ds_read_b128 {v(Vf[p&1]+4,4)}, {v(r+3)} offset:{o+512}", f"V{p}")
            a("s_mov_b64 exec, -1")
        def qk(p):
            c = v(vML, 16) if p == 0 else v(vMU, 16) if p == 8 else "0"
            a(f"v_mfma_f32_32x32x16_bf16 {v(S[p&1],16)}, {v(Kf[p&1],4)}, {v(vQ,4)}, {c}")
        def e(p, j):
            a(f"v_exp_f32 {v(S[p&1]+j)}, {v(S[p&1]+j)}")
            if extra: extra.pop(0)()
        def c(p, q): a(f"v_cvt_pk_bf16_f32 {v(P+q)}, {v(S[p&1]+2*q)}, {v(S[p&1]+2*q+1)}")
        def pv(p, hf):
            cc = "0" if (p == 0 and hf == 0) else v(O, 16)
            a(f"v_mfma_f32_32x32x16_bf16 {v(O,16)}, {v(Vf[p&1]+4*hf,4)}, {v(P+4*hf,4)}, {cc}")
        def vmw(q):
            if not B: return
            t = "r0" if q == HK + 2 else f"r{8-q}"
            if t in a.vm: a.vm_wait(t)
        wq = [(late, j) for late in range(2) for j in range(8)] if B else []
        W0 = int(self.o.get("w0", 0))
        def wload():
            if not wq: return
            late, j = wq.pop(0)
            a(f"v_add_u32 v3, {4096*j}, v2")
            for ct in range(2):
                so = [sWoS, 40, 41, 42][2 * late + ct]
                a.vmem(f"buffer_load_dwordx4 {v(self.wof(late,j,ct),4)}, v3, {s(sWS,4)}, {s(so)} offen sc1", "wf")
        self.wload, self.wq = wload, wq
        if part == 1:
            return [lambda: rdK(1), lambda: rdV(1), lambda: rdK(2)]
        vg = 84 if B else 4
        if part != 2:
            rdK(0)
            a.lds(f"ds_read_b64 {v(vg,2)}, v15", "g")
            rdV(0)
            a.lg_wait("K0")
            qk(0)
            a.lg_wait("g")
            a(f"""v_add_f32 {v(vg)}, {v(vg)}, {v(vg+1)}
                  v_mul_f32 {v(vg)}, {f2u(-LOG2E):#x}, {v(vg)}
                  v_exp_f32 {v(vg)}, {v(vg)}
                  s_nop 0
                  v_add_f32 {v(vg)}, 1.0, {v(vg)}""")
        if part == 0:
            for j in range(16):
                e(0, j)
                if j >= 3 and j & 1: c(0, (j - 3) // 2)
                if j == 11:
                    a.lg_wait("V0"); pv(0, 0)
            c(0, 7); pv(0, 1)
            return
        if part == 2:
            a.lg_wait("K1")
            qk(1)
            for k in range(6):
                extra.pop(0)()
            a(f"v_mov_b32 v84, {v(vg)}")
        for p in range(1 if part == 2 else 0, 9):
            nx = p + 1 <= 8
            if p % 2 == 0: self.tm("p2", 6 + p // 2)
            if p == 0:
                for j in range(8):
                    e(0, j)
                    if j >= 3 and j & 1: c(0, (j - 3) // 2)
                if not self.o.get("bearly"):
                    self.b_fetch()
                self.kv_dma((1, 0))
                vmw(1)
                rdK(1); rdV(1)
                e(0, 8); c(0, 3); e(0, 9); e(0, 10)
                a.lg_wait("V0")
                pv(0, 0)
                e(0, 11); c(0, 4); e(0, 12)
                a.lg_wait("K1")
                qk(1)
                vmw(2)
                rdK(2)
                e(0, 13); c(0, 5); e(0, 14); e(0, 15); c(0, 6)
                continue
            carry = not (part == 2 and p == 1)
            e(p, 0)
            if carry: c(p - 1, 7)
            e(p, 1)
            e(p, 2)
            if carry: pv(p - 1, 1)
            e(p, 3); c(p, 0)
            if p > W0: wload()
            e(p, 4)
            if nx: rdV(p + 1)
            e(p, 5); c(p, 1)
            e(p, 6)
            if nx: a.lg_wait(f"K{p+1}")
            e(p, 7)
            if nx: qk(p + 1)
            c(p, 2)
            e(p, 8); c(p, 3)
            e(p, 9)
            if p + 2 <= 8:
                vmw(p + 2)
            e(p, 10)
            if p + 2 <= 8:
                rdK(p + 2)
            if f"V{p}" in a.lg: a.lg_wait(f"V{p}")
            e(p, 11)
            pv(p, 0)
            c(p, 4)
            e(p, 12)
            if p == HK and B:
                self.lds_signal(5, C_KVL)
            if p >= W0 and int(self.o.get("w2x", 1)): wload()
            e(p, 13); c(p, 5)
            e(p, 14)
            e(p, 15); c(p, 6)
        c(8, 7); pv(8, 1)
        a.label(f"L_attn_fin{role}")
        a.lg = []
        a(f"""s_mov_b32 {s(sT4)}, {f2u(2.0**-30):#x}
              s_mov_b32 {s(sT5)}, {f2u(2.0**30):#x}
              s_waitcnt lgkmcnt(0)
              v_mul_f32 v85, v84, {v(O+8)}
              v_cmp_nle_f32 vcc, {s(sT4)}, {v(O+8)}
              v_cmp_nge_f32 {s(sT0,2)}, {s(sT5)}, {v(O+8)}
              v_rcp_f32 v86, v85
              s_or_b64 vcc, vcc, {s(sT0,2)}""")
        if self.o.get("force_slow"):
            a("s_mov_b64 vcc, -1")
        a(f"""s_cbranch_vccnz L_attn_slow""")
        a.label(f"L_attn_ok{role}")
        for q in range(8):
            a(f"v_mul_f32 {v(O+q)}, {v(O+q)}, v86")
        for q in range(4):
            a(f"v_cvt_pk_bf16_f32 {v(O+q)}, {v(O+2*q)}, {v(O+2*q+1)}")
        a.vmem(f"buffer_store_dwordx4 {v(O,4)}, v2, {s(sWS,4)}, {s(sOO)} offen sc1", "o")
        self.ts(10)

    def attn_slow(self):
        a = self.a
        S, ML, Kf, O, P = 16, 32, vKf, vO, vP
        sP, sM = sT2, sT3
        a.label("L_attn_slow")
        a(f"""s_cmp_lg_u32 {s(sRedo)}, 0
              s_cbranch_scc1 L_sl_ok
              s_mov_b32 {s(sRedo)}, 1
              s_mov_b32 {s(sM)}, 0
              s_mov_b32 {s(sT0)}, 0xf149f2ca
              v_mov_b32 v86, 0xff7fffff
              v_sub_u32 v87, v123, v120""")
        for r in range(16):
            a(f"v_xor_b32 {v(ML+r)}, {s(sT0)}, {v(vMU+r)}")
            a(f"v_mov_b32 {v(O+r)}, 0")
            a(f"v_mov_b32 {v(vVf+r)}, {s(sOne)}")
        a.label("L_sl_pass")
        a(f"s_mov_b32 {s(sP)}, 0")
        a.label("L_sl_tile")
        a(f"""s_sub_u32 {s(sT0)}, 8, {s(sP)}
              s_lshl_b32 {s(sT0)}, {s(sT0)}, 11
              v_add_u32 v3, {s(sT0)}, v122
              s_cmp_eq_u32 {s(sP)}, 1
              s_cselect_b64 vcc, -1, 0
              v_cndmask_b32 v3, v3, v121, vcc
              s_cmp_eq_u32 {s(sP)}, 0
              s_cselect_b64 vcc, -1, 0
              v_cndmask_b32 v3, v3, v120, vcc
              ds_read_b128 {v(Kf,4)}, v3
              v_add_u32 v3, v3, v87
              s_mov_b64 exec, {s(sEx,2)}
              ds_read_b128 {v(vVf,4)}, v3
              ds_read_b128 {v(vVf+4,4)}, v3 offset:512
              s_mov_b64 exec, -1
              s_waitcnt lgkmcnt(0)
              s_cbranch_scc1 L_sl_lo
              s_cmp_eq_u32 {s(sP)}, 8
              s_cbranch_scc1 L_sl_up
              v_mfma_f32_32x32x16_bf16 {v(S,16)}, {v(Kf,4)}, {v(vQ,4)}, 0
              s_branch L_sl_s""")
        a.label("L_sl_lo")
        a(f"""v_mfma_f32_32x32x16_bf16 {v(S,16)}, {v(Kf,4)}, {v(vQ,4)}, {v(ML,16)}
              s_branch L_sl_s""")
        a.label("L_sl_up")
        a(f"v_mfma_f32_32x32x16_bf16 {v(S,16)}, {v(Kf,4)}, {v(vQ,4)}, {v(vMU,16)}")
        a.label("L_sl_s")
        a(f"""s_cmp_lg_u32 {s(sM)}, 0
              s_cbranch_scc1 L_sl_pv""")
        for j in range(8):
            a(f"v_max3_f32 v86, v86, {v(S+2*j)}, {v(S+2*j+1)}")
        a("s_branch L_sl_next")
        a.label("L_sl_pv")
        for j in range(16):
            a(f"v_sub_f32 {v(S+j)}, {v(S+j)}, v86")
        for j in range(16):
            a(f"v_exp_f32 {v(S+j)}, {v(S+j)}")
        for q in range(8):
            a(f"v_cvt_pk_bf16_f32 {v(P+q)}, {v(S+2*q)}, {v(S+2*q+1)}")
        for hf in range(2):
            a(f"v_mfma_f32_32x32x16_bf16 {v(O,16)}, {v(vVf+4*hf,4)}, {v(P+4*hf,4)}, {v(O,16)}")
        a.label("L_sl_next")
        a(f"""s_add_u32 {s(sP)}, {s(sP)}, 1
              s_cmp_lt_u32 {s(sP)}, {s(sNt)}
              s_cbranch_scc1 L_sl_tile
              s_cmp_lg_u32 {s(sM)}, 0
              s_cbranch_scc1 L_sl_fin
              s_mov_b32 {s(sM)}, 1
              v_mov_b32 v85, v86
              v_permlane32_swap_b32 v85, v86
              v_max_f32 v86, v85, v86
              s_branch L_sl_pass""")
        for nm, tg in (("L_sl_ok", "L_attn_ok"), ("L_sl_fin", "L_attn_fin")):
            a.label(nm)
            a(f"""s_cmp_eq_u32 {s(sRole)}, 0
                  s_cbranch_scc1 {tg}A
                  s_branch {tg}B""")

    def p3(self):
        a = self.a
        acc = [16, 32]; OF = 48
        wof = self.wof
        SPL = int(self.o.get("split", 9))
        self.tm("p3", 1)
        self.lds_spin(vCNT, C_FREE, 4, 3)
        self.tm("p3", 2)
        self.ts(6)
        for k in range(4):
            a.lds(f"ds_read_b128 {v(16+4*k,4)}, v6 offset:{2048*(k>>1) + 16*(k&1)}", f"y{k>>1}")
            a.lds(f"ds_read_b128 {v(32+4*k,4)}, v7 offset:{2048*(k>>1) + 16*(k&1)}", f"y{k>>1}")
        for rd in range(2):
            a.lg_wait(f"y{rd}")
            for q in range(8):
                a(f"v_add_f32 {v(16+8*rd+q)}, {v(16+8*rd+q)}, {v(32+8*rd+q)}")
            for q in range(4):
                a(f"v_cvt_pk_bf16_f32 {v(vP+4*rd+q)}, {v(16+8*rd+2*q)}, {v(16+8*rd+2*q+1)}")
            a.vmem(f"buffer_store_dwordx4 {v(vP+4*rd,4)}, v2, {s(sWS,4)}, {s(sYO)} offen offset:{1024*rd} sc1", "ys")
        a(f"""s_lshl_b32 {s(sT1)}, {s(sI)}, 11
              s_add_u32 m0, {s(sT1)}, {QF}
              s_add_u32 {s(sT0)}, {s(sXS)}, {16384 - 1024}""")
        a.vmem(f"buffer_load_dwordx4 v4, {s(sX,4)}, {s(sXS)} offen lds", "xm")
        a.vmem(f"buffer_load_dwordx4 v4, {s(sX,4)}, {s(sT0)} offen offset:1024 lds", "xm")
        nlate = 2 * len(self.wq)
        while self.wq: self.wload()
        a(f"s_setprio {self.o.get('bprio', 2)}")
        vYT, vYS, vFA, vXR, vOO, vG = 120, 121, 122, 14, 123, 124
        sPend, sTodo, sProc = sNt, sXc, sWc
        a(f"""v_rcp_f32 {v(vG)}, v84
              v_mov_b32 {v(vYT)}, v8
              v_mov_b32 {v(vYS)}, v9
              v_mov_b32 {v(vFA)}, v10
              v_mov_b32 v112, v12
              v_mov_b32 {v(vXR)}, v13
              v_mov_b32 {v(vOO)}, v1
              v_mov_b32 v32, v11
              v_xor_b32 v33, 16, v11
              v_xor_b32 v34, 32, v11
              v_xor_b32 v35, 48, v11
              v_sub_f32 {v(vG)}, 1.0, {v(vG)}
              v_xor_b32 {v(vXR+1)}, 16, {v(vXR)}
              v_mov_b32 {v(vG+1)}, {v(vG)}
              v_mov_b32 v116, 0
              v_mov_b32 v117, 0
              v_mov_b32 v118, 0
              v_mov_b32 v119, 0""")
        a.vm_wait("o")
        self.flag_store(sOF, 4)
        self.tm("p3", 3)
        a(f"""s_add_u32 {s(sRedo)}, {s(sOt)}, 8192
              s_add_u32 {s(sYF2)}, {s(sYS)}, {0x10000 - 1024}
              s_mov_b32 {s(sPend)}, 7
              s_mov_b32 {s(sTodo)}, 0
              s_mov_b32 {s(sProc)}, 8""")
        a.vm_wait("ys")
        self.flag_store(sYF, 4)
        self.ts(7)
        self.tm("p3", 4)
        OFS = [48, 80]
        def o_loads(late):
            so = sLO if late else sEO
            for j in range(8):
                a(f"buffer_load_dwordx4 {v(OFS[late]+4*j,4)}, v2, {s(sWS,4)}, {s(so)} offen offset:{2048*(j&1)} sc1")
                if j & 1 and j < 7:
                    a(f"s_add_u32 {s(so)}, {s(so)}, 4096")
        def o_mm(late):
            for j in range(8):
                for ct in range(2):
                    a(f"v_mfma_f32_32x32x16_bf16 {v(acc[ct],16)}, {v(wof(late,j,ct),4)}, {v(OFS[late]+4*j,4)}, {v(acc[ct],16)}")
        a("s_branch L_pl_p")
        a.label("L_pl_w")
        a(f"""s_mov_b32 {s(sProc)}, {s(sTodo)}
              s_sub_u32 {s(sBud)}, {s(sBud)}, 8
              s_waitcnt vmcnt(0)
              v_cmp_ne_u32 vcc, {s(sTag)}, v5
              s_cmp_gt_i32 {s(sBud)}, 0
              s_cselect_b64 vcc, vcc, 0
              s_cmp_eq_u32 vcc_lo, 0
              s_cselect_b32 {s(sT0)}, 1, 0
              s_and_b32 {s(sT1)}, vcc_hi, 0xff
              s_cselect_b32 {s(sT1)}, 0, 2
              s_or_b32 {s(sT0)}, {s(sT0)}, {s(sT1)}
              s_and_b32 {s(sT1)}, vcc_hi, 0xff00
              s_cselect_b32 {s(sT1)}, 0, 4
              s_or_b32 {s(sT0)}, {s(sT0)}, {s(sT1)}
              s_and_b32 {s(sTodo)}, {s(sT0)}, {s(sPend)}
              s_cbranch_scc0 L_pl_p
              s_andn2_b32 {s(sPend)}, {s(sPend)}, {s(sTodo)}
              s_bitcmp1_b32 {s(sTodo)}, 2
              s_cbranch_scc0 L_pl_i1""")
        self.ts(9)
        self.tm("p3", 9)
        o_loads(1)
        a.label("L_pl_i1")
        a(f"""s_bitcmp1_b32 {s(sTodo)}, 1
              s_cbranch_scc0 L_pl_i0""")
        self.tm("p3", 8)
        o_loads(0)
        a.label("L_pl_i0")
        a(f"""s_bitcmp1_b32 {s(sTodo)}, 0
              s_cbranch_scc0 L_pl_p
              buffer_load_dwordx4 {v(vYS)}, {s(sWS,4)}, {s(sYS)} offen sc1 lds
              buffer_load_dwordx4 {v(vYS)}, {s(sWS,4)}, {s(sYF2)} offen offset:1024 sc1 lds""")
        self.tm("p3", 7)
        a.label("L_pl_p")
        a(f"""s_cmp_eq_u32 {s(sPend)}, 0
              s_cbranch_scc1 L_pl_q
              v_mov_b32 v5, 0
              s_bitcmp1_b32 {s(sPend)}, 0
              s_cselect_b32 exec_lo, -1, 0
              s_mov_b32 exec_hi, 0xffff
              buffer_atomic_or v5, {v(vFA)}, {s(sWS,4)}, 0 offen sc0 sc1
              s_mov_b64 exec, -1""")
        a.label("L_pl_q")
        a(f"""s_cmp_eq_u32 {s(sProc)}, 0
              s_cbranch_scc1 L_pl_n
              s_bitcmp1_b32 {s(sProc)}, 3
              s_cbranch_scc0 L_pl_p0""")
        self.tm("p3", 5)
        a(f"s_waitcnt vmcnt({3 + nlate})")
        for q in range(4):
            a(f"ds_read_b64 {v(6+2*q,2)}, {v(32+q)}")
        Lx, Ly = a.newlabel("Lep"), a.newlabel("Leb")
        a(f"""s_or_b32 {s(sT0)}, s2, {s(sWave)}
              s_cmp_eq_u32 {s(sT0)}, 0
              s_cbranch_scc1 {Lx}""")
        a.label(Ly)
        keep = (a.lines, list(a.vm))
        a.lines = self.tail
        a.label(Lx)
        a(f"""v_and_b32 v3, 7, v0
              v_lshlrev_b32 v3, 3, v3
              v_bfe_u32 v4, v0, 3, 2
              v_lshl_add_u32 v3, v4, 7, v3
              v_lshrrev_b32 v4, 5, v0
              v_lshl_add_u32 v3, v4, 10, v3""")
        Le, Lf = a.newlabel("Lel"), a.newlabel("Lef")
        a.label(Le)
        for k in range(4):
            a(f"""s_mov_b32 {s(sT0)}, {FKV + 2048*k}
                  buffer_load_dword {v(16+k)}, v3, {s(sWS,4)}, {s(sT0)} offen sc1""")
        a(f"""s_waitcnt vmcnt(0)
              v_xor_b32 v16, {s(sTag)}, v16
              v_xor_b32 v17, {s(sTag)}, v17
              v_xor_b32 v18, {s(sTag)}, v18
              v_xor_b32 v19, {s(sTag)}, v19
              v_or3_b32 v16, v16, v17, v18
              v_or_b32 v16, v16, v19
              v_cmp_ne_u32 vcc, 0, v16
              s_cbranch_vccz {Lf}
              s_sub_u32 {s(sBud)}, {s(sBud)}, 8
              s_cmp_gt_i32 {s(sBud)}, 0
              s_cbranch_scc1 {Le}""")
        a.label(Lf)
        a(f"s_mov_b32 {s(sT0)}, 0")
        self.flag_store(sT0, 4)
        a(f"s_branch {Ly}")
        a.lines, a.vm = keep
        a("s_waitcnt lgkmcnt(0)")
        for ct in range(2):
            a(f"v_mfma_f32_32x32x16_bf16 {v(acc[ct],16)}, v[116:119], v[116:119], 0")
        self.ts(8)
        self.tm("p3", 6)
        a("s_branch L_pl_n")
        a.label("L_pl_p0")
        a(f"""s_bitcmp1_b32 {s(sProc)}, 0
              s_cbranch_scc0 L_pl_p1""")
        yt = [114, 116, 118, 120]
        for q in range(4):
            a(f"ds_read_b64_tr_b16 {v(yt[q],2)}, {v(vYT)} offset:{512*q}")
        for q in range(4):
            for d in range(2):
                xr, yr = 6 + 2 * q + d, yt[q] + d
                a(f"""v_lshlrev_b32 v0, 16, {v(xr)}
                      v_and_b32 v1, {s(sHi)}, {v(xr)}""")
                if d == 0: a(f"s_waitcnt lgkmcnt({3-q})")
                a(f"""v_pk_mul_f32 v[0:1], v[0:1], {v(vG,2)}
                      v_lshlrev_b32 v126, 16, {v(yr)}
                      v_and_b32 v127, {s(sHi)}, {v(yr)}
                      v_pk_fma_f32 {v(acc[0]+4*q+2*d,2)}, v[0:1], v[126:127], {v(acc[0]+4*q+2*d,2)}""")
        for q in range(1, 8):
            a(f"v_xor_b32 {v(112+q)}, {32*q}, v112")
        a.label("L_pl_p1")
        a(f"""s_bitcmp1_b32 {s(sProc)}, 1
              s_cbranch_scc0 L_pl_p2""")
        o_mm(0)
        a.label("L_pl_p2")
        a(f"""s_bitcmp1_b32 {s(sProc)}, 2
              s_cbranch_scc0 L_pl_n""")
        o_mm(1)
        a.label("L_pl_n")
        a(f"""s_cmp_lg_u32 {s(sPend)}, 0
              s_cbranch_scc1 L_pl_w
              s_cmp_eq_u32 {s(sTodo)}, 0
              s_cbranch_scc1 L_pl_x
              s_cmp_lg_u32 {s(sTodo)}, 4
              s_cbranch_scc1 L_pl_w""")
        for j in range(8):
            a(f"s_waitcnt vmcnt({7-j})")
            for ct in range(2):
                a(f"v_mfma_f32_32x32x16_bf16 {v(acc[ct],16)}, {v(wof(1,j,ct),4)}, {v(OFS[1]+4*j,4)}, {v(acc[ct],16)}")
        a.label("L_pl_x")
        self.tm("p3", 10)
        for ct in range(2):
            for q in range(4):
                a(f"ds_write_b128 {v(112+4*ct+q)}, {v(acc[ct]+4*q,4)}")
        a.lg_all()
        a("s_barrier")
        for rd in range(2):
            for src in range(2):
                for b in range(2):
                    a.lds(f"ds_read_b128 {v(48+16*rd+8*src+4*b,4)}, {v(vXR+b)} offset:{FXS*src + 2048*rd}", f"r{rd}")
        of = self.o.get("outflag", "")
        of = " " + of.replace("+", " ") if of else ""
        for rd in range(2):
            a.lg_wait(f"r{rd}")
            b = 48 + 16 * rd
            for q in range(0, 8, 2):
                a(f"v_pk_add_f32 {v(b+q,2)}, {v(b+q,2)}, {v(b+8+q,2)}")
            for q in range(4):
                a(f"v_cvt_pk_bf16_f32 {v(b+q)}, {v(b+2*q)}, {v(b+2*q+1)}")
            a(f"buffer_store_dwordx4 {v(b,4)}, {v(vOO)}, {s(sOUT,4)}, {s(sOt if rd == 0 else sRedo)} offen{of}")

    def dump_ts(self):
        a = self.a
        if self.o.get("padto") or (self.o.get("probe") and self.o["probe"][0] == self.role):
            self.o.setdefault("padto2", self.o.get("padto", 30))
            L = a.newlabel()
            a("s_waitcnt vmcnt(0)")
            if self.o.get("skew"):
                a("""v_mov_b32 v11, 0
                     v_mov_b32 v12, 0
                     s_mov_b64 exec, 1
                     global_load_dword v11, v12, s[96:97] sc1
                     s_waitcnt vmcnt(0)
                     v_readfirstlane_b32 s100, v11
                     s_not_b32 s100, s100""")
            a.label(L)
            a(f"""s_memrealtime s[4:5]
                  s_waitcnt lgkmcnt(0)
                  s_sub_u32 s4, s4, s100
                  s_cmp_lt_u32 s4, {int(self.o["padto2"])*100}
                  s_cbranch_scc1 {L}""")
        if not self.o.get("prof"):
            return
        a(f"""s_waitcnt vmcnt(0)
              s_memtime s[4:5]
              s_memrealtime s[6:7]
              s_waitcnt lgkmcnt(0)
              s_lshl_b32 {s(sT0)}, s2, 3
              s_add_u32 {s(sT0)}, {s(sT0)}, {s(sWave)}
              s_lshl_b32 {s(sT0)}, {s(sT0)}, 6
              s_add_u32 {s(sT0)}, {s(sT0)}, {DBG}
              v_mov_b32 v1, 0
              s_mov_b64 exec, 1""")
        for k in range(11):
            a(f"""v_mov_b32 v2, {s(sTS+2*k)}
                  buffer_store_dword v2, v1, {s(sWS,4)}, {s(sT0)} offen offset:{4*k}""")
        for k, r in ((11, 4), (12, 6), (13, sBud), (14, 26)):
            a(f"""v_mov_b32 v2, {s(r)}
                  buffer_store_dword v2, v1, {s(sWS,4)}, {s(sT0)} offen offset:{4*k}""")

    def insert_stubs(self):
        import subprocess, re as _re, tempfile, os
        a = self.a
        NP = 5
        k = a.lines.index("@IWARM@:")
        disp = []
        for p in range(NP):
            disp += [f"    s_cmp_eq_u32 {s(sI)}, {p % 4}", f"    s_cbranch_scc1 L_pg{p}", f"L_pgr{p}:"]
        a.lines = a.lines[:k] + disp + a.lines[k+1:]
        def sizes(lines):
            body = pad(lines)
            txt = ['.amdgcn_target "amdgcn-amd-amdhsa--gfx950"', ".text", "L_tab:", f"{NAME}_kernel:"]
            n = 0
            for l in body:
                txt.append(l.replace("@CODEMAX@", "0x4000"))
            for p in range(NP):
                if f"L_pg{p}:" not in lines: txt.append(f"L_pg{p}:")
            d = tempfile.mkdtemp()
            open(d + "/t.s", "w").write("\n".join(txt) + "\n")
            subprocess.run(["clang", "-x", "assembler", "-target", "amdgcn-amd-amdhsa", "-mcpu=gfx950", "-c", d + "/t.s", "-o", d + "/t.o"], check=True)
            out = subprocess.run(["llvm-objdump", "-t", d + "/t.o"], capture_output=True, text=True).stdout
            return {m.group(2): int(m.group(1), 16) for m in _re.finditer(r"^([0-9a-f]{16}) .*\s(\S+)$", out, _re.M)}
        for p in range(NP):
            marked = []
            for i, l in enumerate(a.lines):
                marked.append(f"M_{i}:"); marked.append(l)
            ad = sizes(marked)
            tgt = 4096 * (p + 1) - 768 - 4
            cand = [i for i in range(len(a.lines)) if ad[f"M_{i}"] >= tgt]
            if not cand:
                a.lines += [f"L_pg{p}:", f"    s_branch L_pgr{p}"]
                continue
            i = cand[0]
            a.lines = a.lines[:i] + [f"    s_branch L_pgs{p}", f"L_pg{p}:", f"    s_branch L_pgr{p}", f"L_pgs{p}:"] + a.lines[i:]
            if self.o.get("verbose"): print("stub", p, "before", a.lines[i+4], a.lines[i-1])

    def build(self):
        a = self.a
        if self.o.get("padto") or self.o.get("probe"):
            a("s_memrealtime s[100:101]")
        self.prologue()
        self.role = "B"
        self.loader_phase1()
        self.b_start()
        self.attention("B")
        self.p3()
        self.dump_ts()
        a.label("L_end")
        a("s_endpgm")
        self.role = "A"
        self.compute_phase1()
        self.conv()
        a.vm_all()
        self.flag_store(sOF, 4)
        self.dump_ts()
        a("s_endpgm")
        a.lines += self.tail
        self.attn_slow()
        a.label("L_codeend")
        i0, i1 = a.lines.index("L_compute:"), a.lines.index("@AEND@:")
        blk = a.lines[i0:i1]
        a.lines = a.lines[:i0] + a.lines[i1+1:]
        k = a.lines.index("@ASTART@:")
        a.lines = a.lines[:k] + blk + a.lines[k+1:]
        if self.o.get("iw"):
            self.insert_stubs()
        body = pad(a.lines, verbose=True)
        hdr = open("cdna_kernels/" + NAME + ".s.ref").read().split("\n")
        head = [l for l in hdr if l.startswith(";") and "@launch" not in l and "Override" not in l and "grid=ceil" not in l]
        out = head + [f"; @launch grid=(256,1,1) block=(512,1,1) lds={LDS_BYTES}",
                      '.amdgcn_target "amdgcn-amd-amdhsa--gfx950"', ".text", f".globl {NAME}_kernel", ".p2align 12" if not self.o.get("noal") else ".p2align 8",
                      f".type {NAME}_kernel,@function", f"{NAME}_kernel:"] + body + [
            '.section .rodata,"a"', ".p2align 6", f".amdhsa_kernel {NAME}_kernel",
            "  .amdhsa_next_free_vgpr 256", "  .amdhsa_next_free_sgpr 102", "  .amdhsa_accum_offset 256",
            "  .amdhsa_group_segment_fixed_size 0", "  .amdhsa_kernarg_size 104", "  .amdhsa_user_sgpr_count 2",
            "  .amdhsa_user_sgpr_kernarg_segment_ptr 1", "  .amdhsa_system_sgpr_workgroup_id_x 1",
            ".end_amdhsa_kernel", ""]
        txt = "\n".join(out)
        tab = [".p2align 8", ".type L_tab,@object", "L_tab:"]
        def longs(vals):
            for k in range(0, len(vals), 16):
                tab.append(".long " + ",".join(str(x) if x < 100000 else hex(x) for x in vals[k:k+16]))
        for w in range(8):
            st = self.stB if w < 4 else self.stA
            longs([c[w & 3] for c in st.wc] + [0] * (16 - len(st.wc)))
        tab.append(f".zero {T_PB - 512}")
        for st in (self.stB, self.stA):
            longs(st.data())
            tab.append(f".zero {8192 - 1024 * st.nq()}")
        for wg in range(256):
            for w in range(4):
                t = wg_table(wg, w)
                longs(t)
                tab.append(f".zero {128 - 4 * len(t)}")
        txt += "\n".join(tab) + "\n"
        txt = txt.replace("@CODEMAX@", f"(L_codeend - {NAME}_kernel - 260)")
        print("patterns A/B:", len(self.stA.pat), len(self.stB.pat), "wave consts", len(self.stA.wc), len(self.stB.wc))
        return txt

if __name__ == "__main__":
    opt = {}
    outp = "cdna_kernels/" + NAME + ".s"
    for arg in sys.argv[1:]:
        if arg.startswith("-o"):
            outp = arg[2:]
        elif "=" in arg:
            k, val = arg.split("=", 1)
            opt[k] = val
        else:
            opt[arg] = True
    txt = Gen(opt).build()
    open(outp, "w").write(txt)
    print("wrote", outp, len(txt.split("\n")), "lines")
```

```python
import sys, struct
from asmlib import *

NAME = "gated_mix__sliding_block__ssm_conv_h3__prompt"

LB = 65536
QF = 81920
EX0 = 90112
KC = 98304
KCS = 4224
PY = 115200
RR = 131584
RS = 4576
EX1 = 150016
GW = 158208
GP = 159232
SW = 159744
CNT = 160256
XM = 160000 - 160000 % 256 + 256
LDS_BYTES = 163840
C_KVL, C_PART, C_FREE, C_WO, C_CONV, C_RD2 = 0, 16, 32, 36, 40, 44
WOB = EX0
YXB = LB + 16384
XXB = 155648
FX = KC
FXS = RR - KC

FKV, FO, FY, FU = 0x2000, 0x4000, 0x8000, 0x1000
def fidx(n): return (n >> 4) * 128 + (n & 15) * 4
UG, KVG, YG, OG, DBG = 0x100000, 0x300000, 0x700000, 0x900000, 0xC00000
WFG = 0xB00000
for _a in sys.argv:
    if _a.startswith("kvoff="): KVG = int(_a[6:], 0)
HQX = 2
for _a in sys.argv:
    if _a.startswith('hqx='): HQX = int(_a[4:])
UX = 1
for _a in sys.argv:
    if _a.startswith('ux='): UX = int(_a[3:])
MAP = 1
for _a in sys.argv:
    if _a.startswith('map='): MAP = int(_a[4:])
WS_BYTES = 0x2000000
TAGC = 0x9E3779B9

sX, sW, sWO, sK, sV, sSK, sWS, sOUT = 32, 36, 40, 44, 48, 52, 56, 60
sWave, sRb, sHq, sRot, sTB, sTag, sI, sI4096, sBud, sHi = 64, 65, 66, 67, 68, 70, 71, 72, 73, 3
sT0, sT1, sT2, sT3, sT4, sT5 = 74, 75, 76, 77, 78, 79
sRole, sRedo, sOne = 31, 30, 27
sEx = 0
sOO, sOF, sNt = 4, 5, 6
sU0, sUF, sKO, sKO2, sKF = 7, 8, 9, 10, 11
sUS, sTs, sK4, sYO, sYF, sXS, sYS, sYF2, sOt, sEF, sEO, sKVF, sKVS, sWoS, sKt0 = 7, 9, 10, 11, 12, 13, 14, 15, 16, 17, 18, 19, 20, 21, 22
sD, sQFw, sPw, sKVLw = 32, 33, 34, 35
sTw = 23
sXc, sWc, sUbad, sRem, sKm, sWq1, sLO = 24, 25, 23, 44, 45, 46, 47
sWT = 80
sTS = 80
sFLS = [24, 13, 32, 33, 34, 35, 48, 49, 50]

def wg_decode(wg):
    xcd, loc = wg & 7, wg >> 3
    hb, rg = ((xcd & 1, xcd >> 1) if MAP < 2 else (xcd >> 2, xcd & 3))
    rb = 8 * rg + (loc & 7)
    hq = ((2 * (loc >> 3) + hb) if MAP & 1 else (4 * hb + (loc >> 3))) ^ HQX
    return rb, hq, 32 * xcd + loc

def wg_table(wg, w):
    rb, hq, cp = wg_decode(wg)
    i = w & 3
    qt = (i & 1) if w < 4 else (i & 1) ^ 1
    tt = 2 * rb + qt
    t = [OG + (tt * 32 + 4 * hq + i) * 1024, FO + fidx(tt * 32 + 4 * hq + i), min(tt + 1, 9)]
    if w >= 4:
        rt, ct = i >> 1, i & 1
        g16 = 4 * hq + i
        pair, kt = 2 * hq + ct, 2 * rb + rt
        ko = KVG + (pair * 128 + kt) * 2048
        t += [UG + g16 * 65536 + (248 - 8 * rb) * 64, FU + (g16 * 32 + rb) * 128, ko, ko + 0x20000, FKV + (pair * 64 + kt) * 128]
    else:
        kh, rt = i >> 1, i & 1
        ch = 2 * cp + kh
        cb = 2 * hq + kh
        e = tt * 32 + 16 * kh + rt
        t += [UG + (cp >> 1) * 16384 + (cp & 1) * 32 + i * 4096,
              FU + (cp >> 3) * 128 + max(23 - 8 * i, 0) * 4,
              cp * 8192, ch * 4096 + 4 * rt + 4,
              YG + ch * 4096 + rt * 2048, FY + fidx(rt * 512 + ch),
              tt * 32768 + cb * 64,
              YG + cb * 131072 + tt * 64,
              FY + fidx((rb >> 4) * 512 + cb * 32),
              tt * 32768 + kh * 16384 + hq * 128,
              FO + fidx(e), OG + e * 1024,
              FKV + cb * 512,
              KVG + ((4 * hq + i) * 64 + 2 * rb - 8) * 2048,
              WFG + hq * 65536 + (16 * kh + rt) * 2048 + kh * 1024,
              (2 * rb - 8) & 0xffffffff,
              FU + (hq ^ UX) * 512 + kh * 64 - 64]
    return t

class Setup:
    def __init__(self, tbase):
        self.pat = []; self.wc = []; self.ops = []; self.tbase = tbase
    def p(self, f):
        vals = [f(l) & 0xffffffff for l in range(64)]
        if vals not in self.pat: self.pat.append(vals)
        return self.tbase + self.pat.index(vals)
    def w(self, f):
        vals = [f(i) & 0xffffffff for i in range(4)]
        if vals not in self.wc: self.wc.append(vals)
        assert len(self.wc) <= 16
        return sWT + self.wc.index(vals)
    def add(self, d, pf, wf): self.ops.append(f"v_add_u32 {v(d)}, {s(self.w(wf))}, {v(self.p(pf))}")
    def xor(self, d, pf, wf): self.ops.append(f"v_xor_b32 {v(d)}, {s(self.w(wf))}, {v(self.p(pf))}")
    def mov(self, d, pf): self.ops.append(f"v_mov_b32 {v(d)}, {v(self.p(pf))}")
    def keep(self, d, wf): self.ops.append(f"s_mov_b32 {s(d)}, {s(self.w(wf))}")
    def raw(self, t): self.ops += [x.strip() for x in t.split("\n")]
    def nq(self): return (len(self.pat) + 3) // 4
    def data(self):
        pat = self.pat + [[0] * 64] * (4 * self.nq() - len(self.pat))
        return [pat[4 * q + c][l] for q in range(self.nq()) for l in range(64) for c in range(4)]
    def attn(self, qt):
        l16 = lambda l: l * 16
        vl = lambda l: 1024 + (l >> 5) * 256 + (l & 15) * 16
        pos = [lambda i: LB + i * 4096 + qt(i) * 2048,
               lambda i: LB + i * 4096 if qt(i) else i * 16384 + 7 * 2048,
               lambda i: i * 16384 + qt(i) * 2048]
        self.add(14, l16, lambda i: QF + (2 * i + qt(i)) * 1024)
        self.add(15, lambda l: (l & 31) * 8, lambda i: GP + qt(i) * 256)
        for k in range(3):
            self.add(120 + k, l16, pos[k]); self.add(123 + k, vl, pos[k])
        self.raw(f"""s_mov_b32 {s(sRedo)}, 0
                     s_mov_b32 {s(sOne)}, 0x3f803f80
                     s_mov_b32 {s(sEx)}, 0xffff
                     s_mov_b32 {s(sEx+1)}, 0xffff
                     s_mov_b32 {s(sBud)}, 0x40000
                     s_mov_b32 {s(sHi)}, 0xffff0000
                     v_mov_b32 {v(126)}, {CNT}
                     v_mov_b32 {v(127)}, 1""")

T_WAVE, T_PB, T_PA, T_WG = 0, 1024, 1024 + 8192, 1024 + 16384
NQ = 5

LOG2E = 1.4426950408889634

def f2u(x):
    return struct.unpack("<I", struct.pack("<f", x))[0]

vO, vVf, vQ, vP, vKf, vMU = 48, 64, 80, 88, 96, 104
vML = vO
vKA, vUA, vQA, vGA, vDF = 84, 85, 86, 87, 116
vAK, vAV, vCNT, vONE = 120, 123, 126, 127

class Gen:
    def __init__(self, opt):
        self.o = opt
        self.a = Asm()
        self.tail = []
        self.role = "*"

    def tss(self, st, pre):
        m = self.o.get("prof")
        if isinstance(m, str) and m.startswith("pre" if pre else "post"):
            base = int(m[3:] if pre else m[4:])
            if 0 <= st - base < 10:
                self.a(f"s_memtime {s(sTS + 2 * (st - base + 1), 2)}")

    def tm(self, mode, k):
        if self.o.get("prof") == mode:
            self.a(f"s_memtime {s(sTS + 2 * k, 2)}")

    def ts(self, k):
        pr = self.o.get("probe")
        if pr and int(pr[1:]) == k and (self.role == pr[0] or self.role == "*"):
            self.a("s_memrealtime s[100:101]")
        if self.o.get("prof") is True or (self.o.get("prof") and k == 0):
            self.a(f"s_memtime {s(sTS + 2 * k, 2)}")

    def lds_spin(self, vaddr, off, target, vt):
        a = self.a
        L, D = a.newlabel("Lsp"), a.newlabel("Lsd")
        a.label(L)
        a(f"""ds_read_b32 {v(vt)}, {v(vaddr)} offset:{off}
              s_waitcnt lgkmcnt(0)
              v_readfirstlane_b32 {s(sT5)}, {v(vt)}
              s_cmp_ge_u32 {s(sT5)}, {target}
              s_cbranch_scc1 {D}
              s_sleep 1
              s_sub_u32 {s(sBud)}, {s(sBud)}, 1
              s_cmp_gt_i32 {s(sBud)}, 0
              s_cbranch_scc1 {L}""")
        a.label(D)
        a.lg = []

    def lds_signal(self, vaddr, off):
        a = self.a
        a(f"""s_mov_b64 exec, 1
              ds_add_u32 {v(vaddr)}, {v(vONE)} offset:{off}
              s_mov_b64 exec, -1""")
        a.lg.append("sig")

    def look(self, vt, voff, soff, mask):
        return f"""v_mov_b32 {v(vt)}, {s(sTag)}
                   s_mov_b64 exec, {mask}
                   v_mov_b32 {v(vt)}, 0
                   buffer_atomic_or {v(vt)}, {v(voff)}, {s(sWS,4)}, {soff} offen sc0 sc1
                   s_mov_b64 exec, -1"""

    def poll(self, voff, soff, vt, mask, first_done=False):
        a = self.a
        L, C, D = a.newlabel("Lpl"), a.newlabel("Lpc"), a.newlabel("Lpd")
        if first_done:
            a(f"s_branch {C}")
        a.label(L)
        a(self.look(vt, voff, soff, mask))
        a("s_waitcnt vmcnt(0)")
        a.label(C)
        a(f"""v_cmp_ne_u32 vcc, {s(sTag)}, {v(vt)}
              s_cbranch_vccz {D}
              s_sleep {int(self.o.get("sleep", 1))}
              s_sub_u32 {s(sBud)}, {s(sBud)}, 8
              s_cmp_gt_i32 {s(sBud)}, 0
              s_cbranch_scc1 {L}""")
        a.label(D)
        if not first_done:
            a.vm = []

    def flag_store(self, soff, vt):
        a = self.a
        a(f"""v_mov_b32 {v(vt)}, {s(sTag)}
              s_mov_b64 exec, 1""")
        a.vmem(f"buffer_atomic_swap {v(vt)}, off, {s(sWS,4)}, {s(soff)} sc1", "flag")
        a("s_mov_b64 exec, -1")

    def srd_const(self, d, size):
        self.a(f"""s_mov_b32 {s(d+2)}, {size}
                   s_mov_b32 {s(d+3)}, 0x20000""")

    def srd_ptr(self, d, p):
        self.a(f"s_mov_b64 {s(d,2)}, {s(p,2)}")

    def prologue(self):
        a = self.a
        a(f"""s_load_dwordx16 s[4:19], s[0:1], 0
              s_load_dwordx8 s[20:27], s[0:1], 64
              s_load_dwordx2 s[28:29], s[0:1], 96
              s_cmp_ge_u32 s2, 256
              s_cbranch_scc1 L_end""")
        if self.o.get("prof"):
            a("s_memtime s[96:97]\ns_memrealtime s[98:99]")
        a(f"""v_lshrrev_b32 v1, 6, v0
              v_and_b32 v0, 63, v0
              v_readfirstlane_b32 {s(sWave)}, v1
              s_getpc_b64 {s(sTB,2)}
              s_add_u32 {s(sTB)}, {s(sTB)}, L_tab@rel32@lo+4
              s_addc_u32 {s(sTB+1)}, {s(sTB+1)}, L_tab@rel32@hi+12
              s_cmp_lt_u32 {s(sWave)}, 4
              s_cbranch_scc1 L_loader
              v_lshlrev_b32 v2, 4, v0
              v_add_u32 v1, {T_PA + 4096}, v2""")
        for q in range(NQ):
            a(f"global_load_dwordx4 {v(128+4*q,4)}, v1, {s(sTB,2)} offset:{1024*q - 4096}")
        if not self.o.get("notb"):
            a(f"""v_lshlrev_b32 v3, 7, v0
                  s_lshl_b32 {s(sT0)}, s2, 9
                  s_add_u32 {s(sT0)}, {s(sT0)}, {T_WG}
                  v_add_u32 v4, {s(sT0)}, v3
                  s_bfe_u32 {s(sT0)}, s2, 0x30003
                  s_lshl_b32 {s(sT0)}, {s(sT0)}, 9
                  s_add_u32 {s(sT0)}, {s(sT0)}, {T_PB - 512}
                  v_add_u32 v3, {s(sT0)}, v3
                  s_mov_b64 vcc, 15
                  v_cndmask_b32 v3, v3, v4, vcc
                  s_cmp_eq_u32 {s(sWave)}, 4
                  s_cselect_b64 exec, 0xff, 1
                  global_load_dword v255, v3, {s(sTB,2)}
                  s_mov_b64 exec, -1""")
        if (not self.o.get("nocw")):
            CWN = int(self.o.get("cwn", 8))
            a(f"""s_bfe_u32 {s(sT0)}, s2, {0x30003 if CWN == 8 else 0x40003}
                  s_mul_i32 {s(sT0)}, {s(sT0)}, {(192 // CWN) * 128}
                  v_lshlrev_b32 v3, 7, v0
                  v_add_u32 v3, {s(sT0)}, v3
                  v_min_u32 v3, @CODEMAX@, v3
                  s_getpc_b64 {s(sT2,2)}
                  s_and_b32 {s(sT2)}, {s(sT2)}, 0xffffff00
                  s_cmp_eq_u32 {s(sWave)}, 5
                  s_cselect_b64 exec, {(1 << (192 // CWN)) - 1}, 1
                  global_load_dword v255, v3, {s(sT2,2)}
                  s_mov_b64 exec, -1""")
        if not self.o.get("lateA"):
            self.scalar_tables()
        a("s_branch L_compute")
        a.label("L_loader")

    def decode(self):
        self.a(f"""s_bfe_u32 {s(sRb)}, s2, {0x20001 if MAP < 2 else 0x20000}
              s_bfe_u32 {s(sT2)}, s2, 0x30003                ; local & 7
              s_lshl3_add_u32 {s(sRb)}, {s(sRb)}, {s(sT2)}
              s_bfe_u32 {s(sHq)}, s2, {0x10000 if MAP < 2 else 0x10002}
              s_lshr_b32 {s(sT2)}, s2, 6
              s_lshl1_add_u32 {s(sRot)}, {s(sT2)}, {s(sRb)}
              {"s_lshl1_add_u32 %s, %s, %s" % (s(sHq), s(sT2), s(sHq)) if MAP & 1 else "s_lshl2_add_u32 %s, %s, %s" % (s(sHq), s(sHq), s(sT2))}
              {"s_xor_b32 %s, %s, %d" % (s(sHq), s(sHq), HQX) if HQX else ""}
              s_and_b32 {s(sRot)}, {s(sRot)}, 7
              s_and_b32 {s(sI)}, {s(sWave)}, 3""")

    def scalar_tables(self):
        self.a(f"""s_lshl_b32 {s(sT0)}, {s(sWave)}, 6
              s_load_dwordx16 {s(sWT,16)}, {s(sTB,2)}, {s(sT0)}""")

    def setup_done(self):
        if self.o.get("prof"):
            self.a(f"s_mov_b32 {s(sTS)}, s96\ns_mov_b32 s26, s98")
            for k in range(1, 11):
                self.a(f"s_mov_b32 {s(sTS+2*k)}, 0")

    def mask_ops(self, vn, vz):
        out = [[f"v_mov_b32 {v(vn)}, 0xf149f2ca", f"v_mov_b32 {v(vz)}, 0"]]
        for r in range(16):
            jj = (r & 3) + 8 * (r >> 2)
            out.append([f"s_lshl_b32 vcc_lo, -1, {jj}", f"s_lshl_b32 vcc_hi, -1, {jj+4}",
                        f"v_cndmask_b32 {v(vML+r)}, {v(vn)}, {v(vz)}, vcc",
                        f"v_cndmask_b32 {v(vMU+r)}, {v(vz)}, {v(vn)}, vcc"])
        return out

    def const_ops(self):
        if self.o.get("allones"):
            return [[f"v_mov_b32 {v(vVf+r)}, {s(sOne)}"] for r in range(16)]
        out = [["s_mov_b32 vcc_lo, 0x110000", "s_mov_b32 vcc_hi, 0x110000", f"v_mov_b32 {v(vVf+1)}, {s(sOne)}",
                f"v_cndmask_b32 {v(vVf)}, 0, {v(vVf+1)}, vcc"]]
        for r in range(1, 16):
            out.append([f"v_mov_b32 {v(vVf+r)}, {v(vVf)}"])
        return out

    def u_reads(self, j):
        a = self.a
        kq, vq = 200 + 10 * j, 206 + 10 * j
        if j == 1:
            a("v_xor_b32 v192, 16, v192\nv_xor_b32 v193, 16, v193")
        a.lds(f"ds_read_b64_tr_b16 {v(kq,2)}, v192 offset:512", f"u{j}")
        a.lds(f"ds_read_b64_tr_b16 {v(kq+2,2)}, v193 offset:1024", f"u{j}")
        a.lds(f"ds_read_b64_tr_b16 {v(kq+4,2)}, v193 offset:1536", f"u{j}")
        a.lds(f"ds_read_b64_tr_b16 {v(vq,2)}, v192 offset:9216", f"u{j}")
        a.lds(f"ds_read_b64_tr_b16 {v(vq+2,2)}, v192 offset:9728", f"u{j}")

    def u_math(self, j):
        a = self.a
        kq, vq, sw, kx, ks, vf, pk = 200 + 10 * j, 206 + 10 * j, 196 + 2 * j, 220, 226, 234, 244 + 4 * j
        a.lg_wait(f"u{j}")
        a(f"""v_alignbit_b32 {v(sw)}, {v(sw)}, {v(sw)}, 16
              v_alignbit_b32 {v(sw+1)}, {v(sw+1)}, {v(sw+1)}, 16""")
        for q in range(5):
            a(f"v_alignbit_b32 {v(kx+q)}, {v(kq+q+1)}, {v(kq+q)}, 16")
        def lo(t): return kq + (t + 1) // 2 if t & 1 else kx + t // 2
        def hi(t): return kq + (t + 3) // 2 if t & 1 else kx + (t + 2) // 2
        order = [1, 3, 5, 7, 0, 2, 4, 6]
        for t in order:
            a(f"v_dot2_f32_bf16 {v(ks+t)}, {v(lo(t))}, {v(sw+1)}, 0")
        for t in order:
            a(f"v_dot2_f32_bf16 {v(ks+t)}, {v(hi(t))}, {v(sw)}, {v(ks+t)}")
        for t in range(8):
            src = vq + (t >> 1)
            if t & 1: a(f"v_and_b32 {v(vf+t)}, {s(sHi)}, {v(src)}")
            else:     a(f"v_lshlrev_b32 {v(vf+t)}, 16, {v(src)}")
        for t in range(0, 8, 2):
            a(f"v_pk_mul_f32 {v(ks+t,2)}, {v(ks+t,2)}, {v(vf+t,2)}")
        for q in range(4):
            a(f"v_cvt_pk_bf16_f32 {v(pk+q)}, {v(ks+7-2*q)}, {v(ks+6-2*q)}")
        if j == 1:
            a(f"s_add_u32 {s(sU0)}, {s(sU0)}, 0x8000")
        a.vmem(f"buffer_store_dwordx4 {v(pk,4)}, v194, {s(sWS,4)}, {s(sU0)} offen sc1", "ust")

    def loader_phase1(self):
        a = self.a
        vXa, vXb, vWa, vWb, vKVo, vK0 = 16, 17, 18, 19, 20, 21
        vHd, vHa, vUo, vFo, vRa, vFu, vKc = 22, 23, 24, 25, 26, 27, 28
        a.vm = []; a.lg = []
        ldf = " nt" if self.o.get("ntkv") else ""
        ldx = " nt" if self.o.get("ntx") else ""
        ldw = " nt" if self.o.get("ntw") else ""
        st = self.stB = Setup(128)
        kh = lambda i: i >> 1
        rt = lambda i: i & 1
        l16 = lambda l: l * 16
        st.attn(rt)
        st.mov(2, l16)
        st.mov(28, lambda l: ((((l >> 4) & 1) + (l & 15) - 15) * 4) | ((l >> 5) << 12))
        st.mov(vHa, lambda l: KC + (l >> 4) * KCS + (l & 15) * 4)
        st.add(31, l16, lambda i: RR + 4096 + i * RS)
        st.add(vRa, lambda l: RR + (l & 1) * 2 * RS + (l >> 1) * 16, lambda i: i * 1024)
        st.mov(vUo, lambda l: (l >> 1) * 64 + (l & 1) * 16)
        st.mov(4, lambda l: (l >> 2) * 1024 + (((l >> 4) ^ l) & 3) * 16)
        st.add(11, lambda l: QF + (l & 31) * 64 + ((l >> 2) & 3) * 16 + (l >> 5) * 8, lambda i: i * 2048)
        ex = lambda i: (EX1 if kh(i) else EX0)
        st.add(6, lambda l: l * 32, lambda i: ex(i) + rt(i) * 4096)
        st.add(7, lambda l: l * 32, lambda i: PY + i * 4096)
        trc = lambda l: (l & 3) * 8 + ((l >> 4) & 1) * 32
        trr = lambda l: 4 * (l >> 5) + ((l >> 2) & 3)
        st.add(8, lambda l: QF + trr(l) * 64 + trc(l), lambda i: i * 2048)
        st.mov(9, lambda l: (l >> 2) * 4096 + (l & 3) * 16)
        st.mov(10, lambda l: fidx(l) if l < 32 else (l & 7) * 8 + ((l >> 3) & 1) * 4)
        st.add(12, lambda l: (l & 31) * 256 + (((l >> 5) ^ l) & 7) * 16, lambda i: FX + rt(i) * 8192 + kh(i) * (FXS + 128))
        st.add(13, lambda l: (l >> 3) * 256 + ((2 * (l & 7)) ^ (l >> 3)) * 16, lambda i: FX + rt(i) * 8192 + kh(i) * 4096)
        st.mov(1, lambda l: (l >> 3) * 1024 + (l & 7) * 16)
        st.keep(sKm, lambda i: KC + 64 + i * KCS)
        a("s_setprio 3")
        self.decode()
        a(f"""v_lshrrev_b32 v2, 3, v0            ; r
              v_and_b32 v3, 7, v0                ; c'
              v_lshrrev_b32 v4, 4, v0            ; r>>1
              v_and_b32 v5, 1, v4                ; (r>>1)&1
              s_lshl_b32 {s(sT0)}, {s(sI)}, 3
              v_add_u32 v6, {s(sT0)}, v2         ; 8i + r
              s_lshl_b32 {s(sT1)}, {s(sI)}, 1
              v_add_u32 v7, {s(sT1)}, v5
              v_xor_b32 v7, v7, v3
              v_lshlrev_b32 v7, 4, v7
              v_lshl_add_u32 {v(vKVo)}, v6, 10, v7
              s_lshl_b32 {s(sT2)}, {s(sRb)}, 16
              s_lshl_b32 {s(sT5)}, {s(sHq)}, 7
              s_add_u32 {s(sT2)}, {s(sT2)}, {s(sT5)}
              {"s_xor_b32 %s, %s, %d" % (s(sT2), s(sT2), UX * 128) if UX else ""}
              s_add_u32 {s(sT3)}, {s(sI)}, 1                 ; k rows sit one piece further in the staging area
              s_xor_b32 {s(sT3)}, {s(sT3)}, {s(sI)}
              s_and_b32 {s(sT3)}, {s(sT3)}, 3
              s_lshl_b32 {s(sT3)}, {s(sT3)}, 5
              v_xor_b32 {v(vK0)}, {s(sT3)}, {v(vKVo)}
              s_lshr_b32 {s(sT3)}, {s(sI)}, 1
              v_xor_b32 v8, {s(sT3)}, v0
              v_lshlrev_b32 v8, 4, v8
              s_lshl_b32 {s(sT3)}, {s(sI)}, 10
              s_add_u32 {s(sT3)}, {s(sT3)}, {s(sT2)}
              s_sub_u32 {s(sT3)}, {s(sT3)}, 0x1000
              v_add_u32 v8, {s(sT3)}, v8
              s_lshl2_add_u32 {s(sT3)}, {s(sHq)}, {s(sI)}
              {"s_xor_b32 %s, %s, %d" % (s(sT3), s(sT3), UX * 4) if UX else ""}
              s_lshl_b32 {s(sT3)}, {s(sT3)}, 7
              v_lshlrev_b32 v9, 4, v0
              v_add_u32 v9, {s(sT3)}, v9
              s_add_u32 {s(sT3)}, {s(sT1)}, {s(sRot)}
              v_add_u32 v10, {s(sT3)}, v2
              v_and_b32 v10, 7, v10
              v_lshlrev_b32 v10, 7, v10
              v_lshl_add_u32 v10, v3, 4, v10
              v_lshlrev_b32 v11, 2, v5
              v_xor_b32 v11, v11, v3
              v_lshlrev_b32 v11, 4, v11
              v_lshl_add_u32 v11, v2, 10, v11
              s_lshl2_add_u32 {s(sT3)}, {s(sRb)}, {s(sI)}
              s_lshl_b32 {s(sT3)}, {s(sT3)}, 12
              s_add_u32 {s(sT3)}, {s(sT3)}, {s(sT5)}
              v_add_u32 v11, {s(sT3)}, v11
              v_add_u32 v6, {s(sT0)}, v6         ; 16i + r
              v_xor_b32 v7, v4, v3
              v_lshlrev_b32 v7, 4, v7
              v_lshl_add_u32 {v(vXa)}, v6, 10, v7
              v_xor_b32 {v(vXb)}, 64, {v(vXa)}
              v_add_u32 {v(vXb)}, 7168, {v(vXb)}
              v_lshlrev_b32 v7, 2, v5
              v_xor_b32 v7, v7, v3
              v_lshlrev_b32 v7, 4, v7
              v_mul_u32_u24 {v(vWa)}, 0xc00, v6
              v_add_u32 {v(vWa)}, {v(vWa)}, v7
              v_add_u32 {v(vWb)}, 23552, {v(vWa)}
              s_lshl_b32 {s(sI4096)}, {s(sI)}, 12
              s_lshl_b32 {s(sT1)}, {s(sI)}, 10
              s_lshl_b32 {s(sT3)}, {s(sI)}, 7
              s_add_u32 {s(sT4)}, {s(sT2)}, 0x8000""")
        self.srd_const(sK, 0x200000); self.srd_const(sV, 0x200000)
        self.srd_const(sX, 0x200000); self.srd_const(sW, 0x180000 + 2048); self.srd_const(sOUT, 0x200000)
        a(f"""s_add_u32 m0, {s(sT3)}, {SW}
              s_mov_b64 exec, 0xff
              s_waitcnt lgkmcnt(0)""")
        a.vmem("global_load_lds_dwordx4 v9, s[16:17]", "kv")
        a(f"s_add_u32 m0, {s(sT3)}, {RR + 512}")
        self.srd_ptr(sK, 12)
        a.vmem(f"buffer_load_dwordx4 v8, {s(sK,4)}, 0 offen{ldf} lds", "kv")
        a(f"""s_lshl2_add_u32 m0, {s(sT3)}, {EX1}
              s_mov_b32 exec_lo, -1""")
        a.vmem("global_load_lds_dwordx4 v11, s[8:9]", "kv")
        a(f"""s_mov_b64 exec, -1
              s_add_u32 m0, {s(sT1)}, {RR + 1024}""")
        self.srd_ptr(sV, 14)
        a.vmem(f"buffer_load_dwordx4 {v(vK0)}, {s(sK,4)}, {s(sT2)} offen{ldf} lds", "kv")
        a(f"s_add_u32 m0, {s(sT1)}, {RR + 1024 + 4096}")
        self.srd_ptr(sX, 4)
        a.vmem(f"buffer_load_dwordx4 {v(vK0)}, {s(sK,4)}, {s(sT4)} offen{ldf} lds", "kv")
        a(f"""s_add_u32 m0, {s(sT1)}, {RR + 9216}
              s_lshl_b32 {s(sT3)}, {s(sT3)}, 1""")
        a.vmem(f"buffer_load_dwordx4 {v(vKVo)}, {s(sV,4)}, {s(sT2)} offen{ldf} lds", "kv")
        a(f"""s_add_u32 m0, {s(sT1)}, {RR + 9216 + 4096}
              s_nop 0""")
        a.vmem(f"buffer_load_dwordx4 {v(vKVo)}, {s(sV,4)}, {s(sT4)} offen{ldf} lds", "kv")
        a(f"""s_add_u32 m0, {s(sT3)}, {GW}
              s_mov_b64 exec, 0xffff""")
        a.vmem("global_load_lds_dwordx4 v10, s[22:23]", "st0")
        a(f"""s_mov_b64 exec, -1
              s_sub_u32 {s(sW)}, s6, 2048""")
        self.srd_ptr(sOUT, 24)
        a(f"""s_subb_u32 {s(sW+1)}, s7, 0
              s_lshl_b32 {s(sXc)}, {s(sRot)}, 7
              s_lshl_b32 {s(sT0)}, {s(sRb)}, 16
              s_add_u32 {s(sXc)}, {s(sXc)}, {s(sT0)}
              s_mul_i32 {s(sWc)}, {s(sRot)}, 0x30000
              s_add_u32 {s(sWc)}, {s(sWc)}, {s(sT5)}
              s_add_u32 {s(sWc)}, {s(sWc)}, 1024""")

        def adv_w():
            a(f"""s_add_u32 {s(sWc)}, {s(sWc)}, 0x30000
                  s_sub_u32 {s(sT0)}, {s(sWc)}, 0x180000
                  s_cselect_b32 {s(sWc)}, {s(sWc)}, {s(sT0)}""")
        def issue_stage(st):
            tag = f"st{st}"
            a(f"s_add_u32 m0, {s(sI4096)}, {(st % 6) * 16384}")
            if st < 8:
                a("s_nop 0")
                a.vmem(f"buffer_load_dwordx4 {v(vXa)}, {s(sX,4)}, {s(sXc)} offen{ldx} lds", tag)
                a.vmem(f"buffer_load_dwordx4 {v(vWa)}, {s(sW,4)}, {s(sWc)} offen offset:2048{ldw} lds", tag)
                a.vmem(f"buffer_load_dwordx4 {v(vXb)}, {s(sX,4)}, {s(sXc)} offen offset:1024{ldx} lds", tag)
                a.vmem(f"buffer_load_dwordx4 {v(vWb)}, {s(sW,4)}, {s(sWc)} offen offset:3072{ldw} lds", tag)
                a(f"""s_add_u32 {s(sT0)}, {s(sXc)}, 128
                      s_and_b32 {s(sT0)}, {s(sT0)}, 0x3ff
                      s_andn2_b32 {s(sXc)}, {s(sXc)}, 0x3ff
                      s_or_b32 {s(sXc)}, {s(sXc)}, {s(sT0)}""")
                adv_w()
            else:
                a(f"s_add_u32 {s(sT1)}, {s(sWc)}, 2048")
                a.vmem(f"buffer_load_dwordx4 {v(vWa)}, {s(sW,4)}, {s(sT1)} offen{ldw} lds", tag)
                a.vmem(f"buffer_load_dwordx4 {v(vWb)}, {s(sW,4)}, {s(sT1)} offen offset:1024{ldw} lds", tag)
                adv_w()
                a.vmem(f"buffer_load_dwordx4 {v(vWa)}, {s(sW,4)}, {s(sWc)} offen offset:2048{ldw} lds", tag)
                a.vmem(f"buffer_load_dwordx4 {v(vWb)}, {s(sW,4)}, {s(sWc)} offen offset:3072{ldw} lds", tag)
                adv_w()
            if st == int(self.o.get("fake3", -1)):
                a(f"""s_cmp_eq_u32 {s(sHq)}, 3
                      s_cselect_b32 {s(sT0)}, 128, 0
                      s_sub_u32 {s(sWc)}, {s(sWc)}, {s(sT0)}""")
            if st == 7:
                a(f"s_add_u32 {s(sWc)}, {s(sWc)}, 1024")
            if st == 11:
                a(f"s_sub_u32 {s(sWc)}, {s(sWc)}, 2048")

        D = int(self.o.get("depth", 3))
        D0 = int(self.o.get("depth0", 0))
        issue_stage(0)
        for st in range(1, D0 + 1):
            issue_stage(st)
        nissued = D0 + 1
        a("s_setprio 0")
        if self.o.get("skew"):
            a("""s_mov_b64 s[96:97], s[26:27]
                 s_not_b32 s98, s100
                 v_mov_b32 v11, s98
                 v_mov_b32 v12, 0
                 s_lshr_b32 s99, s2, 3
                 s_or_b32 s99, s99, s64
                 s_cmp_eq_u32 s99, 0
                 s_cselect_b32 s99, 0, 128
                 v_mov_b32 v12, s99
                 s_mov_b64 exec, 1
                 s_cbranch_scc0 L_nosk
                 global_atomic_umax v12, v11, s[96:97] sc1
                 L_nosk:""")
            a("s_mov_b64 exec, -1")
        self.srd_const(sWS, WS_BYTES); self.srd_ptr(sWS, 28)
        self.srd_const(sSK, 0x200000); self.srd_ptr(sSK, 18)
        self.scalar_tables()
        a(f"""s_load_dword {s(sTag)}, s[28:29], 0
              s_lshl2_add_u32 {s(sT0)}, s2, {s(sI)}
              s_lshl_b32 {s(sT0)}, {s(sT0)}, 7
              s_load_dwordx16 s[4:19], {s(sTB,2)}, {s(sT0)} offset:{T_WG}
              s_load_dwordx4 s[20:23], {s(sTB,2)}, {s(sT0)} offset:{T_WG + 64}""")
        a(f"""s_mov_b32 {s(sRole)}, 1
              s_lshl_b32 {s(sRem)}, {s(sI)}, 14
              v_mov_b32 v44, 0
              v_mov_b32 v45, 0
              v_mov_b32 v46, 0
              v_mov_b32 v47, 0
              v_lshlrev_b32 v8, 2, v0
              v_add_u32 v8, {CNT}, v8
              ds_write_b32 v8, v44
              v_and_b32 v39, 7, v0""")
        a(f"s_mov_b32 {s(sOne)}, 0x3f803f80")
        for g in self.mask_ops(4, 5) + self.const_ops():
            for l in g: a(l)
        a.vm_wait("kv")
        a("s_barrier")
        a("s_branch L_b1")
        a("@ASTART@:")
        a.label("L_b1")
        for st in range(nissued, int(self.o.get("depthk", 3)) + 1):
            issue_stage(st); nissued += 1
        a(f"""v_lshlrev_b32 v1, 4, v0
              v_add_u32 v1, {T_PB + 4096}, v1""")
        for q in range(self.stB.nq()):
            a.vmem(f"global_load_dwordx4 {v(128+4*q,4)}, v1, {s(sTB,2)} offset:{1024*q - 4096}", "tab")
        idle = [[l] for l in self.stB.ops]
        setup_open = True
        IB = int(self.o.get("idleb", 14))
        D1 = int(self.o.get("depth1", 3))

        def u_loads():
            a.vmem(f"buffer_load_dwordx4 v[128:131], {v(vUo)}, {s(sWS,4)}, {s(sUS)} offen sc1", "u")
            a.vmem(f"buffer_load_dwordx4 v[136:139], {v(vUo)}, {s(sWS,4)}, {s(sUS)} offen offset:2048 sc1", "u")
            a(f"""s_cmp_eq_u32 {s(sI)}, 3
                  s_cselect_b32 {s(sT1)}, {WS_BYTES}, {s(sUS)}
                  s_lshl_b64 exec, 3, 62""")
            a.vmem(f"buffer_load_dword v141, {v(vUo)}, {s(sWS,4)}, {s(sT1)} offen offset:{2048+64} sc1", "u")
            a("s_mov_b64 exec, -1")

        KC0 = int(self.o.get("kc0", 14))
        UL = int(self.o.get("ulook", 14))
        T0 = int(self.o.get("t0", 5))
        idle += [[f"s_add_u32 {s(sTag)}, {s(sTag)}, {TAGC}"], [f"s_xor_b32 {s(sLO)}, {s(sEO)}, 1024"],
                 [f"s_xor_b32 s40, {s(sWoS)}, 1024"], [f"s_xor_b32 s41, {s(sWoS)}, 2048"], [f"s_xor_b32 s42, {s(sWoS)}, 3072"],
                 ["s_mov_b32 s48, 0xffff00ff", "s_mov_b32 s49, 0", f"s_cmp_eq_u32 {s(sRb)}, 0", "s_cselect_b32 s48, 0xffff0000, s48"],
                 [f"v_lshlrev_b32 {v(vFo)}, 2, v0"],
                 [f"v_add_u32 v39, {s(sKt0)}, v39"], ["v_max_i32 v39, 0, v39"],
                 ["v_and_b32 v3, 0x70, v39", "v_add_lshl_u32 v39, v39, v3, 2"],
                 [f"v_add_u32 v39, {s(sKVF)}, v39", "s_mov_b32 exec_lo, 0xffff0000", f"v_add_u32 v39, {s(sTw)}, {v(vFo)}", "s_mov_b32 exec_lo, -1"],
                 ["s_mov_b32 exec_hi, 0", f"v_add_u32 v10, {s(sYF2)}, v10", "s_not_b64 exec, exec",
                  f"v_xor_b32 v10, {s(sEF)}, v10", "s_mov_b64 exec, -1"]]
        US = int(self.o.get('uscal', 10))
        for st in range(17):
            while nissued <= min(st + (D0 if st == 0 else D1 if st == 1 else D), 15):
                issue_stage(nissued); nissued += 1
            if st == US:
                assert not idle
                a(f"""s_load_dwordx8 s[88:95], s[28:29], {s(sUF)}
                      s_load_dword s51, s[28:29], {s(sUF)} offset:32""")
            if st == KC0:
                a(f"s_mov_b32 m0, {s(sKm)}")
                a.vmem(f"buffer_load_dword {v(vHd)}, v28, {s(sSK,4)}, {s(sTs)} offen", "kc")
                for p in range(4):
                    a.vmem(f"buffer_load_dwordx4 v2, {s(sSK,4)}, {s(sK4)} offen offset:{1024*p}{ldf} lds", "kc")
            if st == UL:
                a("s_waitcnt lgkmcnt(0)")
                u_loads()
            if st == 16:
                break
            if st == T0:
                a("s_waitcnt lgkmcnt(0)")
            if "tab" not in a.vm and idle and st >= T0:
                n = 0
                while idle and n + len(idle[0]) <= IB:
                    for l in idle.pop(0):
                        n += 1; a(l)
                if not idle:
                    self.setup_done(); setup_open = False
            if f"st{st}" in a.vm:
                a.vm_wait(f"st{st}")
            if not setup_open and st >= 14: self.tss(st, True)
            a("s_barrier")
            if st == 12: self.ts(3)
        a(f"s_xor_b32 s50, s51, {s(sTag)}")
        for k in range(8):
            a(f"""s_xor_b32 {s(sT0)}, s{88+k}, {s(sTag)}
                  s_or_b32 s50, s50, {s(sT0)}""")
        if self.o.get("prof"):
            for k in range(4): a(f"s_mov_b32 s{88+2*k}, 0")
        if self.o.get("klook", "0") == "1":
            a.vmem(self.look(5, 39, 0, 's[48:49]'), "fkv")
        a("s_barrier")
        self.tm("p2", 1)
        self.ts(4)
        Lr, Lb = a.newlabel("Lur"), a.newlabel("Lub")
        a(f"""s_setprio 2
              s_cmp_lg_u32 s50, 0
              s_cbranch_scc1 {Lr}""")
        a.label(Lb)
        keep = (a.lines, list(a.vm))
        a.lines = self.tail
        a.label(Lr)
        self.poll(vFo, s(sUF), vFu, 0x1ff)
        u_loads()
        a(f"""s_waitcnt vmcnt(0)
              s_branch {Lb}""")
        a.lines, a.vm = keep
        if self.o.get("klook", "0") != "1":
            a.vmem(self.look(5, 39, 0, 's[48:49]'), "fkv")
        a("""s_mov_b64 exec, 0xfffffff
             ds_write_b128 v31, v[44:47]
             s_mov_b64 exec, -1""")
        a.vm_wait("u", "kc")
        dp = "wave_rol:1 row_mask:0xf bank_mask:0xf"
        a(f"""ds_write_b32 {v(vHa)}, {v(vHd)}
              v_mov_b32_dpp v133, v128 {dp}
              v_mov_b32_dpp v134, v136 {dp}
              s_lshl_b64 vcc, 3, 62
              v_mov_b32_dpp v132, v133 {dp}
              v_mov_b32_dpp v140, v134 {dp}
              v_cndmask_b32 v132, v132, v140, vcc
              v_cndmask_b32 v140, v140, v141, vcc""")
        for j, b in ((0, 128), (1, 136)):
            a(f"ds_write_b128 {v(vRa)}, {v(b,4)} offset:{RS + 512*j}")
            for q in range(4):
                a(f"v_alignbit_b32 {v(144+4*j+q)}, {v(b+q+1)}, {v(b+q)}, 16")
            a(f"ds_write_b128 {v(vRa)}, {v(144+4*j,4)} offset:{512*j}")
        self.lds_signal(vCNT, C_CONV)
        self.ts(2)

    def compute_phase1(self):
        a = self.a
        a.label("L_compute")
        self.decode()
        a.vm = []; a.lg = []
        vXA, vWA = 8, 12
        accK, accV, accQ, Wf = 16, 32, 48, 64
        NSET = 12
        st = self.stA = Setup(128)
        rt = lambda i: i >> 1
        ct = lambda i: i & 1
        l16 = lambda l: l * 16
        def ua(l, d):
            blk = 2 * (l >> 4) + (l & 1); r = (l >> 2) & 3
            return RR + (8 * blk + r) * 128 + ((((blk + d) & 3) * 2 + (r >> 1)) * 16) + ((l >> 1) & 1) * 8
        st.xor(192, lambda l: ua(l, 0), lambda i: i * 32)
        st.xor(193, lambda l: ua(l, 1), lambda i: i * 32)
        st.mov(194, lambda l: (7 - (2 * (l >> 4) + ((l >> 2) & 1))) * 64 + (l & 3) * 16 + ((l >> 3) & 1) * 16384)
        st.xor(vXA, lambda l: ((l >> 4) & 1) * 4096 + ((l >> 3) & 1) * 1024 + (l & 7) * 128 + ((((l >> 1) & 7) ^ (l >> 5)) * 16),
               lambda i: rt(i) * 8192 + ct(i) * 64)
        st.raw(f"v_xor_b32 {v(vXA+1)}, 32, {v(vXA)}\nv_xor_b32 {v(vXA+2)}, 64, {v(vXA)}\nv_xor_b32 {v(vXA+3)}, 0x60, {v(vXA)}")
        st.xor(vWA, lambda l: (8 * (l >> 5) + ((l >> 2) & 3)) * 128 + (l & 3) * 8 + ((l >> 4) & 1) * 32 + ((l >> 3) & 1) * 64,
               lambda i: ct(i) * (8192 + 64))
        st.raw(f"v_xor_b32 {v(vWA+1)}, 0x2000, {v(vWA)}\nv_add_u32 v3, 0x10000, {v(vWA)}\nv_add_u32 v4, 0x10000, {v(vWA+1)}")
        st.add(1, lambda l: GW + (l >> 5) * 16, lambda i: ct(i) * 64)
        st.mov(5, lambda l: ((l >> 4) & 1) * 131072 + (l >> 5) * 256 + (l & 15) * 16)
        st.add(6, lambda l: ((l >> 4) & 1) * 4096 + (l >> 5) * 256 + (l & 15) * 16, lambda i: LB + ct(i) * 8192 + rt(i) * 2048)
        st.add(7, l16, lambda i: LB + ct(i) * 8192 + rt(i) * 2048)
        st.add(114, lambda l: (l & 31) * 8, lambda i: GP + rt(i) * 256 + ct(i) * 4)
        st.add(112, lambda l: KC + (l & 1) * KCS + ((l >> 1) & 7) * 8 + (l >> 4) * 16, lambda i: rt(i) * 2 * KCS + ct(i) * 256)
        st.add(113, lambda l: RR + 448 + (l & 1) * RS + (l >> 4) * 16 - ((l >> 1) & 7) * 64, lambda i: rt(i) * 2 * RS + ct(i) * 256)
        st.attn(lambda i: ct(i) ^ 1)
        st.keep(sQFw, lambda i: QF + ct(i) * 4096 + rt(i) * 1024)
        st.keep(sPw, lambda i: (PY + rt(i) * 8192) if ct(i) else (EX1 if rt(i) else EX0))
        for rr in range(4):
            st.ops.append(f"v_and_b32 {v(116+rr)}, {s(sD)}, {v(st.p(lambda l: 0xffff if (l & 15) + 4 * (l >> 4) == 15 - rr else 0))}")
        st.mov(190, lambda l: EX1 + (4 * (l >> 5) + ((l >> 2) & 3)) * 128 + (l & 3) * 8 + ((l >> 4) & 1) * 32 + ((l >> 3) & 1) * 64)
        st.add(195, lambda l: SW + ((l & 3) + 4 * ((l >> 3) & 1)) * 8, lambda i: i * 128)
        assert st.nq() == NQ
        a.vm = ["tab"] * NQ + ([] if self.o.get("notb") else ["tb"]) + (["tb"] if (not self.o.get("nocw")) else [])
        a(f"""
              s_and_b32 {s(sT2)}, s2, 7
              s_lshl_b32 {s(sT2)}, {s(sT2)}, 5
              s_lshr_b32 {s(sT1)}, s2, 3
              s_add_u32 {s(sT2)}, {s(sT2)}, {s(sT1)}
              s_lshr_b32 {s(sT1)}, {s(sI)}, 1
              s_lshl1_add_u32 {s(sT2)}, {s(sT2)}, {s(sT1)}
              s_lshl_b32 {s(sT2)}, {s(sT2)}, 1
              s_lshl_b32 s46, {s(sT2)}, 11
              v_mov_b32 v252, {s(sT2)}
              v_mov_b32 v253, 0
              s_bitcmp0_b32 {s(sI)}, 0
              s_cselect_b32 {s(sD)}, -1, 0
              s_mov_b32 {s(sRole)}, 0""")
        a(f"""s_and_b32 {s(sT0)}, {s(sI)}, 1                 ; ct
              s_lshr_b32 {s(sT1)}, {s(sI)}, 1                ; rt
              s_lshl2_add_u32 {s(sT2)}, {s(sHq)}, {s(sI)}
              s_xor_b32 {s(sT4)}, {s(sT2)}, {UX * 4}
              s_lshl_b32 {s(sU0+32)}, {s(sT4)}, 16
              s_lshl_b32 {s(sT3)}, {s(sRb)}, 9
              s_sub_u32 {s(sU0+32)}, {s(sU0+32)}, {s(sT3)}
              s_add_u32 {s(sU0+32)}, {s(sU0+32)}, {UG + 248*64}
              s_lshl_b32 {s(sUF+32)}, {s(sT4)}, 5
              s_add_u32 {s(sUF+32)}, {s(sUF+32)}, {s(sRb)}
              s_lshl_b32 {s(sUF+32)}, {s(sUF+32)}, 2
              s_add_u32 {s(sUF+32)}, {s(sUF+32)}, {FU}
              s_xor_b32 {s(sT3)}, {s(sT0)}, 1
              s_lshl1_add_u32 {s(sT3)}, {s(sRb)}, {s(sT3)}   ; tt
              s_add_u32 {s(sNt+32)}, {s(sT3)}, 1
              s_min_u32 {s(sNt+32)}, {s(sNt+32)}, 9
              s_lshl_b32 {s(sT3)}, {s(sT3)}, 5
              s_add_u32 {s(sT3)}, {s(sT3)}, {s(sT2)}
              s_lshl_b32 {s(sOO+32)}, {s(sT3)}, 10
              s_add_u32 {s(sOO+32)}, {s(sOO+32)}, {OG}
              s_andn2_b32 {s(sOF+32)}, {s(sT3)}, 15
              s_add_u32 {s(sOF+32)}, {s(sOF+32)}, {s(sT3)}
              s_lshl_b32 {s(sOF+32)}, {s(sOF+32)}, 2
              s_add_u32 {s(sOF+32)}, {s(sOF+32)}, {FO}
              s_lshl1_add_u32 {s(sT2)}, {s(sHq)}, {s(sT0)}   ; pair
              s_lshl1_add_u32 {s(sT3)}, {s(sRb)}, {s(sT1)}   ; kt
              s_lshl_b32 {s(sKO+32)}, {s(sT2)}, 7
              s_add_u32 {s(sKO+32)}, {s(sKO+32)}, {s(sT3)}
              s_lshl_b32 {s(sKO+32)}, {s(sKO+32)}, 11
              s_add_u32 {s(sKO+32)}, {s(sKO+32)}, {KVG}
              s_add_u32 {s(sKO2+32)}, {s(sKO+32)}, 0x20000
              s_lshl_b32 {s(sKF+32)}, {s(sT2)}, 6
              s_add_u32 {s(sKF+32)}, {s(sKF+32)}, {s(sT3)}
              s_andn2_b32 {s(sT3)}, {s(sKF+32)}, 15
              s_add_u32 {s(sKF+32)}, {s(sKF+32)}, {s(sT3)}
              s_lshl_b32 {s(sKF+32)}, {s(sKF+32)}, 2
              s_add_u32 {s(sKF+32)}, {s(sKF+32)}, {FKV}""")
        if self.o.get("pg"):
            a(f"""v_mov_b32 v254, {s(sU0+32)}
                  v_writelane_b32 v254, {s(sKO+32)}, 1
                  v_writelane_b32 v254, {s(sOO+32)}, 2
                  s_lshl_b32 {s(sT0)}, {s(sHq)}, 5
                  s_add_u32 {s(sT0)}, {s(sT0)}, {s(sRb)}
                  s_lshl_b32 {s(sT0)}, {s(sT0)}, 11
                  s_add_u32 {s(sT0)}, {s(sT0)}, {WFG}
                  v_writelane_b32 v254, {s(sT0)}, 3
                  v_lshlrev_b32 v251, 11, v252
                  v_add_u32 v250, {YG}, v251
                  s_mov_b64 vcc, 16
                  v_cndmask_b32 v254, v254, v250, vcc
                  s_lshl_b32 {s(sT0)}, {s(sRb)}, 9
                  s_add_u32 {s(sT0)}, {s(sT0)}, {s(sHq)}
                  s_lshl_b32 {s(sT0)}, {s(sT0)}, 7
                  v_mov_b32 v250, {s(sT0)}""")
        if self.o.get("lateA"):
            a("s_setprio 3")
        self.srd_const(sWS, WS_BYTES)
        a("s_waitcnt lgkmcnt(0)")
        if self.o.get("pg"):
            a("s_mov_b64 exec, 31")
            a.vmem("global_load_dword v255, v254, s[28:29]", "ed")
            a("s_mov_b64 exec, 1")
            a.vmem("global_load_dword v255, v251, s[18:19]", "ed")
            a.vmem("global_load_dword v255, v250, s[24:25]", "ed")
            a("s_mov_b64 exec, -1")
        a.vmem("global_load_ushort v252, v252, s[20:21]", "ed")
        a.vmem("global_load_dword v253, v253, s[28:29]", "ed")
        self.srd_ptr(sWS, 28)
        def wtouch():
            kinds = self.o.get("wt", "")
            if kinds.startswith("c"):
                a(f"""s_lshr_b32 {s(sT1)}, s2, 3
                      s_lshl2_add_u32 {s(sT1)}, {s(sT1)}, {s(sI)}
                      s_mul_i32 {s(sT1)}, {s(sT1)}, {4*3072}
                      s_or_b32 {s(sT0)}, {s(sHq)}, 3
                      s_lshl_b32 {s(sT0)}, {s(sT0)}, 7
                      s_add_u32 {s(sT1)}, {s(sT1)}, {s(sT0)}
                      v_and_b32 v188, 3, v0
                      v_mul_u32_u24 v188, 0xc00, v188
                      v_bfe_u32 v189, v0, 2, 1
                      v_lshl_add_u32 v188, v189, 11, v188
                      v_bfe_u32 v189, v0, 3, 1
                      v_lshl_add_u32 v188, v189, 10, v188
                      v_add_u32 v188, {s(sT1)}, v188
                      s_mov_b64 exec, {0xfff if kinds == "ck" else 0xff}""")
                a.vmem("global_load_dword v115, v188, s[44:45]", "ed")
                a("s_mov_b64 exec, -1")
                return
            a(f"""s_lshl2_add_u32 {s(sT1)}, {s(sRot)}, {s(sI)}
                  s_mul_i32 {s(sT1)}, {s(sT1)}, {16*3072}
                  s_lshl_b32 {s(sT0)}, {s(sHq)}, 7
                  s_add_u32 {s(sT1)}, {s(sT1)}, {s(sT0)}
                  v_and_b32 v188, 15, v0
                  v_mul_u32_u24 v188, 0xc00, v188
                  v_xor_b32 v189, 16, v0
                  v_and_b32 v189, 16, v189
                  v_lshl_add_u32 v188, v189, 7, v188
                  v_add_u32 v188, {s(sT1)}, v188
                  s_mov_b32 exec_hi, 0
                  s_mov_b32 exec_lo, {"-1" if "q" in kinds else "0xffff"}""")
            a.vmem("global_load_dword v115, v188, s[44:45]", "ed")
            if "s" in kinds:
                a(f"""s_mov_b32 exec_lo, 0xffff
                      v_lshlrev_b32 v188, 7, v0
                      s_and_b32 {s(sT0)}, {s(sI)}, 1
                      s_lshl_b32 {s(sT0)}, {s(sT0)}, 11
                      s_add_u32 {s(sT0)}, {s(sT0)}, s46
                      v_add_u32 v188, {s(sT0)}, v188""")
                a.vmem("global_load_dword v115, v188, s[18:19]", "ed")
            a("s_mov_b64 exec, -1")
        a("s_mov_b64 s[44:45], s[6:7]")
        if self.o.get("wt") and self.o.get("wtp", "0") == "0": wtouch()
        a("s_mov_b64 s[4:5], s[36:37]\ns_mov_b64 s[6:7], s[38:39]\ns_mov_b64 s[8:9], s[40:41]\ns_mov_b64 s[10:11], s[42:43]")
        if self.o.get("lateA"):
            self.scalar_tables()
            a("s_setprio 0\ns_waitcnt lgkmcnt(0)")
        a.vm_wait("tab")
        for l in st.ops: a(l)
        a("s_setprio 1")
        self.setup_done()
        if self.o.get("iw"):
            a("@IWARM@:")
        self.tm("ld", 5)
        if self.o.get("wt") and self.o.get("wtp") == "1": wtouch()
        fillers = []
        a("s_barrier")
        self.tm("ld", 7)
        a.lds("ds_read_b64 v[196:197], v195", "sw")
        a.lds("ds_read_b64 v[198:199], v195 offset:64", "sw")
        self.u_reads(0); self.u_reads(1)
        Lw = a.newlabel("Lwf")
        a(f"""s_cmp_lg_u32 {s(sI)}, 0
              s_cbranch_scc1 {Lw}
              v_xor_b32 v191, 64, v190
              ds_read_b64_tr_b16 v[176:177], v190
              ds_read_b64_tr_b16 v[178:179], v190 offset:1024
              ds_read_b64_tr_b16 v[180:181], v191
              ds_read_b64_tr_b16 v[182:183], v191 offset:1024
              s_lshl_b32 {s(sT0)}, {s(sHq)}, 5
              s_add_u32 {s(sT0)}, {s(sT0)}, {s(sRb)}
              s_lshl_b32 {s(sT0)}, {s(sT0)}, 11
              s_add_u32 {s(sT0)}, {s(sT0)}, {WFG}
              s_waitcnt lgkmcnt(0)
              buffer_store_dwordx4 v[176:179], v2, {s(sWS,4)}, {s(sT0)} offen sc1
              buffer_store_dwordx4 v[180:183], v2, {s(sWS,4)}, {s(sT0)} offen offset:1024 sc1""")
        a.label(Lw)
        self.u_math(0); self.u_math(1)
        if self.o.get("wt") and self.o.get("wtp") == "2":
            a("s_nop 1"); wtouch()
        self.tm("ld", 8)
        a("s_branch L_a1")
        a("@AEND@:")
        a.label("L_a1")
        fq = []
        def fill(n):
            while n > 0 and fq:
                l = fq.pop(0); n -= 1
                if self.o.get("nost") and l.startswith("@kvst"): continue
                if self.o.get("nolw") and l.startswith("#w ds_write_b128"): continue
                if l.startswith("@"):
                    tag, rest = l[1:].split(" ", 1); a.vmem(rest, tag)
                elif l.startswith("#"):
                    tag, rest = l[1:].split(" ", 1); a.lds(rest, tag)
                else:
                    a(l)
        nset = [0]
        def reads(st, n):
            slot = st % 6
            tag = f"s{st}_{n}"
            hi, so = (0, slot * 16384) if slot < 4 else (2, (slot - 4) * 16384)
            if st < 8 and n >= 4:
                gb = accV + 8 * (st & 1) + 4 * (n - 4)
                a.lds(f"ds_read_b128 {v(gb,4)}, v1 offset:{st*128 + (n-4)*32}", tag)
                return ("g", 4 * st + n - 4, gb, tag), 1
            wb = Wf + 4 * (nset[0] % NSET); nset[0] += 1
            base = (3 if hi else vWA) + ((n >> 1) & 1)
            if st < 8:
                k = 4 * st + n
                a.lds(f"ds_read_b128 {v(128+4*k,4)}, {v(vXA+n)} offset:{so}", tag)
                o = so + (n & 1) * 4096 + 2048
            else:
                k = 8 * ((st - 8) & 3) + n
                o = so + (n & 1) * 4096 + (n >> 2) * 2048
            a.lds(f"ds_read_b64_tr_b16 {v(wb,2)}, {v(base)} offset:{o}", tag)
            a.lds(f"ds_read_b64_tr_b16 {v(wb+2,2)}, {v(base)} offset:{o+512}", tag)
            return ("k" if st < 8 else "v" if st < 12 else "q", k, wb, tag), (3 if st < 8 else 2)
        def mm(g):
            kind, k, wb, tag = g
            a.lg_wait(tag)
            if kind == "g" and self.o.get("nogate"): return
            if kind in self.o.get("nomm", "") : return
            acc = {"k": accK, "v": accV, "q": accQ, "g": accQ}[kind]
            c = "0" if k == 0 else v(acc, 16)
            if kind == "v":
                a(f"v_mfma_f32_32x32x16_bf16 {v(acc,16)}, {v(128+4*k,4)}, {v(wb,4)}, {c}")
            else:
                a(f"v_mfma_f32_32x32x16_bf16 {v(acc,16)}, {v(wb,4)}, {v(128+4*k,4)}, {c}")
        def lines(t):
            return [x.strip() for x in t.split("\n") if x.strip()]
        pend = []
        UF = int(self.o.get("uflag", 4))
        KVF = int(self.o.get("kvflag", 14))
        DEF = int(self.o.get("defer", 4))
        BUD = int(self.o.get("budget", 5))
        for st in range(16):
            self.tss(st, True)
            a("s_barrier")
            self.tss(st, False)
            if st == 0: self.ts(1)
            if st == 8: self.ts(2)
            if st == 12: self.ts(3)
            nit = 6 if st < 8 else 8
            nd = 6 if st < 8 else 0 if st == 15 else DEF
            gs = []
            if st == 0:
                for n in range(6): gs.append(reads(st, n)[0])
            if st == 1:
                for f in fillers: fq += lines(f)
            npend = len(pend)
            for i in range(npend + nit - nd):
                used = 0
                if len(gs) < nit:
                    g, used = reads(st, len(gs)); gs.append(g)
                mm(pend[i] if i < npend else gs[i - npend])
                if st == 8 and i == 6:
                    fq += [f"v_cvt_pk_bf16_f32 {v(accK+q)}, {v(accK+2*q)}, {v(accK+2*q+1)}" for q in range(8)]
                    fq += [f"v_mov_b32 v1, {v(accQ)}"]
                if st == 12 and i == npend + 1:
                    fq += [f"v_cvt_pk_bf16_f32 {v(accV+q)}, {v(accV+2*q)}, {v(accV+2*q+1)}" for q in range(8)]
                stf = self.o.get("stf", "sc1").replace("+", " ")
                stores = [f"@kvst buffer_store_dwordx4 {v(accK,4)}, v2, {s(sWS,4)}, {s(sKO)} offen {stf}",
                          f"@kvst buffer_store_dwordx4 {v(accK+4,4)}, v2, {s(sWS,4)}, {s(sKO2)} offen {stf}",
                          f"@kvst buffer_store_dwordx4 {v(accV,4)}, v5, {s(sWS,4)}, {s(sKO)} offen offset:1024 {stf}",
                          f"@kvst buffer_store_dwordx4 {v(accV+4,4)}, v5, {s(sWS,4)}, {s(sKO)} offen offset:1536 {stf}"]
                SP = [int(x) for x in self.o.get("sp", "9,11,12,12").split(",")]
                for k in range(4):
                    if st == SP[k] and i == (6 if st == 8 else npend + 1):
                        fq.append(stores[k])
                if st == 15 and i >= 7:
                    fq += [[f"#w ds_write_b32 v114, v1"],
                           [f"#w ds_write_b128 v7, {v(accK,4)}"],
                           [f"#w ds_write_b128 v7, {v(accK+4,4)} offset:4096"],
                           [f"#w ds_write_b128 v6, {v(accV,4)} offset:1024"],
                           [f"#w ds_write_b128 v6, {v(accV+4,4)} offset:1536"]][i - 7]
                if st in (3, 5) and i == 4:
                    op = "v_add_u32" if st == 3 else "v_subrev_u32"
                    for n in range(4): a(f"{op} {v(vXA+n)}, 0x10000, {v(vXA+n)}")
                    used += 4
                fill(BUD - used - (1 if i >= npend else 0))
            assert len(gs) == nit
            if st in (7, 12, 14):
                fill(100)
            pend = gs[nit - nd:]
            if st < 15:
                a.lg_all()
            if st == UF:
                a.vm_wait("ust")
                a(f"v_readfirstlane_b32 {s(sTag)}, v253")
                for rr in range(4):
                    a(f"v_and_b32 {v(116+rr)}, {v(116+rr)}, v252")
                a(f"s_add_u32 {s(sTag)}, {s(sTag)}, {TAGC}")
                self.flag_store(sUF, 255)
            if st == KVF:
                a.vm_all()
                self.flag_store(sKF, 115)
        assert not fq
        self.ts(4)
        a(f"""s_mov_b32 {s(sT0)}, {f2u(0.25 * LOG2E):#x}
              s_mov_b32 {s(sT1)}, {s(sT0)}
              v_add_u32 v3, {s(sQFw)}, v2""")
        for q in range(8):
            a(f"v_pk_mul_f32 {v(accQ+2*q,2)}, {v(accQ+2*q,2)}, {s(sT0,2)}")
        for q in range(8):
            a(f"v_cvt_pk_bf16_f32 {v(accQ+q)}, {v(accQ+2*q)}, {v(accQ+2*q+1)}")
            if q == 3:
                a(f"ds_write_b128 v3, {v(accQ,4)}")
        a(f"""ds_write_b128 v3, {v(accQ+4,4)} offset:2048
              v_mov_b32 v8, v112
              v_mov_b32 v9, v113
              v_mov_b32 v84, v116
              v_mov_b32 v85, v117
              v_mov_b32 v86, v118
              v_mov_b32 v87, v119
              s_setprio 0""")
        a.lg_all()
        a("s_barrier")
        self.ts(5)

    def conv(self):
        a = self.a
        a.lg = []
        vKA, vUA = 8, 9
        acc = 16
        KVC = int(self.o.get("kvconv", -1))
        def fr(buf, kind, i):
            return 128 + 64 * buf + (0 if kind == "k" else 32) + 4 * i
        issued = set()
        def rd(r, kind, i):
            issued.add((r, kind, i))
            buf = r & 1
            if kind == "k":
                a.lds(f"ds_read_b64 {v(fr(buf,'k',i),2)}, {v(vKA)} offset:{512*i + 64*r}", f"{r}k{i}")
                a.lds(f"ds_read_b64 {v(fr(buf,'k',i)+2,2)}, {v(vKA)} offset:{512*i + 64*r + 8}", f"{r}k{i}")
            else:
                a.lds(f"ds_read_b128 {v(fr(buf,'u',i),4)}, {v(vUA)} offset:{512*(7-i) + 64*r}", f"{r}u{i}")
        order = []
        for i in range(8):
            order += [("k", i), ("u", i)]
        NPRE = int(self.o.get("cpre", 33))
        pre = self.mask_ops(3, 7) + self.const_ops()
        if int(self.o.get("kvflag", 14)) == 16:
            a.vm_all()
            self.flag_store(sKF, 13)
        a.lds(f"ds_read_b128 {v(vQ,4)}, v14", "q")
        mo, co = self.mask_ops(3, 7), self.const_ops()
        for g in mo:
            for l in g[:3]: a(l)
        for g in co[:8]:
            for l in g: a(l)
        a(f"v_mov_b32 {v(vVf+8)}, {v(vVf)}")
        later = [[f"v_mov_b32 {v(vVf+r)}, {v(vVf+8)}"] for r in range(9, 16)]
        later += [["v_mov_b32 v13, 0xf149f2ca"]]
        for r in range(16):
            later += [mo[r+1][:2], [f"v_cndmask_b32 {v(vMU+r)}, 0, v13, vcc"]]
        self.attention("A", 0)
        if int(self.o.get("kvflag", 14)) == 17:
            a.vm_all()
            self.flag_store(sKF, 13)
        self.lds_spin(vCNT, C_CONV, 4, 3)
        self.ts(8)
        for kind, i in order[:8]:
            rd(0, kind, i)
        fill = [[x.strip()] for x in f"""v_and_b32 v10, 15, v0
              v_lshlrev_b32 v10, 3, v10
              v_lshrrev_b32 v11, 4, v0
              v_lshl_add_u32 v10, v11, 8, v10
              v_add_u32 v10, {s(sPw)}, v10
              s_lshl_b32 {s(sT2)}, {s(sI)}, 2
              v_add_u32 v12, {s(sT2)}, {v(vCNT)}
              s_nop 0""".split("\n")]
        fill += later
        pend_r = [(0, k, i) for k, i in order[8:]]
        first = [True] * 8
        for r in range(4):
            self.tm("p2", 1 + r)
            buf = r & 1
            nxt = [(r + 1, k, i) for k, i in order] if r < 3 else []
            queue = pend_r + nxt
            pend_r = []
            seq = []
            for m in range(8):
                for d in range(m + 1):
                    for s_ in range(m + 1):
                        if max(d, s_) == m and d + s_ <= 7:
                            seq.append((d, s_))
            assert len(seq) == 36
            if r == 3:
                seq = [(d, T - d) for T in range(8) for d in range(T + 1)]
                wr = [(T * (T + 3) // 2 + 5, lambda T=T, h=h: a.lds(f"ds_write_b64 v10, {v(acc+4*T+2*h,2)} offset:{1024*T + 128*h}", "pw"))
                      for T in range(8) for h in range(2)]
            for n, (d, s_) in enumerate(seq):
                T = d + s_
                if r * 36 + n == KVC:
                    a.vm_all()
                    self.flag_store(sKF, 13)
                assert (r, "k", d) in issued and (r, "u", s_) in issued
                a.lg_wait(f"{r}k{d}", f"{r}u{s_}")
                c = "0" if first[T] else v(acc + 4 * T, 4)
                first[T] = False
                a(f"v_mfma_f32_16x16x32_bf16 {v(acc+4*T,4)}, {v(fr(buf,'u',s_),4)}, {v(fr(buf,'k',d),4)}, {c}")
                KN = int(self.o.get("kn", 22))
                if r == 3 and n == KN:
                    a.lds(f"ds_read_b32 v7, v12 offset:{C_KVL}", "kvl")
                if r == 3 and n == KN + 6:
                    Lq, Lz = a.newlabel("Lkq"), a.newlabel("Lkz")
                    a.lg_wait("kvl")
                    a(f"""v_readfirstlane_b32 {s(sT5)}, v7
                          s_cmp_eq_u32 {s(sT5)}, 0
                          s_cbranch_scc1 {Lq}""")
                    a.label(Lz)
                    keep = (a.lines, list(a.lg))
                    a.lines = self.tail
                    a.label(Lq)
                    self.lds_spin(12, C_KVL, 1, 7)
                    a(f"s_branch {Lz}")
                    a.lines, a.lg = keep
                    pref = self.attention("A", 1)
                if r == 3 and n > KN + 6 and pref:
                    pref.pop(0)()
                if queue and (n % 2 == 0 or queue[0][0] == r):
                    rd(*queue.pop(0))
                elif r == 3 and wr and wr[0][0] <= n:
                    wr.pop(0)[1]()
                elif fill:
                    for l in fill.pop(0):
                        if l.startswith("#"):
                            tag, rest = l[1:].split(" ", 1); a.lds(rest, tag)
                        else:
                            a(l)
            if r == 0:
                for T in range(8):
                    a(f"v_mfma_f32_16x16x32_bf16 {v(acc+4*T,4)}, {v(fr(0,'u',T),4)}, v[84:87], {v(acc+4*T,4)}")
            pend_r = queue
            assert all(q[0] == r + 1 for q in pend_r)
        assert not fill and not pend_r
        self.tm("p2", 5)
        self.ts(6)
        a(f"s_setprio {self.o.get('aprio', 1)}")
        assert not pref
        wr = [w[1] for w in wr]
        wr.append(lambda: self.lds_signal(vCNT, C_FREE))
        self.attention("A", 2, wr)

    def wof(self, late, j, ct):
        return 128 + ((late * 8 + j) * 2 + ct) * 4

    def kv_dma(self, groups):
        a = self.a
        for g in groups:
            a(f"""s_add_u32 m0, {s(sRem)}, {4096*g}
                  s_add_u32 {s(sT2)}, {s(sKVS)}, {4096*g}
                  s_cmp_lt_u32 {s(sRb)}, {4-g}
                  s_cselect_b32 {s(sT2)}, {WS_BYTES}, {s(sT2)}""")
            for o in (2048, 3072, 0, 1024):
                a.vmem(f"buffer_load_dwordx4 v2, {s(sWS,4)}, {s(sT2)} offen offset:{o} sc1 lds", f"r{2*g + (o >> 11)}")

    def b_fetch(self):
        a = self.a
        a.vm_all()
        self.poll(39, 0, 5, 's[48:49]', first_done=True)
        self.ts(5)
        self.tm("p2", 2)
        self.kv_dma((3, 2))
        a(f"""s_lshl_b32 {s(sT2)}, {s(sI)}, 2
              v_add_u32 v5, {s(sT2)}, {v(vCNT)}""")
        self.tm("p2", 3)

    def b_start(self):
        a = self.a
        a.lg = []
        a(f"ds_read_b128 {v(vQ,4)}, v14")
        if self.o.get("bearly"):
            self.b_fetch()

    def attention(self, role, part=None, extra=()):
        a = self.a
        B = role == "B"
        if B: a.lg = []
        extra = list(extra)
        S = [16, 32] if (B or part == 0) else [144, 128]; O, P, Kf, Vf = vO, vP, [vKf, vKf + 4], [vVf, vVf + 8]
        HK = int(self.o.get("hook", 4))
        def kaddr(p):
            return (120, 0) if p == 0 else (121, 0) if p == 1 else (122, (8 - p) * 2048)
        def rdK(p):
            r, o = kaddr(p)
            a.lds(f"ds_read_b128 {v(Kf[p&1],4)}, {v(r)} offset:{o}", f"K{p}")
        def rdV(p):
            r, o = kaddr(p)
            if p == 0:
                a(f"s_mov_b64 exec, {s(sEx,2)}")
            else:
                a(f"""s_cmp_gt_u32 {s(sNt)}, {p}
                      s_cselect_b64 exec, {s(sEx,2)}, -1""")
            a.lds(f"ds_read_b128 {v(Vf[p&1],4)}, {v(r+3)} offset:{o}", f"V{p}")
            a.lds(f"ds_read_b128 {v(Vf[p&1]+4,4)}, {v(r+3)} offset:{o+512}", f"V{p}")
            a("s_mov_b64 exec, -1")
        def qk(p):
            c = v(vML, 16) if p == 0 else v(vMU, 16) if p == 8 else "0"
            a(f"v_mfma_f32_32x32x16_bf16 {v(S[p&1],16)}, {v(Kf[p&1],4)}, {v(vQ,4)}, {c}")
        def e(p, j):
            a(f"v_exp_f32 {v(S[p&1]+j)}, {v(S[p&1]+j)}")
            if extra: extra.pop(0)()
        def c(p, q): a(f"v_cvt_pk_bf16_f32 {v(P+q)}, {v(S[p&1]+2*q)}, {v(S[p&1]+2*q+1)}")
        def pv(p, hf):
            cc = "0" if (p == 0 and hf == 0) else v(O, 16)
            a(f"v_mfma_f32_32x32x16_bf16 {v(O,16)}, {v(Vf[p&1]+4*hf,4)}, {v(P+4*hf,4)}, {cc}")
        def vmw(q):
            if not B: return
            t = "r0" if q == HK + 2 else f"r{8-q}"
            if t in a.vm: a.vm_wait(t)
        wq = [(late, j) for late in range(2) for j in range(8)] if B else []
        W0 = int(self.o.get("w0", 0))
        def wload():
            if not wq: return
            late, j = wq.pop(0)
            a(f"v_add_u32 v3, {4096*j}, v2")
            for ct in range(2):
                so = [sWoS, 40, 41, 42][2 * late + ct]
                a.vmem(f"buffer_load_dwordx4 {v(self.wof(late,j,ct),4)}, v3, {s(sWS,4)}, {s(so)} offen sc1", "wf")
        self.wload, self.wq = wload, wq
        if part == 1:
            return [lambda: rdK(1), lambda: rdV(1), lambda: rdK(2)]
        vg = 84 if B else 4
        if part != 2:
            rdK(0)
            a.lds(f"ds_read_b64 {v(vg,2)}, v15", "g")
            rdV(0)
            a.lg_wait("K0")
            qk(0)
            a.lg_wait("g")
            a(f"""v_add_f32 {v(vg)}, {v(vg)}, {v(vg+1)}
                  v_mul_f32 {v(vg)}, {f2u(-LOG2E):#x}, {v(vg)}
                  v_exp_f32 {v(vg)}, {v(vg)}
                  s_nop 0
                  v_add_f32 {v(vg)}, 1.0, {v(vg)}""")
        if part == 0:
            for j in range(16):
                e(0, j)
                if j >= 3 and j & 1: c(0, (j - 3) // 2)
                if j == 11:
                    a.lg_wait("V0"); pv(0, 0)
            c(0, 7); pv(0, 1)
            return
        if part == 2:
            a.lg_wait("K1")
            qk(1)
            while extra:
                extra.pop(0)()
            a(f"v_mov_b32 v84, {v(vg)}")
        for p in range(1 if part == 2 else 0, 9):
            nx = p + 1 <= 8
            if p % 2 == 0: self.tm("p2", 6 + p // 2)
            if p == 0:
                for j in range(8):
                    e(0, j)
                    if j >= 3 and j & 1: c(0, (j - 3) // 2)
                if not self.o.get("bearly"):
                    self.b_fetch()
                self.kv_dma((1, 0))
                vmw(1)
                rdK(1); rdV(1)
                e(0, 8); c(0, 3); e(0, 9); e(0, 10)
                a.lg_wait("V0")
                pv(0, 0)
                e(0, 11); c(0, 4); e(0, 12)
                a.lg_wait("K1")
                qk(1)
                vmw(2)
                rdK(2)
                e(0, 13); c(0, 5); e(0, 14); e(0, 15); c(0, 6)
                continue
            carry = not (part == 2 and p == 1)
            e(p, 0)
            if carry: c(p - 1, 7)
            e(p, 1)
            e(p, 2)
            if carry: pv(p - 1, 1)
            e(p, 3); c(p, 0)
            if p > W0: wload()
            e(p, 4)
            if nx: rdV(p + 1)
            e(p, 5); c(p, 1)
            e(p, 6)
            if nx: a.lg_wait(f"K{p+1}")
            e(p, 7)
            if nx: qk(p + 1)
            c(p, 2)
            e(p, 8); c(p, 3)
            e(p, 9)
            if p + 2 <= 8:
                vmw(p + 2)
            e(p, 10)
            if p + 2 <= 8:
                rdK(p + 2)
            if f"V{p}" in a.lg: a.lg_wait(f"V{p}")
            e(p, 11)
            pv(p, 0)
            c(p, 4)
            e(p, 12)
            if p == HK and B:
                self.lds_signal(5, C_KVL)
            if p >= W0 and int(self.o.get("w2x", 1)): wload()
            e(p, 13); c(p, 5)
            e(p, 14)
            e(p, 15); c(p, 6)
        c(8, 7); pv(8, 1)
        a.label(f"L_attn_fin{role}")
        a.lg = []
        a(f"""s_mov_b32 {s(sT4)}, {f2u(2.0**-30):#x}
              s_mov_b32 {s(sT5)}, {f2u(2.0**30):#x}
              s_waitcnt lgkmcnt(0)
              v_mul_f32 v85, v84, {v(O+8)}
              v_cmp_nle_f32 vcc, {s(sT4)}, {v(O+8)}
              v_cmp_nge_f32 {s(sT0,2)}, {s(sT5)}, {v(O+8)}
              v_rcp_f32 v86, v85
              s_or_b64 vcc, vcc, {s(sT0,2)}""")
        if self.o.get("force_slow"):
            a("s_mov_b64 vcc, -1")
        a(f"""s_cbranch_vccnz L_attn_slow""")
        a.label(f"L_attn_ok{role}")
        for q in range(8):
            a(f"v_mul_f32 {v(O+q)}, {v(O+q)}, v86")
        for q in range(4):
            a(f"v_cvt_pk_bf16_f32 {v(O+q)}, {v(O+2*q)}, {v(O+2*q+1)}")
        a.vmem(f"buffer_store_dwordx4 {v(O,4)}, v2, {s(sWS,4)}, {s(sOO)} offen sc1", "o")
        self.ts(10)

    def attn_slow(self):
        a = self.a
        S, ML, Kf, O, P = 16, 32, vKf, vO, vP
        sP, sM = sT2, sT3
        a.label("L_attn_slow")
        a(f"""s_cmp_lg_u32 {s(sRedo)}, 0
              s_cbranch_scc1 L_sl_ok
              s_mov_b32 {s(sRedo)}, 1
              s_mov_b32 {s(sM)}, 0
              s_mov_b32 {s(sT0)}, 0xf149f2ca
              v_mov_b32 v86, 0xff7fffff
              v_sub_u32 v87, v123, v120""")
        for r in range(16):
            a(f"v_xor_b32 {v(ML+r)}, {s(sT0)}, {v(vMU+r)}")
            a(f"v_mov_b32 {v(O+r)}, 0")
            a(f"v_mov_b32 {v(vVf+r)}, {s(sOne)}")
        a.label("L_sl_pass")
        a(f"s_mov_b32 {s(sP)}, 0")
        a.label("L_sl_tile")
        a(f"""s_sub_u32 {s(sT0)}, 8, {s(sP)}
              s_lshl_b32 {s(sT0)}, {s(sT0)}, 11
              v_add_u32 v3, {s(sT0)}, v122
              s_cmp_eq_u32 {s(sP)}, 1
              s_cselect_b64 vcc, -1, 0
              v_cndmask_b32 v3, v3, v121, vcc
              s_cmp_eq_u32 {s(sP)}, 0
              s_cselect_b64 vcc, -1, 0
              v_cndmask_b32 v3, v3, v120, vcc
              ds_read_b128 {v(Kf,4)}, v3
              v_add_u32 v3, v3, v87
              s_mov_b64 exec, {s(sEx,2)}
              ds_read_b128 {v(vVf,4)}, v3
              ds_read_b128 {v(vVf+4,4)}, v3 offset:512
              s_mov_b64 exec, -1
              s_waitcnt lgkmcnt(0)
              s_cbranch_scc1 L_sl_lo
              s_cmp_eq_u32 {s(sP)}, 8
              s_cbranch_scc1 L_sl_up
              v_mfma_f32_32x32x16_bf16 {v(S,16)}, {v(Kf,4)}, {v(vQ,4)}, 0
              s_branch L_sl_s""")
        a.label("L_sl_lo")
        a(f"""v_mfma_f32_32x32x16_bf16 {v(S,16)}, {v(Kf,4)}, {v(vQ,4)}, {v(ML,16)}
              s_branch L_sl_s""")
        a.label("L_sl_up")
        a(f"v_mfma_f32_32x32x16_bf16 {v(S,16)}, {v(Kf,4)}, {v(vQ,4)}, {v(vMU,16)}")
        a.label("L_sl_s")
        a(f"""s_cmp_lg_u32 {s(sM)}, 0
              s_cbranch_scc1 L_sl_pv""")
        for j in range(8):
            a(f"v_max3_f32 v86, v86, {v(S+2*j)}, {v(S+2*j+1)}")
        a("s_branch L_sl_next")
        a.label("L_sl_pv")
        for j in range(16):
            a(f"v_sub_f32 {v(S+j)}, {v(S+j)}, v86")
        for j in range(16):
            a(f"v_exp_f32 {v(S+j)}, {v(S+j)}")
        for q in range(8):
            a(f"v_cvt_pk_bf16_f32 {v(P+q)}, {v(S+2*q)}, {v(S+2*q+1)}")
        for hf in range(2):
            a(f"v_mfma_f32_32x32x16_bf16 {v(O,16)}, {v(vVf+4*hf,4)}, {v(P+4*hf,4)}, {v(O,16)}")
        a.label("L_sl_next")
        a(f"""s_add_u32 {s(sP)}, {s(sP)}, 1
              s_cmp_lt_u32 {s(sP)}, {s(sNt)}
              s_cbranch_scc1 L_sl_tile
              s_cmp_lg_u32 {s(sM)}, 0
              s_cbranch_scc1 L_sl_fin
              s_mov_b32 {s(sM)}, 1
              v_mov_b32 v85, v86
              v_permlane32_swap_b32 v85, v86
              v_max_f32 v86, v85, v86
              s_branch L_sl_pass""")
        for nm, tg in (("L_sl_ok", "L_attn_ok"), ("L_sl_fin", "L_attn_fin")):
            a.label(nm)
            a(f"""s_cmp_eq_u32 {s(sRole)}, 0
                  s_cbranch_scc1 {tg}A
                  s_branch {tg}B""")

    def p3(self):
        a = self.a
        acc = [16, 32]; OF = 48
        wof = self.wof
        SPL = int(self.o.get("split", 9))
        self.tm("p3", 1)
        self.lds_spin(vCNT, C_FREE, 4, 3)
        self.tm("p3", 2)
        self.ts(6)
        for k in range(4):
            a.lds(f"ds_read_b128 {v(16+4*k,4)}, v6 offset:{2048*(k>>1) + 16*(k&1)}", f"y{k>>1}")
            a.lds(f"ds_read_b128 {v(32+4*k,4)}, v7 offset:{2048*(k>>1) + 16*(k&1)}", f"y{k>>1}")
        for rd in range(2):
            a.lg_wait(f"y{rd}")
            for q in range(8):
                a(f"v_add_f32 {v(16+8*rd+q)}, {v(16+8*rd+q)}, {v(32+8*rd+q)}")
            for q in range(4):
                a(f"v_cvt_pk_bf16_f32 {v(vP+4*rd+q)}, {v(16+8*rd+2*q)}, {v(16+8*rd+2*q+1)}")
            a.vmem(f"buffer_store_dwordx4 {v(vP+4*rd,4)}, v2, {s(sWS,4)}, {s(sYO)} offen offset:{1024*rd} sc1", "ys")
        if self.o.get("unsafe_y"):
            self.flag_store(sYF, 3)
        a(f"""s_lshl_b32 {s(sT1)}, {s(sI)}, 11
              s_add_u32 m0, {s(sT1)}, {QF}
              s_add_u32 {s(sT0)}, {s(sXS)}, {16384 - 1024}""")
        a.vmem(f"buffer_load_dwordx4 v4, {s(sX,4)}, {s(sXS)} offen lds", "xm")
        a.vmem(f"buffer_load_dwordx4 v4, {s(sX,4)}, {s(sT0)} offen offset:1024 lds", "xm")
        nlate = 2 * len(self.wq)
        while self.wq: self.wload()
        a(f"s_setprio {self.o.get('bprio', 2)}")
        vYT, vYS, vFA, vXR, vOO, vG = 120, 121, 122, 14, 123, 124
        sPend, sTodo, sProc = sNt, sXc, sWc
        a(f"""v_rcp_f32 {v(vG)}, v84
              v_mov_b32 {v(vYT)}, v8
              v_mov_b32 {v(vYS)}, v9
              v_mov_b32 {v(vFA)}, v10
              v_mov_b32 v112, v12
              v_mov_b32 {v(vXR)}, v13
              v_mov_b32 {v(vOO)}, v1
              v_mov_b32 v32, v11
              v_xor_b32 v33, 16, v11
              v_xor_b32 v34, 32, v11
              v_xor_b32 v35, 48, v11
              v_sub_f32 {v(vG)}, 1.0, {v(vG)}
              v_xor_b32 {v(vXR+1)}, 16, {v(vXR)}
              v_mov_b32 {v(vG+1)}, {v(vG)}
              v_mov_b32 v116, 0
              v_mov_b32 v117, 0
              v_mov_b32 v118, 0
              v_mov_b32 v119, 0""")
        a.vm_wait("o")
        self.flag_store(sOF, 4)
        self.tm("p3", 3)
        a(f"""s_add_u32 {s(sRedo)}, {s(sOt)}, 8192
              s_add_u32 {s(sYF2)}, {s(sYS)}, {0x10000 - 1024}
              s_mov_b32 {s(sPend)}, 7
              s_mov_b32 {s(sTodo)}, 0
              s_mov_b32 {s(sProc)}, 8""")
        if not self.o.get("unsafe_y"):
            a.vm_wait("ys")
            self.flag_store(sYF, 4)
        self.ts(7)
        self.tm("p3", 4)
        OFS = [48, 80]
        def o_loads(late):
            so = sLO if late else sEO
            for j in range(8):
                a(f"buffer_load_dwordx4 {v(OFS[late]+4*j,4)}, v2, {s(sWS,4)}, {s(so)} offen offset:{2048*(j&1)} sc1")
                if j & 1 and j < 7:
                    a(f"s_add_u32 {s(so)}, {s(so)}, 4096")
        def o_mm(late):
            for j in range(8):
                for ct in range(2):
                    a(f"v_mfma_f32_32x32x16_bf16 {v(acc[ct],16)}, {v(wof(late,j,ct),4)}, {v(OFS[late]+4*j,4)}, {v(acc[ct],16)}")
        a("s_branch L_pl_p")
        a.label("L_pl_w")
        a(f"""s_mov_b32 {s(sProc)}, {s(sTodo)}
              s_sub_u32 {s(sBud)}, {s(sBud)}, 8
              s_waitcnt vmcnt(0)
              v_cmp_ne_u32 vcc, {s(sTag)}, v5
              s_cmp_gt_i32 {s(sBud)}, 0
              s_cselect_b64 vcc, vcc, 0
              s_cmp_eq_u32 vcc_lo, 0
              s_cselect_b32 {s(sT0)}, 1, 0
              s_and_b32 {s(sT1)}, vcc_hi, 0xff
              s_cselect_b32 {s(sT1)}, 0, 2
              s_or_b32 {s(sT0)}, {s(sT0)}, {s(sT1)}
              s_and_b32 {s(sT1)}, vcc_hi, 0xff00
              s_cselect_b32 {s(sT1)}, 0, 4
              s_or_b32 {s(sT0)}, {s(sT0)}, {s(sT1)}
              s_and_b32 {s(sTodo)}, {s(sT0)}, {s(sPend)}
              s_cbranch_scc0 L_pl_p
              s_andn2_b32 {s(sPend)}, {s(sPend)}, {s(sTodo)}
              s_bitcmp1_b32 {s(sTodo)}, 2
              s_cbranch_scc0 L_pl_i1""")
        self.ts(9)
        self.tm("p3", 9)
        o_loads(1)
        a.label("L_pl_i1")
        a(f"""s_bitcmp1_b32 {s(sTodo)}, 1
              s_cbranch_scc0 L_pl_i0""")
        self.tm("p3", 8)
        o_loads(0)
        a.label("L_pl_i0")
        a(f"""s_bitcmp1_b32 {s(sTodo)}, 0
              s_cbranch_scc0 L_pl_p
              buffer_load_dwordx4 {v(vYS)}, {s(sWS,4)}, {s(sYS)} offen sc1 lds
              buffer_load_dwordx4 {v(vYS)}, {s(sWS,4)}, {s(sYF2)} offen offset:1024 sc1 lds""")
        self.tm("p3", 7)
        a.label("L_pl_p")
        a(f"""s_cmp_eq_u32 {s(sPend)}, 0
              s_cbranch_scc1 L_pl_q
              v_mov_b32 v5, 0
              s_bitcmp1_b32 {s(sPend)}, 0
              s_cselect_b32 exec_lo, -1, 0
              s_mov_b32 exec_hi, 0xffff
              buffer_atomic_or v5, {v(vFA)}, {s(sWS,4)}, 0 offen sc0 sc1
              s_mov_b64 exec, -1""")
        a.label("L_pl_q")
        a(f"""s_cmp_eq_u32 {s(sProc)}, 0
              s_cbranch_scc1 L_pl_n
              s_bitcmp1_b32 {s(sProc)}, 3
              s_cbranch_scc0 L_pl_p0""")
        self.tm("p3", 5)
        a(f"s_waitcnt vmcnt({3 + nlate - (1 if self.o.get('unsafe_y') else 0)})")
        for q in range(4):
            a(f"ds_read_b64 {v(6+2*q,2)}, {v(32+q)}")
        Lx, Ly = a.newlabel("Lep"), a.newlabel("Leb")
        a(f"""s_or_b32 {s(sT0)}, s2, {s(sWave)}
              s_cmp_eq_u32 {s(sT0)}, 0
              s_cbranch_scc1 {Lx}""")
        a.label(Ly)
        keep = (a.lines, list(a.vm))
        a.lines = self.tail
        a.label(Lx)
        a(f"""v_and_b32 v3, 7, v0
              v_lshlrev_b32 v3, 3, v3
              v_bfe_u32 v4, v0, 3, 2
              v_lshl_add_u32 v3, v4, 7, v3
              v_lshrrev_b32 v4, 5, v0
              v_lshl_add_u32 v3, v4, 10, v3""")
        Le, Lf = a.newlabel("Lel"), a.newlabel("Lef")
        a.label(Le)
        for k in range(4):
            a(f"""s_mov_b32 {s(sT0)}, {FKV + 2048*k}
                  buffer_load_dword {v(16+k)}, v3, {s(sWS,4)}, {s(sT0)} offen sc1""")
        a(f"""s_waitcnt vmcnt(0)
              v_xor_b32 v16, {s(sTag)}, v16
              v_xor_b32 v17, {s(sTag)}, v17
              v_xor_b32 v18, {s(sTag)}, v18
              v_xor_b32 v19, {s(sTag)}, v19
              v_or3_b32 v16, v16, v17, v18
              v_or_b32 v16, v16, v19
              v_cmp_ne_u32 vcc, 0, v16
              s_cbranch_vccz {Lf}
              s_sub_u32 {s(sBud)}, {s(sBud)}, 8
              s_cmp_gt_i32 {s(sBud)}, 0
              s_cbranch_scc1 {Le}""")
        a.label(Lf)
        a(f"s_mov_b32 {s(sT0)}, 0")
        self.flag_store(sT0, 4)
        a(f"s_branch {Ly}")
        a.lines, a.vm = keep
        a("s_waitcnt lgkmcnt(0)")
        for ct in range(2):
            a(f"v_mfma_f32_32x32x16_bf16 {v(acc[ct],16)}, v[116:119], v[116:119], 0")
        self.ts(8)
        self.tm("p3", 6)
        a("s_branch L_pl_n")
        a.label("L_pl_p0")
        a(f"""s_bitcmp1_b32 {s(sProc)}, 0
              s_cbranch_scc0 L_pl_p1""")
        yt = [114, 116, 118, 120]
        for q in range(4):
            a(f"ds_read_b64_tr_b16 {v(yt[q],2)}, {v(vYT)} offset:{512*q}")
        for q in range(4):
            for d in range(2):
                xr, yr = 6 + 2 * q + d, yt[q] + d
                a(f"""v_lshlrev_b32 v0, 16, {v(xr)}
                      v_and_b32 v1, {s(sHi)}, {v(xr)}""")
                if d == 0: a(f"s_waitcnt lgkmcnt({3-q})")
                a(f"""v_pk_mul_f32 v[0:1], v[0:1], {v(vG,2)}
                      v_lshlrev_b32 v126, 16, {v(yr)}
                      v_and_b32 v127, {s(sHi)}, {v(yr)}
                      v_pk_fma_f32 {v(acc[0]+4*q+2*d,2)}, v[0:1], v[126:127], {v(acc[0]+4*q+2*d,2)}""")
        for q in range(1, 8):
            a(f"v_xor_b32 {v(112+q)}, {32*q}, v112")
        a.label("L_pl_p1")
        a(f"""s_bitcmp1_b32 {s(sProc)}, 1
              s_cbranch_scc0 L_pl_p2""")
        o_mm(0)
        a.label("L_pl_p2")
        a(f"""s_bitcmp1_b32 {s(sProc)}, 2
              s_cbranch_scc0 L_pl_n""")
        o_mm(1)
        a.label("L_pl_n")
        a(f"""s_cmp_lg_u32 {s(sPend)}, 0
              s_cbranch_scc1 L_pl_w
              s_cmp_eq_u32 {s(sTodo)}, 0
              s_cbranch_scc1 L_pl_x
              s_cmp_lg_u32 {s(sTodo)}, 4
              s_cbranch_scc1 L_pl_w""")
        for j in range(8):
            a(f"s_waitcnt vmcnt({7-j})")
            for ct in range(2):
                a(f"v_mfma_f32_32x32x16_bf16 {v(acc[ct],16)}, {v(wof(1,j,ct),4)}, {v(OFS[1]+4*j,4)}, {v(acc[ct],16)}")
        a.label("L_pl_x")
        self.tm("p3", 10)
        for ct in range(2):
            for q in range(4):
                a(f"ds_write_b128 {v(112+4*ct+q)}, {v(acc[ct]+4*q,4)}")
        a.lg_all()
        a("s_barrier")
        for rd in range(2):
            for src in range(2):
                for b in range(2):
                    a.lds(f"ds_read_b128 {v(48+16*rd+8*src+4*b,4)}, {v(vXR+b)} offset:{FXS*src + 2048*rd}", f"r{rd}")
        of = self.o.get("outflag", "")
        of = " " + of.replace("+", " ") if of else ""
        for rd in range(2):
            a.lg_wait(f"r{rd}")
            b = 48 + 16 * rd
            for q in range(0, 8, 2):
                a(f"v_pk_add_f32 {v(b+q,2)}, {v(b+q,2)}, {v(b+8+q,2)}")
            for q in range(4):
                a(f"v_cvt_pk_bf16_f32 {v(b+q)}, {v(b+2*q)}, {v(b+2*q+1)}")
            a(f"buffer_store_dwordx4 {v(b,4)}, {v(vOO)}, {s(sOUT,4)}, {s(sOt if rd == 0 else sRedo)} offen{of}")

    def dump_ts(self):
        a = self.a
        if self.o.get("padto") or (self.o.get("probe") and self.o["probe"][0] == self.role):
            self.o.setdefault("padto2", self.o.get("padto", 30))
            L = a.newlabel()
            a("s_waitcnt vmcnt(0)")
            if self.o.get("skew"):
                a("""v_mov_b32 v11, 0
                     v_mov_b32 v12, 0
                     s_mov_b64 exec, 1
                     global_load_dword v11, v12, s[96:97] sc1
                     s_waitcnt vmcnt(0)
                     v_readfirstlane_b32 s100, v11
                     s_not_b32 s100, s100""")
            a.label(L)
            a(f"""s_memrealtime s[4:5]
                  s_waitcnt lgkmcnt(0)
                  s_sub_u32 s4, s4, s100
                  s_cmp_lt_u32 s4, {int(self.o["padto2"])*100}
                  s_cbranch_scc1 {L}""")
        if not self.o.get("prof"):
            return
        a(f"""s_waitcnt vmcnt(0)
              s_memtime s[4:5]
              s_memrealtime s[6:7]
              s_waitcnt lgkmcnt(0)
              s_lshl_b32 {s(sT0)}, s2, 3
              s_add_u32 {s(sT0)}, {s(sT0)}, {s(sWave)}
              s_lshl_b32 {s(sT0)}, {s(sT0)}, 6
              s_add_u32 {s(sT0)}, {s(sT0)}, {DBG}
              v_mov_b32 v1, 0
              s_mov_b64 exec, 1""")
        for k in range(11):
            a(f"""v_mov_b32 v2, {s(sTS+2*k)}
                  buffer_store_dword v2, v1, {s(sWS,4)}, {s(sT0)} offen offset:{4*k}""")
        for k, r in ((11, 4), (12, 6), (13, sBud), (14, 26)):
            a(f"""v_mov_b32 v2, {s(r)}
                  buffer_store_dword v2, v1, {s(sWS,4)}, {s(sT0)} offen offset:{4*k}""")

    def insert_stubs(self):
        import subprocess, re as _re, tempfile, os
        a = self.a
        NP = 5
        k = a.lines.index("@IWARM@:")
        disp = []
        for p in range(NP):
            disp += [f"    s_cmp_eq_u32 {s(sI)}, {p % 4}", f"    s_cbranch_scc1 L_pg{p}", f"L_pgr{p}:"]
        a.lines = a.lines[:k] + disp + a.lines[k+1:]
        def sizes(lines):
            body = pad(lines)
            txt = ['.amdgcn_target "amdgcn-amd-amdhsa--gfx950"', ".text", "L_tab:", f"{NAME}_kernel:"]
            n = 0
            for l in body:
                txt.append(l.replace("@CODEMAX@", "0x4000"))
            for p in range(NP):
                if f"L_pg{p}:" not in lines: txt.append(f"L_pg{p}:")
            d = tempfile.mkdtemp()
            open(d + "/t.s", "w").write("\n".join(txt) + "\n")
            subprocess.run(["clang", "-x", "assembler", "-target", "amdgcn-amd-amdhsa", "-mcpu=gfx950", "-c", d + "/t.s", "-o", d + "/t.o"], check=True)
            out = subprocess.run(["llvm-objdump", "-t", d + "/t.o"], capture_output=True, text=True).stdout
            return {m.group(2): int(m.group(1), 16) for m in _re.finditer(r"^([0-9a-f]{16}) .*\s(\S+)$", out, _re.M)}
        for p in range(NP):
            marked = []
            for i, l in enumerate(a.lines):
                marked.append(f"M_{i}:"); marked.append(l)
            ad = sizes(marked)
            tgt = 4096 * (p + 1) - 768 - 4
            cand = [i for i in range(len(a.lines)) if ad[f"M_{i}"] >= tgt]
            if not cand:
                a.lines += [f"L_pg{p}:", f"    s_branch L_pgr{p}"]
                continue
            i = cand[0]
            a.lines = a.lines[:i] + [f"    s_branch L_pgs{p}", f"L_pg{p}:", f"    s_branch L_pgr{p}", f"L_pgs{p}:"] + a.lines[i:]
            if self.o.get("verbose"): print("stub", p, "before", a.lines[i+4], a.lines[i-1])

    def build(self):
        a = self.a
        if self.o.get("padto") or self.o.get("probe"):
            a("s_memrealtime s[100:101]")
        self.prologue()
        self.role = "B"
        self.loader_phase1()
        self.b_start()
        self.attention("B")
        self.p3()
        self.dump_ts()
        a.label("L_end")
        a("s_endpgm")
        self.role = "A"
        self.compute_phase1()
        self.conv()
        if not self.o.get("unsafe_hint"):
            a.vm_all()
        self.flag_store(sOF, 4)
        self.dump_ts()
        a("s_endpgm")
        a.lines += self.tail
        self.attn_slow()
        a.label("L_codeend")
        i0, i1 = a.lines.index("L_compute:"), a.lines.index("@AEND@:")
        blk = a.lines[i0:i1]
        a.lines = a.lines[:i0] + a.lines[i1+1:]
        k = a.lines.index("@ASTART@:")
        a.lines = a.lines[:k] + blk + a.lines[k+1:]
        if self.o.get("iw"):
            self.insert_stubs()
        body = pad(a.lines, verbose=True)
        hdr = open("cdna_kernels/" + NAME + ".s.ref").read().split("\n")
        head = [l for l in hdr if l.startswith(";") and "@launch" not in l and "Override" not in l and "grid=ceil" not in l]
        out = head + [f"; @launch grid=(256,1,1) block=(512,1,1) lds={LDS_BYTES}",
                      '.amdgcn_target "amdgcn-amd-amdhsa--gfx950"', ".text", f".globl {NAME}_kernel", ".p2align 12" if not self.o.get("noal") else ".p2align 8",
                      f".type {NAME}_kernel,@function", f"{NAME}_kernel:"] + body + [
            '.section .rodata,"a"', ".p2align 6", f".amdhsa_kernel {NAME}_kernel",
            "  .amdhsa_next_free_vgpr 256", "  .amdhsa_next_free_sgpr 102", "  .amdhsa_accum_offset 256",
            "  .amdhsa_group_segment_fixed_size 0", "  .amdhsa_kernarg_size 104", "  .amdhsa_user_sgpr_count 2",
            "  .amdhsa_user_sgpr_kernarg_segment_ptr 1", "  .amdhsa_system_sgpr_workgroup_id_x 1",
            ".end_amdhsa_kernel", ""]
        txt = "\n".join(out)
        tab = [".p2align 8", ".type L_tab,@object", "L_tab:"]
        def longs(vals):
            for k in range(0, len(vals), 16):
                tab.append(".long " + ",".join(str(x) if x < 100000 else hex(x) for x in vals[k:k+16]))
        for w in range(8):
            st = self.stB if w < 4 else self.stA
            longs([c[w & 3] for c in st.wc] + [0] * (16 - len(st.wc)))
        tab.append(f".zero {T_PB - 512}")
        for st in (self.stB, self.stA):
            longs(st.data())
            tab.append(f".zero {8192 - 1024 * st.nq()}")
        for wg in range(256):
            for w in range(4):
                t = wg_table(wg, w)
                longs(t)
                tab.append(f".zero {128 - 4 * len(t)}")
        txt += "\n".join(tab) + "\n"
        if self.o.get("rt"):
            txt = txt.replace("s_memtime", "s_memrealtime")
        txt = txt.replace("@CODEMAX@", f"(L_codeend - {NAME}_kernel - 260)")
        print("patterns A/B:", len(self.stA.pat), len(self.stB.pat), "wave consts", len(self.stA.wc), len(self.stB.wc))
        return txt

if __name__ == "__main__":
    opt = {}
    outp = "cdna_kernels/" + NAME + ".s"
    for arg in sys.argv[1:]:
        if arg.startswith("-o"):
            outp = arg[2:]
        elif "=" in arg:
            k, val = arg.split("=", 1)
            opt[k] = val
        else:
            opt[arg] = True
    txt = Gen(opt).build()
    open(outp, "w").write(txt)
    print("wrote", outp, len(txt.split("\n")), "lines")
```

```python
import sys, struct
from asmlib import *

NAME = "gated_mix__sliding_block__ssm_conv_h3__prompt"

LB = 65536
QF = 81920
EX0 = 90112
KC = 98304
KCS = 4224
PY = 115200
RR = 131584
RS = 4576
EX1 = 150016
GW = 158208
GP = 159232
SW = 159744
CNT = 160256
XM = 160000 - 160000 % 256 + 256
LDS_BYTES = 163840
C_KVL, C_PART, C_FREE, C_WO, C_CONV, C_RD2 = 0, 16, 32, 36, 40, 44
WOB = EX0
YXB = LB + 16384
XXB = 155648
FX = KC
FXS = RR - KC

FKV, FO, FY, FU = 0x2000, 0x4000, 0x8000, 0x1000
def fidx(n): return (n >> 4) * 128 + (n & 15) * 4
UG, KVG, YG, OG, DBG = 0x100000, 0x300000, 0x700000, 0x900000, 0xC00000
WFG = 0xB00000
for _a in sys.argv:
    if _a.startswith("kvoff="): KVG = int(_a[6:], 0)
HQX = 2
for _a in sys.argv:
    if _a.startswith('hqx='): HQX = int(_a[4:])
UX = 1
for _a in sys.argv:
    if _a.startswith('ux='): UX = int(_a[3:])
MAP = 1
for _a in sys.argv:
    if _a.startswith('map='): MAP = int(_a[4:])
WS_BYTES = 0x2000000
TAGC = 0x9E3779B9

sX, sW, sWO, sK, sV, sSK, sWS, sOUT = 32, 36, 40, 44, 48, 52, 56, 60
sWave, sRb, sHq, sRot, sTB, sTag, sI, sI4096, sBud, sHi = 64, 65, 66, 67, 68, 70, 71, 72, 73, 3
sT0, sT1, sT2, sT3, sT4, sT5 = 74, 75, 76, 77, 78, 79
sRole, sRedo, sOne = 31, 30, 27
sEx = 0
sOO, sOF, sNt = 4, 5, 6
sU0, sUF, sKO, sKO2, sKF = 7, 8, 9, 10, 11
sUS, sTs, sK4, sYO, sYF, sXS, sYS, sYF2, sOt, sEF, sEO, sKVF, sKVS, sWoS, sKt0 = 7, 9, 10, 11, 12, 13, 14, 15, 16, 17, 18, 19, 20, 21, 22
sD, sQFw, sPw, sKVLw = 32, 33, 34, 35
sTw = 23
sXc, sWc, sUbad, sRem, sKm, sWq1, sLO = 24, 25, 23, 44, 45, 46, 47
sWT = 80
sTS = 80
sFLS = [24, 13, 32, 33, 34, 35, 48, 49, 50]

def wg_decode(wg):
    xcd, loc = wg & 7, wg >> 3
    hb, rg = ((xcd & 1, xcd >> 1) if MAP < 2 else (xcd >> 2, xcd & 3))
    rb = 8 * rg + (loc & 7)
    hq = ((2 * (loc >> 3) + hb) if MAP & 1 else (4 * hb + (loc >> 3))) ^ HQX
    return rb, hq, 32 * xcd + loc

def wg_table(wg, w):
    rb, hq, cp = wg_decode(wg)
    i = w & 3
    qt = (i & 1) if w < 4 else (i & 1) ^ 1
    tt = 2 * rb + qt
    t = [OG + (tt * 32 + 4 * hq + i) * 1024, FO + fidx(tt * 32 + 4 * hq + i), min(tt + 1, 9)]
    if w >= 4:
        rt, ct = i >> 1, i & 1
        g16 = 4 * hq + i
        pair, kt = 2 * hq + ct, 2 * rb + rt
        ko = KVG + (pair * 128 + kt) * 2048
        t += [UG + g16 * 65536 + (248 - 8 * rb) * 64, FU + (g16 * 32 + rb) * 128, ko, ko + 0x20000, FKV + (pair * 64 + kt) * 128]
    else:
        kh, rt = i >> 1, i & 1
        ch = 2 * cp + kh
        cb = 2 * hq + kh
        e = tt * 32 + 16 * kh + rt
        t += [UG + (cp >> 1) * 16384 + (cp & 1) * 32 + i * 4096,
              FU + (cp >> 3) * 128 + max(23 - 8 * i, 0) * 4,
              cp * 8192, ch * 4096 + 4 * rt + 4,
              YG + ch * 4096 + rt * 2048, FY + fidx(rt * 512 + ch),
              tt * 32768 + cb * 64,
              YG + cb * 131072 + tt * 64,
              FY + fidx((rb >> 4) * 512 + cb * 32),
              tt * 32768 + kh * 16384 + hq * 128,
              FO + fidx(e), OG + e * 1024,
              FKV + cb * 512,
              KVG + ((4 * hq + i) * 64 + 2 * rb - 8) * 2048,
              WFG + hq * 65536 + (16 * kh + rt) * 2048 + kh * 1024,
              (2 * rb - 8) & 0xffffffff,
              FU + (hq ^ UX) * 512 + kh * 64 - 64]
    return t

class Setup:
    def __init__(self, tbase):
        self.pat = []; self.wc = []; self.ops = []; self.tbase = tbase
    def p(self, f):
        vals = [f(l) & 0xffffffff for l in range(64)]
        if vals not in self.pat: self.pat.append(vals)
        return self.tbase + self.pat.index(vals)
    def w(self, f):
        vals = [f(i) & 0xffffffff for i in range(4)]
        if vals not in self.wc: self.wc.append(vals)
        assert len(self.wc) <= 16
        return sWT + self.wc.index(vals)
    def add(self, d, pf, wf): self.ops.append(f"v_add_u32 {v(d)}, {s(self.w(wf))}, {v(self.p(pf))}")
    def xor(self, d, pf, wf): self.ops.append(f"v_xor_b32 {v(d)}, {s(self.w(wf))}, {v(self.p(pf))}")
    def mov(self, d, pf): self.ops.append(f"v_mov_b32 {v(d)}, {v(self.p(pf))}")
    def keep(self, d, wf): self.ops.append(f"s_mov_b32 {s(d)}, {s(self.w(wf))}")
    def raw(self, t): self.ops += [x.strip() for x in t.split("\n")]
    def nq(self): return (len(self.pat) + 3) // 4
    def data(self):
        pat = self.pat + [[0] * 64] * (4 * self.nq() - len(self.pat))
        return [pat[4 * q + c][l] for q in range(self.nq()) for l in range(64) for c in range(4)]
    def attn(self, qt):
        l16 = lambda l: l * 16
        vl = lambda l: 1024 + (l >> 5) * 256 + (l & 15) * 16
        pos = [lambda i: LB + i * 4096 + qt(i) * 2048,
               lambda i: LB + i * 4096 if qt(i) else i * 16384 + 7 * 2048,
               lambda i: i * 16384 + qt(i) * 2048]
        self.add(14, l16, lambda i: QF + (2 * i + qt(i)) * 1024)
        self.add(15, lambda l: (l & 31) * 8, lambda i: GP + qt(i) * 256)
        for k in range(3):
            self.add(120 + k, l16, pos[k]); self.add(123 + k, vl, pos[k])
        self.raw(f"""s_mov_b32 {s(sRedo)}, 0
                     s_mov_b32 {s(sOne)}, 0x3f803f80
                     s_mov_b32 {s(sEx)}, 0xffff
                     s_mov_b32 {s(sEx+1)}, 0xffff
                     s_mov_b32 {s(sBud)}, 0x40000
                     s_mov_b32 {s(sHi)}, 0xffff0000
                     v_mov_b32 {v(126)}, {CNT}
                     v_mov_b32 {v(127)}, 1""")

T_WAVE, T_PB, T_PA, T_WG = 0, 1024, 1024 + 8192, 1024 + 16384
NQ = 4

LOG2E = 1.4426950408889634

def f2u(x):
    return struct.unpack("<I", struct.pack("<f", x))[0]

vO, vVf, vQ, vP, vKf, vMU = 48, 64, 80, 88, 96, 104
vML = vO
vKA, vUA, vQA, vGA, vDF = 84, 85, 86, 87, 116
vAK, vAV, vCNT, vONE = 120, 123, 126, 127

class Gen:
    def __init__(self, opt):
        self.o = opt
        self.a = Asm()
        self.tail = []
        self.role = "*"

    def tss(self, st, pre):
        m = self.o.get("prof")
        if isinstance(m, str) and m.startswith("pre" if pre else "post"):
            base = int(m[3:] if pre else m[4:])
            if 0 <= st - base < 10:
                self.a(f"s_memtime {s(sTS + 2 * (st - base + 1), 2)}")

    def tm(self, mode, k):
        if self.o.get("prof") == mode:
            self.a(f"s_memtime {s(sTS + 2 * k, 2)}")

    def ts(self, k):
        pr = self.o.get("probe")
        if pr and int(pr[1:]) == k and (self.role == pr[0] or self.role == "*"):
            self.a("s_memrealtime s[100:101]")
        if self.o.get("prof") is True or (self.o.get("prof") and k == 0):
            self.a(f"s_memtime {s(sTS + 2 * k, 2)}")

    def lds_spin(self, vaddr, off, target, vt):
        a = self.a
        L, D = a.newlabel("Lsp"), a.newlabel("Lsd")
        a.label(L)
        a(f"""ds_read_b32 {v(vt)}, {v(vaddr)} offset:{off}
              s_waitcnt lgkmcnt(0)
              v_readfirstlane_b32 {s(sT5)}, {v(vt)}
              s_cmp_ge_u32 {s(sT5)}, {target}
              s_cbranch_scc1 {D}
              s_sleep 1
              s_sub_u32 {s(sBud)}, {s(sBud)}, 1
              s_cmp_gt_i32 {s(sBud)}, 0
              s_cbranch_scc1 {L}""")
        a.label(D)
        a.lg = []

    def lds_signal(self, vaddr, off):
        a = self.a
        a(f"""s_mov_b64 exec, 1
              ds_add_u32 {v(vaddr)}, {v(vONE)} offset:{off}
              s_mov_b64 exec, -1""")
        a.lg.append("sig")

    def look(self, vt, voff, soff, mask):
        return f"""v_mov_b32 {v(vt)}, {s(sTag)}
                   s_mov_b64 exec, {mask}
                   v_mov_b32 {v(vt)}, 0
                   buffer_atomic_or {v(vt)}, {v(voff)}, {s(sWS,4)}, {soff} offen sc0 sc1
                   s_mov_b64 exec, -1"""

    def poll(self, voff, soff, vt, mask, first_done=False):
        a = self.a
        L, C, D = a.newlabel("Lpl"), a.newlabel("Lpc"), a.newlabel("Lpd")
        if first_done:
            a(f"s_branch {C}")
        a.label(L)
        a(self.look(vt, voff, soff, mask))
        a("s_waitcnt vmcnt(0)")
        a.label(C)
        a(f"""v_cmp_ne_u32 vcc, {s(sTag)}, {v(vt)}
              s_cbranch_vccz {D}
              s_sleep {int(self.o.get("sleep", 1))}
              s_sub_u32 {s(sBud)}, {s(sBud)}, 8
              s_cmp_gt_i32 {s(sBud)}, 0
              s_cbranch_scc1 {L}""")
        a.label(D)
        if not first_done:
            a.vm = []

    def flag_store(self, soff, vt):
        a = self.a
        a(f"""v_mov_b32 {v(vt)}, {s(sTag)}
              s_mov_b64 exec, 1""")
        a.vmem(f"buffer_atomic_swap {v(vt)}, off, {s(sWS,4)}, {s(soff)} sc1", "flag")
        a("s_mov_b64 exec, -1")

    def srd_const(self, d, size):
        self.a(f"""s_mov_b32 {s(d+2)}, {size}
                   s_mov_b32 {s(d+3)}, 0x20000""")

    def srd_ptr(self, d, p):
        self.a(f"s_mov_b64 {s(d,2)}, {s(p,2)}")

    def prologue(self):
        a = self.a
        a(f"""s_load_dwordx16 s[4:19], s[0:1], 0
              s_load_dwordx8 s[20:27], s[0:1], 64
              s_load_dwordx2 s[28:29], s[0:1], 96
              s_cmp_ge_u32 s2, 256
              s_cbranch_scc1 L_end""")
        if self.o.get("prof"):
            a("s_memtime s[96:97]\ns_memrealtime s[98:99]")
        a(f"""v_lshrrev_b32 v1, 6, v0
              v_and_b32 v0, 63, v0
              v_readfirstlane_b32 {s(sWave)}, v1
              s_getpc_b64 {s(sTB,2)}
              s_add_u32 {s(sTB)}, {s(sTB)}, L_tab@rel32@lo+4
              s_addc_u32 {s(sTB+1)}, {s(sTB+1)}, L_tab@rel32@hi+12
              s_cmp_lt_u32 {s(sWave)}, 4
              s_cbranch_scc1 L_loader
              v_lshlrev_b32 v2, 4, v0
              v_add_u32 v1, {T_PA + 4096}, v2""")
        for q in range(NQ):
            a(f"global_load_dwordx4 {v(128+4*q,4)}, v1, {s(sTB,2)} offset:{1024*q - 4096}")
        if not self.o.get("notb"):
            a(f"""v_lshlrev_b32 v3, 7, v0
                  s_lshl_b32 {s(sT0)}, s2, 9
                  s_add_u32 {s(sT0)}, {s(sT0)}, {T_WG}
                  v_add_u32 v4, {s(sT0)}, v3
                  s_bfe_u32 {s(sT0)}, s2, 0x30003
                  s_lshl_b32 {s(sT0)}, {s(sT0)}, 9
                  s_add_u32 {s(sT0)}, {s(sT0)}, {T_PB - 512}
                  v_add_u32 v3, {s(sT0)}, v3
                  s_mov_b64 vcc, 15
                  v_cndmask_b32 v3, v3, v4, vcc
                  s_cmp_eq_u32 {s(sWave)}, 4
                  s_cselect_b64 exec, 0xff, 1
                  global_load_dword v255, v3, {s(sTB,2)}
                  s_mov_b64 exec, -1""")
        if (not self.o.get("nocw")):
            CWN = int(self.o.get("cwn", 8))
            a(f"""s_bfe_u32 {s(sT0)}, s2, {0x30003 if CWN == 8 else 0x40003}
                  s_mul_i32 {s(sT0)}, {s(sT0)}, {(192 // CWN) * 128}
                  v_lshlrev_b32 v3, 7, v0
                  v_add_u32 v3, {s(sT0)}, v3
                  v_min_u32 v3, @CODEMAX@, v3
                  s_getpc_b64 {s(sT2,2)}
                  s_and_b32 {s(sT2)}, {s(sT2)}, 0xffffff00
                  s_cmp_eq_u32 {s(sWave)}, 5
                  s_cselect_b64 exec, {(1 << (192 // CWN)) - 1}, 1
                  global_load_dword v255, v3, {s(sT2,2)}
                  s_mov_b64 exec, -1""")
        if not self.o.get("lateA"):
            self.scalar_tables()
        a("s_branch L_compute")
        a.label("L_loader")

    def decode(self):
        self.a(f"""s_bfe_u32 {s(sRb)}, s2, {0x20001 if MAP < 2 else 0x20000}
              s_bfe_u32 {s(sT2)}, s2, 0x30003                ; local & 7
              s_lshl3_add_u32 {s(sRb)}, {s(sRb)}, {s(sT2)}
              s_bfe_u32 {s(sHq)}, s2, {0x10000 if MAP < 2 else 0x10002}
              s_lshr_b32 {s(sT2)}, s2, 6
              s_lshl1_add_u32 {s(sRot)}, {s(sT2)}, {s(sRb)}
              {"s_lshl1_add_u32 %s, %s, %s" % (s(sHq), s(sT2), s(sHq)) if MAP & 1 else "s_lshl2_add_u32 %s, %s, %s" % (s(sHq), s(sHq), s(sT2))}
              {"s_xor_b32 %s, %s, %d" % (s(sHq), s(sHq), HQX) if HQX else ""}
              s_and_b32 {s(sRot)}, {s(sRot)}, 7
              s_and_b32 {s(sI)}, {s(sWave)}, 3""")

    def scalar_tables(self):
        self.a(f"""s_lshl_b32 {s(sT0)}, {s(sWave)}, 6
              s_load_dwordx16 {s(sWT,16)}, {s(sTB,2)}, {s(sT0)}""")

    def setup_done(self):
        if self.o.get("prof"):
            self.a(f"s_mov_b32 {s(sTS)}, s96\ns_mov_b32 s26, s98")
            for k in range(1, 11):
                self.a(f"s_mov_b32 {s(sTS+2*k)}, 0")

    def mask_ops(self, vn, vz):
        out = [[f"v_mov_b32 {v(vn)}, 0xf149f2ca", f"v_mov_b32 {v(vz)}, 0"]]
        for r in range(16):
            jj = (r & 3) + 8 * (r >> 2)
            out.append([f"s_lshl_b32 vcc_lo, -1, {jj}", f"s_lshl_b32 vcc_hi, -1, {jj+4}",
                        f"v_cndmask_b32 {v(vML+r)}, {v(vn)}, {v(vz)}, vcc",
                        f"v_cndmask_b32 {v(vMU+r)}, {v(vz)}, {v(vn)}, vcc"])
        return out

    def const_ops(self):
        if self.o.get("allones"):
            return [[f"v_mov_b32 {v(vVf+r)}, {s(sOne)}"] for r in range(16)]
        out = [["s_mov_b32 vcc_lo, 0x110000", "s_mov_b32 vcc_hi, 0x110000", f"v_mov_b32 {v(vVf+1)}, {s(sOne)}",
                f"v_cndmask_b32 {v(vVf)}, 0, {v(vVf+1)}, vcc"]]
        for r in range(1, 16):
            out.append([f"v_mov_b32 {v(vVf+r)}, {v(vVf)}"])
        return out

    def u_reads(self, j):
        a = self.a
        kq, vq = 200 + 10 * j, 206 + 10 * j
        if j == 1:
            a("v_xor_b32 v192, 16, v192\nv_xor_b32 v193, 16, v193")
        a.lds(f"ds_read_b64_tr_b16 {v(kq,2)}, v192 offset:512", f"u{j}")
        a.lds(f"ds_read_b64_tr_b16 {v(kq+2,2)}, v193 offset:1024", f"u{j}")
        a.lds(f"ds_read_b64_tr_b16 {v(kq+4,2)}, v193 offset:1536", f"u{j}")
        a.lds(f"ds_read_b64_tr_b16 {v(vq,2)}, v192 offset:9216", f"u{j}")
        a.lds(f"ds_read_b64_tr_b16 {v(vq+2,2)}, v192 offset:9728", f"u{j}")

    def u_math(self, j):
        a = self.a
        kq, vq, sw, kx, ks, vf, pk = 200 + 10 * j, 206 + 10 * j, 196 + 2 * j, 220, 226, 234, 244 + 4 * j
        a.lg_wait(f"u{j}")
        a(f"""v_alignbit_b32 {v(sw)}, {v(sw)}, {v(sw)}, 16
              v_alignbit_b32 {v(sw+1)}, {v(sw+1)}, {v(sw+1)}, 16""")
        for q in range(5):
            a(f"v_alignbit_b32 {v(kx+q)}, {v(kq+q+1)}, {v(kq+q)}, 16")
        def lo(t): return kq + (t + 1) // 2 if t & 1 else kx + t // 2
        def hi(t): return kq + (t + 3) // 2 if t & 1 else kx + (t + 2) // 2
        order = [1, 3, 5, 7, 0, 2, 4, 6]
        for t in order:
            a(f"v_dot2_f32_bf16 {v(ks+t)}, {v(lo(t))}, {v(sw+1)}, 0")
        for t in order:
            a(f"v_dot2_f32_bf16 {v(ks+t)}, {v(hi(t))}, {v(sw)}, {v(ks+t)}")
        for t in range(8):
            src = vq + (t >> 1)
            if t & 1: a(f"v_and_b32 {v(vf+t)}, {s(sHi)}, {v(src)}")
            else:     a(f"v_lshlrev_b32 {v(vf+t)}, 16, {v(src)}")
        for t in range(0, 8, 2):
            a(f"v_pk_mul_f32 {v(ks+t,2)}, {v(ks+t,2)}, {v(vf+t,2)}")
        for q in range(4):
            a(f"v_cvt_pk_bf16_f32 {v(pk+q)}, {v(ks+7-2*q)}, {v(ks+6-2*q)}")
        if j == 1:
            a(f"s_add_u32 {s(sU0)}, {s(sU0)}, 0x8000")
        a.vmem(f"buffer_store_dwordx4 {v(pk,4)}, v194, {s(sWS,4)}, {s(sU0)} offen sc1", "ust")

    def loader_phase1(self):
        a = self.a
        vXa, vXb, vWa, vWb, vKVo, vK0 = 16, 17, 18, 19, 20, 21
        vHd, vHa, vUo, vFo, vRa, vFu, vKc = 22, 23, 24, 25, 26, 27, 28
        a.vm = []; a.lg = []
        ldf = " nt" if self.o.get("ntkv") else ""
        ldx = " nt" if self.o.get("ntx") else ""
        ldw = " nt" if self.o.get("ntw") else ""
        st = self.stB = Setup(128)
        kh = lambda i: i >> 1
        rt = lambda i: i & 1
        l16 = lambda l: l * 16
        st.attn(rt)
        st.mov(2, l16)
        st.mov(28, lambda l: ((((l >> 4) & 1) + (l & 15) - 15) * 4) | ((l >> 5) << 12))
        st.mov(vHa, lambda l: KC + (l >> 4) * KCS + (l & 15) * 4)
        st.add(31, l16, lambda i: RR + 4096 + i * RS)
        st.add(vRa, lambda l: RR + (l & 1) * 2 * RS + (l >> 1) * 16, lambda i: i * 1024)
        st.mov(vUo, lambda l: (l >> 1) * 64 + (l & 1) * 16)
        st.mov(4, lambda l: (l >> 2) * 1024 + (((l >> 4) ^ l) & 3) * 16)
        st.add(11, lambda l: QF + (l & 31) * 64 + ((l >> 2) & 3) * 16 + (l >> 5) * 8, lambda i: i * 2048)
        ex = lambda i: (EX1 if kh(i) else EX0)
        st.add(6, lambda l: l * 32, lambda i: ex(i) + rt(i) * 4096)
        st.add(7, lambda l: l * 32, lambda i: PY + i * 4096)
        trc = lambda l: (l & 3) * 8 + ((l >> 4) & 1) * 32
        trr = lambda l: 4 * (l >> 5) + ((l >> 2) & 3)
        st.add(8, lambda l: QF + trr(l) * 64 + trc(l), lambda i: i * 2048)
        st.mov(9, lambda l: (l >> 2) * 4096 + (l & 3) * 16)
        st.mov(10, lambda l: fidx(l) if l < 32 else (l & 7) * 8 + ((l >> 3) & 1) * 4)
        st.add(12, lambda l: (l & 31) * 256 + (((l >> 5) ^ l) & 7) * 16, lambda i: FX + rt(i) * 8192 + kh(i) * (FXS + 128))
        st.add(13, lambda l: (l >> 3) * 256 + ((2 * (l & 7)) ^ (l >> 3)) * 16, lambda i: FX + rt(i) * 8192 + kh(i) * 4096)
        st.mov(1, lambda l: (l >> 3) * 1024 + (l & 7) * 16)
        st.keep(sKm, lambda i: KC + 64 + i * KCS)
        a("s_setprio 3")
        self.decode()
        a(f"""v_lshrrev_b32 v2, 3, v0            ; r
              v_and_b32 v3, 7, v0                ; c'
              v_lshrrev_b32 v4, 4, v0            ; r>>1
              v_and_b32 v5, 1, v4                ; (r>>1)&1
              s_lshl_b32 {s(sT0)}, {s(sI)}, 3
              v_add_u32 v6, {s(sT0)}, v2         ; 8i + r
              s_lshl_b32 {s(sT1)}, {s(sI)}, 1
              v_add_u32 v7, {s(sT1)}, v5
              v_xor_b32 v7, v7, v3
              v_lshlrev_b32 v7, 4, v7
              v_lshl_add_u32 {v(vKVo)}, v6, 10, v7
              s_lshl_b32 {s(sT2)}, {s(sRb)}, 16
              s_lshl_b32 {s(sT5)}, {s(sHq)}, 7
              s_add_u32 {s(sT2)}, {s(sT2)}, {s(sT5)}
              {"s_xor_b32 %s, %s, %d" % (s(sT2), s(sT2), UX * 128) if UX else ""}
              s_add_u32 {s(sT3)}, {s(sI)}, 1                 ; k rows sit one piece further in the staging area
              s_xor_b32 {s(sT3)}, {s(sT3)}, {s(sI)}
              s_and_b32 {s(sT3)}, {s(sT3)}, 3
              s_lshl_b32 {s(sT3)}, {s(sT3)}, 5
              v_xor_b32 {v(vK0)}, {s(sT3)}, {v(vKVo)}
              s_lshr_b32 {s(sT3)}, {s(sI)}, 1
              v_xor_b32 v8, {s(sT3)}, v0
              v_lshlrev_b32 v8, 4, v8
              s_lshl_b32 {s(sT3)}, {s(sI)}, 10
              s_add_u32 {s(sT3)}, {s(sT3)}, {s(sT2)}
              s_sub_u32 {s(sT3)}, {s(sT3)}, 0x1000
              v_add_u32 v8, {s(sT3)}, v8
              s_lshl2_add_u32 {s(sT3)}, {s(sHq)}, {s(sI)}
              {"s_xor_b32 %s, %s, %d" % (s(sT3), s(sT3), UX * 4) if UX else ""}
              s_lshl_b32 {s(sT3)}, {s(sT3)}, 7
              v_lshlrev_b32 v9, 4, v0
              v_add_u32 v9, {s(sT3)}, v9
              s_add_u32 {s(sT3)}, {s(sT1)}, {s(sRot)}
              v_add_u32 v10, {s(sT3)}, v2
              v_and_b32 v10, 7, v10
              v_lshlrev_b32 v10, 7, v10
              v_lshl_add_u32 v10, v3, 4, v10
              v_lshlrev_b32 v11, 2, v5
              v_xor_b32 v11, v11, v3
              v_lshlrev_b32 v11, 4, v11
              v_lshl_add_u32 v11, v2, 10, v11
              s_lshl2_add_u32 {s(sT3)}, {s(sRb)}, {s(sI)}
              s_lshl_b32 {s(sT3)}, {s(sT3)}, 12
              s_add_u32 {s(sT3)}, {s(sT3)}, {s(sT5)}
              v_add_u32 v11, {s(sT3)}, v11
              v_add_u32 v6, {s(sT0)}, v6         ; 16i + r
              v_xor_b32 v7, v4, v3
              v_lshlrev_b32 v7, 4, v7
              v_lshl_add_u32 {v(vXa)}, v6, 10, v7
              v_xor_b32 {v(vXb)}, 64, {v(vXa)}
              v_add_u32 {v(vXb)}, 7168, {v(vXb)}
              v_lshlrev_b32 v7, 2, v5
              v_xor_b32 v7, v7, v3
              v_lshlrev_b32 v7, 4, v7
              v_mul_u32_u24 {v(vWa)}, 0xc00, v6
              v_add_u32 {v(vWa)}, {v(vWa)}, v7
              v_add_u32 {v(vWb)}, 23552, {v(vWa)}
              s_lshl_b32 {s(sI4096)}, {s(sI)}, 12
              s_lshl_b32 {s(sT1)}, {s(sI)}, 10
              s_lshl_b32 {s(sT3)}, {s(sI)}, 7
              s_add_u32 {s(sT4)}, {s(sT2)}, 0x8000""")
        self.srd_const(sK, 0x200000); self.srd_const(sV, 0x200000)
        self.srd_const(sX, 0x200000); self.srd_const(sW, 0x180000 + 2048); self.srd_const(sOUT, 0x200000)
        a(f"""s_add_u32 m0, {s(sT3)}, {SW}
              s_mov_b64 exec, 0xff
              s_waitcnt lgkmcnt(0)""")
        if not self.o.get("notiny"): a.vmem("global_load_lds_dwordx4 v9, s[16:17]", "kv")
        a(f"s_add_u32 m0, {s(sT3)}, {RR + 512}")
        self.srd_ptr(sK, 12)
        a.vmem(f"buffer_load_dwordx4 v8, {s(sK,4)}, 0 offen{ldf} lds", "kv")
        a(f"""s_lshl2_add_u32 m0, {s(sT3)}, {EX1}
              s_mov_b32 exec_lo, -1""")
        if not self.o.get("notiny"): a.vmem("global_load_lds_dwordx4 v11, s[8:9]", "kv")
        a(f"""s_mov_b64 exec, -1
              s_add_u32 m0, {s(sT1)}, {RR + 1024}""")
        self.srd_ptr(sV, 14)
        a.vmem(f"buffer_load_dwordx4 {v(vK0)}, {s(sK,4)}, {s(sT2)} offen{ldf} lds", "kv")
        a(f"s_add_u32 m0, {s(sT1)}, {RR + 1024 + 4096}")
        self.srd_ptr(sX, 4)
        a.vmem(f"buffer_load_dwordx4 {v(vK0)}, {s(sK,4)}, {s(sT4)} offen{ldf} lds", "kv")
        a(f"""s_add_u32 m0, {s(sT1)}, {RR + 9216}
              s_lshl_b32 {s(sT3)}, {s(sT3)}, 1""")
        a.vmem(f"buffer_load_dwordx4 {v(vKVo)}, {s(sV,4)}, {s(sT2)} offen{ldf} lds", "kv")
        a(f"""s_add_u32 m0, {s(sT1)}, {RR + 9216 + 4096}
              s_nop 0""")
        a.vmem(f"buffer_load_dwordx4 {v(vKVo)}, {s(sV,4)}, {s(sT4)} offen{ldf} lds", "kv")
        a(f"""s_add_u32 m0, {s(sT3)}, {GW}
              s_mov_b64 exec, 0xffff""")
        if not self.o.get("notiny"): a.vmem("global_load_lds_dwordx4 v10, s[22:23]", "st0")
        a(f"""s_mov_b64 exec, -1
              s_sub_u32 {s(sW)}, s6, 2048""")
        self.srd_ptr(sOUT, 24)
        a(f"""s_subb_u32 {s(sW+1)}, s7, 0
              s_lshl_b32 {s(sXc)}, {s(sRot)}, 7
              s_lshl_b32 {s(sT0)}, {s(sRb)}, 16
              s_add_u32 {s(sXc)}, {s(sXc)}, {s(sT0)}
              s_mul_i32 {s(sWc)}, {s(sRot)}, 0x30000
              s_add_u32 {s(sWc)}, {s(sWc)}, {s(sT5)}
              s_add_u32 {s(sWc)}, {s(sWc)}, 1024""")

        def adv_w():
            a(f"""s_add_u32 {s(sWc)}, {s(sWc)}, 0x30000
                  s_sub_u32 {s(sT0)}, {s(sWc)}, 0x180000
                  s_cselect_b32 {s(sWc)}, {s(sWc)}, {s(sT0)}""")
        def issue_stage(st):
            tag = f"st{st}"
            a(f"s_add_u32 m0, {s(sI4096)}, {(st % 6) * 16384}")
            if st < 8:
                a("s_nop 0")
                a.vmem(f"buffer_load_dwordx4 {v(vXa)}, {s(sX,4)}, {s(sXc)} offen{ldx} lds", tag)
                a.vmem(f"buffer_load_dwordx4 {v(vWa)}, {s(sW,4)}, {s(sWc)} offen offset:2048{ldw} lds", tag)
                a.vmem(f"buffer_load_dwordx4 {v(vXb)}, {s(sX,4)}, {s(sXc)} offen offset:1024{ldx} lds", tag)
                a.vmem(f"buffer_load_dwordx4 {v(vWb)}, {s(sW,4)}, {s(sWc)} offen offset:3072{ldw} lds", tag)
                a(f"""s_add_u32 {s(sT0)}, {s(sXc)}, 128
                      s_and_b32 {s(sT0)}, {s(sT0)}, 0x3ff
                      s_andn2_b32 {s(sXc)}, {s(sXc)}, 0x3ff
                      s_or_b32 {s(sXc)}, {s(sXc)}, {s(sT0)}""")
                adv_w()
            else:
                a(f"s_add_u32 {s(sT1)}, {s(sWc)}, 2048")
                a.vmem(f"buffer_load_dwordx4 {v(vWa)}, {s(sW,4)}, {s(sT1)} offen{ldw} lds", tag)
                a.vmem(f"buffer_load_dwordx4 {v(vWb)}, {s(sW,4)}, {s(sT1)} offen offset:1024{ldw} lds", tag)
                adv_w()
                a.vmem(f"buffer_load_dwordx4 {v(vWa)}, {s(sW,4)}, {s(sWc)} offen offset:2048{ldw} lds", tag)
                a.vmem(f"buffer_load_dwordx4 {v(vWb)}, {s(sW,4)}, {s(sWc)} offen offset:3072{ldw} lds", tag)
                adv_w()
            if st == int(self.o.get("fake3", -1)):
                a(f"""s_cmp_eq_u32 {s(sHq)}, 3
                      s_cselect_b32 {s(sT0)}, 128, 0
                      s_sub_u32 {s(sWc)}, {s(sWc)}, {s(sT0)}""")
            if st == 7:
                a(f"s_add_u32 {s(sWc)}, {s(sWc)}, 1024")
            if st == 11:
                a(f"s_sub_u32 {s(sWc)}, {s(sWc)}, 2048")

        D = int(self.o.get("depth", 3))
        D0 = int(self.o.get("depth0", 0))
        issue_stage(0)
        for st in range(1, D0 + 1):
            issue_stage(st)
        nissued = D0 + 1
        a("s_setprio 0")
        if self.o.get("skew"):
            a("""s_mov_b64 s[96:97], s[26:27]
                 s_not_b32 s98, s100
                 v_mov_b32 v11, s98
                 v_mov_b32 v12, 0
                 s_lshr_b32 s99, s2, 3
                 s_or_b32 s99, s99, s64
                 s_cmp_eq_u32 s99, 0
                 s_cselect_b32 s99, 0, 128
                 v_mov_b32 v12, s99
                 s_mov_b64 exec, 1
                 s_cbranch_scc0 L_nosk
                 global_atomic_umax v12, v11, s[96:97] sc1
                 L_nosk:""")
            a("s_mov_b64 exec, -1")
        a(f"""s_and_b32 {s(sT0)}, s2, 7
              s_lshl_b32 {s(sT0)}, {s(sT0)}, 5
              s_lshr_b32 {s(sT1)}, s2, 3
              s_add_u32 {s(sT0)}, {s(sT0)}, {s(sT1)}
              s_lshl_b32 {s(sT0)}, {s(sT0)}, 1
              v_lshrrev_b32 v29, 5, v0
              v_add_lshl_u32 v29, {s(sT0)}, v29, 1""")
        a.vmem("global_load_ushort v29, v29, s[20:21]", "d")
        self.srd_const(sWS, WS_BYTES); self.srd_ptr(sWS, 28)
        self.srd_const(sSK, 0x200000); self.srd_ptr(sSK, 18)
        self.scalar_tables()
        a(f"""s_load_dword {s(sTag)}, s[28:29], 0
              s_lshl2_add_u32 {s(sT0)}, s2, {s(sI)}
              s_lshl_b32 {s(sT0)}, {s(sT0)}, 7
              s_load_dwordx16 s[4:19], {s(sTB,2)}, {s(sT0)} offset:{T_WG}
              s_load_dwordx4 s[20:23], {s(sTB,2)}, {s(sT0)} offset:{T_WG + 64}""")
        a(f"""s_mov_b32 {s(sRole)}, 1
              s_lshl_b32 {s(sRem)}, {s(sI)}, 14
              v_mov_b32 v44, 0
              v_mov_b32 v45, 0
              v_mov_b32 v46, 0
              v_mov_b32 v47, 0
              v_lshlrev_b32 v8, 2, v0
              v_add_u32 v8, {CNT}, v8
              ds_write_b32 v8, v44
              v_and_b32 v39, 7, v0""")
        a(f"s_mov_b32 {s(sOne)}, 0x3f803f80")
        for g in self.mask_ops(4, 5) + self.const_ops():
            for l in g: a(l)
        a.vm_wait("kv")
        a("s_barrier")
        a("s_branch L_b1")
        a("@ASTART@:")
        a.label("L_b1")
        for st in range(nissued, int(self.o.get("depthk", 3)) + 1):
            issue_stage(st); nissued += 1
        a(f"""v_lshlrev_b32 v1, 4, v0
              v_add_u32 v1, {T_PB + 4096}, v1""")
        for q in range(self.stB.nq()):
            a.vmem(f"global_load_dwordx4 {v(128+4*q,4)}, v1, {s(sTB,2)} offset:{1024*q - 4096}", "tab")
        idle = [[l] for l in self.stB.ops]
        setup_open = True
        IB = int(self.o.get("idleb", 14))
        D1 = int(self.o.get("depth1", 3))

        def u_loads():
            a.vmem(f"buffer_load_dwordx4 v[128:131], {v(vUo)}, {s(sWS,4)}, {s(sUS)} offen sc1", "u")
            a.vmem(f"buffer_load_dwordx4 v[136:139], {v(vUo)}, {s(sWS,4)}, {s(sUS)} offen offset:2048 sc1", "u")
            a(f"""s_cmp_eq_u32 {s(sI)}, 3
                  s_cselect_b32 {s(sT1)}, {WS_BYTES}, {s(sUS)}
                  s_lshl_b64 exec, 3, 62""")
            a.vmem(f"buffer_load_dword v141, {v(vUo)}, {s(sWS,4)}, {s(sT1)} offen offset:{2048+64} sc1", "u")
            a("s_mov_b64 exec, -1")

        KC0 = int(self.o.get("kc0", 14))
        UL = int(self.o.get("ulook", 14))
        T0 = int(self.o.get("t0", 5))
        idle += [[f"s_add_u32 {s(sTag)}, {s(sTag)}, {TAGC}"], [f"s_xor_b32 {s(sLO)}, {s(sEO)}, 1024"],
                 [f"s_xor_b32 s40, {s(sWoS)}, 1024"], [f"s_xor_b32 s41, {s(sWoS)}, 2048"], [f"s_xor_b32 s42, {s(sWoS)}, 3072"],
                 ["s_mov_b32 s48, 0xffff00ff", "s_mov_b32 s49, 0", f"s_cmp_eq_u32 {s(sRb)}, 0", "s_cselect_b32 s48, 0xffff0000, s48"],
                 [f"v_lshlrev_b32 {v(vFo)}, 2, v0"],
                 [f"v_add_u32 v39, {s(sKt0)}, v39"], ["v_max_i32 v39, 0, v39"],
                 ["v_and_b32 v3, 0x70, v39", "v_add_lshl_u32 v39, v39, v3, 2"],
                 [f"v_add_u32 v39, {s(sKVF)}, v39", "s_mov_b32 exec_lo, 0xffff0000", f"v_add_u32 v39, {s(sTw)}, {v(vFo)}", "s_mov_b32 exec_lo, -1"],
                 ["s_mov_b32 exec_hi, 0", f"v_add_u32 v10, {s(sYF2)}, v10", "s_not_b64 exec, exec",
                  f"v_xor_b32 v10, {s(sEF)}, v10", "s_mov_b64 exec, -1"]]
        US = int(self.o.get('uscal', 12))
        for st in range(17):
            while nissued <= min(st + (D0 if st == 0 else D1 if st == 1 else D), 15):
                issue_stage(nissued); nissued += 1
            if st == US:
                assert not idle
                a(f"""s_load_dwordx8 s[88:95], s[28:29], {s(sUF)}
                      s_load_dword s51, s[28:29], {s(sUF)} offset:32""")
            if st == KC0:
                a(f"s_mov_b32 m0, {s(sKm)}")
                a.vmem(f"buffer_load_dword {v(vHd)}, v28, {s(sSK,4)}, {s(sTs)} offen", "kc")
                for p in range(4):
                    a.vmem(f"buffer_load_dwordx4 v2, {s(sSK,4)}, {s(sK4)} offen offset:{1024*p}{ldf} lds", "kc")
            if st == UL:
                a("s_waitcnt lgkmcnt(0)")
                u_loads()
            if st == 16:
                break
            if st == T0:
                a("s_waitcnt lgkmcnt(0)")
            if "tab" not in a.vm and idle and st >= T0:
                n = 0
                while idle and n + len(idle[0]) <= IB:
                    for l in idle.pop(0):
                        n += 1; a(l)
                if not idle:
                    self.setup_done(); setup_open = False
            if f"st{st}" in a.vm:
                a.vm_wait(f"st{st}")
            if not setup_open and st >= 14: self.tss(st, True)
            a("s_barrier")
            if st == 12: self.ts(3)
        a(f"s_xor_b32 s50, s51, {s(sTag)}")
        for k in range(8):
            a(f"""s_xor_b32 {s(sT0)}, s{88+k}, {s(sTag)}
                  s_or_b32 s50, s50, {s(sT0)}""")
        if self.o.get("prof"):
            for k in range(4): a(f"s_mov_b32 s{88+2*k}, 0")
        if self.o.get("klook", "0") == "1":
            a.vmem(self.look(5, 39, 0, 's[48:49]'), "fkv")
        a("s_barrier")
        self.tm("p2", 1)
        self.ts(4)
        Lr, Lb = a.newlabel("Lur"), a.newlabel("Lub")
        a(f"""s_setprio 2
              s_cmp_lg_u32 s50, 0
              s_cbranch_scc1 {Lr}""")
        a.label(Lb)
        keep = (a.lines, list(a.vm))
        a.lines = self.tail
        a.label(Lr)
        self.poll(vFo, s(sUF), vFu, 0x1ff)
        u_loads()
        a(f"""s_waitcnt vmcnt(0)
              s_branch {Lb}""")
        a.lines, a.vm = keep
        if self.o.get("klook", "0") != "1":
            a.vmem(self.look(5, 39, 0, 's[48:49]'), "fkv")
        a("""s_mov_b64 exec, 0xfffffff
             ds_write_b128 v31, v[44:47]
             s_mov_b64 exec, -1""")
        a.vm_wait("u", "kc")
        dp = "wave_rol:1 row_mask:0xf bank_mask:0xf"
        a(f"""s_mov_b32 exec_lo, 0x40008000
              s_mov_b32 exec_hi, 0x40008000
              v_lshlrev_b32 v29, 16, v29
              v_lshlrev_b32 v3, 16, {v(vHd)}
              v_and_b32 {v(vHd)}, {s(sHi)}, {v(vHd)}
              v_add_f32 v3, v3, v29
              v_cvt_pk_bf16_f32 {v(vHd)}, v3, {v(vHd)}
              s_mov_b64 exec, -1
              ds_write_b32 {v(vHa)}, {v(vHd)}
              v_mov_b32_dpp v133, v128 {dp}
              v_mov_b32_dpp v134, v136 {dp}
              s_lshl_b64 vcc, 3, 62
              v_mov_b32_dpp v132, v133 {dp}
              v_mov_b32_dpp v140, v134 {dp}
              v_cndmask_b32 v132, v132, v140, vcc
              v_cndmask_b32 v140, v140, v141, vcc""")
        for j, b in ((0, 128), (1, 136)):
            a(f"ds_write_b128 {v(vRa)}, {v(b,4)} offset:{RS + 512*j}")
            for q in range(4):
                a(f"v_alignbit_b32 {v(144+4*j+q)}, {v(b+q+1)}, {v(b+q)}, 16")
            a(f"ds_write_b128 {v(vRa)}, {v(144+4*j,4)} offset:{512*j}")
        self.lds_signal(vCNT, C_CONV)
        self.ts(2)

    def compute_phase1(self):
        a = self.a
        a.label("L_compute")
        self.decode()
        a.vm = []; a.lg = []
        vXA, vWA = 8, 12
        accK, accV, accQ, Wf = 16, 32, 48, 64
        NSET = 12
        st = self.stA = Setup(128)
        rt = lambda i: i >> 1
        ct = lambda i: i & 1
        l16 = lambda l: l * 16
        def ua(l, d):
            blk = 2 * (l >> 4) + (l & 1); r = (l >> 2) & 3
            return RR + (8 * blk + r) * 128 + ((((blk + d) & 3) * 2 + (r >> 1)) * 16) + ((l >> 1) & 1) * 8
        st.xor(192, lambda l: ua(l, 0), lambda i: i * 32)
        st.xor(193, lambda l: ua(l, 1), lambda i: i * 32)
        st.mov(194, lambda l: (7 - (2 * (l >> 4) + ((l >> 2) & 1))) * 64 + (l & 3) * 16 + ((l >> 3) & 1) * 16384)
        st.xor(vXA, lambda l: ((l >> 4) & 1) * 4096 + ((l >> 3) & 1) * 1024 + (l & 7) * 128 + ((((l >> 1) & 7) ^ (l >> 5)) * 16),
               lambda i: rt(i) * 8192 + ct(i) * 64)
        st.raw(f"v_xor_b32 {v(vXA+1)}, 32, {v(vXA)}\nv_xor_b32 {v(vXA+2)}, 64, {v(vXA)}\nv_xor_b32 {v(vXA+3)}, 0x60, {v(vXA)}")
        st.xor(vWA, lambda l: (8 * (l >> 5) + ((l >> 2) & 3)) * 128 + (l & 3) * 8 + ((l >> 4) & 1) * 32 + ((l >> 3) & 1) * 64,
               lambda i: ct(i) * (8192 + 64))
        st.raw(f"v_xor_b32 {v(vWA+1)}, 0x2000, {v(vWA)}\nv_add_u32 v3, 0x10000, {v(vWA)}\nv_add_u32 v4, 0x10000, {v(vWA+1)}")
        st.add(1, lambda l: GW + (l >> 5) * 16, lambda i: ct(i) * 64)
        st.mov(5, lambda l: ((l >> 4) & 1) * 131072 + (l >> 5) * 256 + (l & 15) * 16)
        st.add(6, lambda l: ((l >> 4) & 1) * 4096 + (l >> 5) * 256 + (l & 15) * 16, lambda i: LB + ct(i) * 8192 + rt(i) * 2048)
        st.add(7, l16, lambda i: LB + ct(i) * 8192 + rt(i) * 2048)
        st.add(114, lambda l: (l & 31) * 8, lambda i: GP + rt(i) * 256 + ct(i) * 4)
        st.add(112, lambda l: KC + (l & 1) * KCS + ((l >> 1) & 7) * 8 + (l >> 4) * 16, lambda i: rt(i) * 2 * KCS + ct(i) * 256)
        st.add(113, lambda l: RR + 448 + (l & 1) * RS + (l >> 4) * 16 - ((l >> 1) & 7) * 64, lambda i: rt(i) * 2 * RS + ct(i) * 256)
        st.attn(lambda i: ct(i) ^ 1)
        st.keep(sQFw, lambda i: QF + ct(i) * 4096 + rt(i) * 1024)
        st.keep(sPw, lambda i: (PY + rt(i) * 8192) if ct(i) else (EX1 if rt(i) else EX0))
        st.mov(190, lambda l: EX1 + (4 * (l >> 5) + ((l >> 2) & 3)) * 128 + (l & 3) * 8 + ((l >> 4) & 1) * 32 + ((l >> 3) & 1) * 64)
        st.add(195, lambda l: SW + ((l & 3) + 4 * ((l >> 3) & 1)) * 8, lambda i: i * 128)
        assert st.nq() == NQ
        a.vm = ["tab"] * NQ + ([] if self.o.get("notb") else ["tb"]) + (["tb"] if (not self.o.get("nocw")) else [])
        a(f"""
              v_mov_b32 v253, 0
              s_mov_b32 {s(sRole)}, 0""")
        a(f"""s_and_b32 {s(sT0)}, {s(sI)}, 1                 ; ct
              s_lshr_b32 {s(sT1)}, {s(sI)}, 1                ; rt
              s_lshl2_add_u32 {s(sT2)}, {s(sHq)}, {s(sI)}
              s_xor_b32 {s(sT4)}, {s(sT2)}, {UX * 4}
              s_lshl_b32 {s(sU0+32)}, {s(sT4)}, 16
              s_lshl_b32 {s(sT3)}, {s(sRb)}, 9
              s_sub_u32 {s(sU0+32)}, {s(sU0+32)}, {s(sT3)}
              s_add_u32 {s(sU0+32)}, {s(sU0+32)}, {UG + 248*64}
              s_lshl_b32 {s(sUF+32)}, {s(sT4)}, 5
              s_add_u32 {s(sUF+32)}, {s(sUF+32)}, {s(sRb)}
              s_lshl_b32 {s(sUF+32)}, {s(sUF+32)}, 2
              s_add_u32 {s(sUF+32)}, {s(sUF+32)}, {FU}
              s_xor_b32 {s(sT3)}, {s(sT0)}, 1
              s_lshl1_add_u32 {s(sT3)}, {s(sRb)}, {s(sT3)}   ; tt
              s_add_u32 {s(sNt+32)}, {s(sT3)}, 1
              s_min_u32 {s(sNt+32)}, {s(sNt+32)}, 9
              s_lshl_b32 {s(sT3)}, {s(sT3)}, 5
              s_add_u32 {s(sT3)}, {s(sT3)}, {s(sT2)}
              s_lshl_b32 {s(sOO+32)}, {s(sT3)}, 10
              s_add_u32 {s(sOO+32)}, {s(sOO+32)}, {OG}
              s_andn2_b32 {s(sOF+32)}, {s(sT3)}, 15
              s_add_u32 {s(sOF+32)}, {s(sOF+32)}, {s(sT3)}
              s_lshl_b32 {s(sOF+32)}, {s(sOF+32)}, 2
              s_add_u32 {s(sOF+32)}, {s(sOF+32)}, {FO}
              s_lshl1_add_u32 {s(sT2)}, {s(sHq)}, {s(sT0)}   ; pair
              s_lshl1_add_u32 {s(sT3)}, {s(sRb)}, {s(sT1)}   ; kt
              s_lshl_b32 {s(sKO+32)}, {s(sT2)}, 7
              s_add_u32 {s(sKO+32)}, {s(sKO+32)}, {s(sT3)}
              s_lshl_b32 {s(sKO+32)}, {s(sKO+32)}, 11
              s_add_u32 {s(sKO+32)}, {s(sKO+32)}, {KVG}
              s_add_u32 {s(sKO2+32)}, {s(sKO+32)}, 0x20000
              s_lshl_b32 {s(sKF+32)}, {s(sT2)}, 6
              s_add_u32 {s(sKF+32)}, {s(sKF+32)}, {s(sT3)}
              s_andn2_b32 {s(sT3)}, {s(sKF+32)}, 15
              s_add_u32 {s(sKF+32)}, {s(sKF+32)}, {s(sT3)}
              s_lshl_b32 {s(sKF+32)}, {s(sKF+32)}, 2
              s_add_u32 {s(sKF+32)}, {s(sKF+32)}, {FKV}""")
        if self.o.get("lateA"):
            a("s_setprio 3")
        self.srd_const(sWS, WS_BYTES)
        a("s_waitcnt lgkmcnt(0)")
        a.vmem("global_load_dword v253, v253, s[28:29]", "ed")
        self.srd_ptr(sWS, 28)
        a("s_mov_b64 s[4:5], s[36:37]\ns_mov_b64 s[6:7], s[38:39]\ns_mov_b64 s[8:9], s[40:41]\ns_mov_b64 s[10:11], s[42:43]")
        if self.o.get("lateA"):
            self.scalar_tables()
            a("s_setprio 0\ns_waitcnt lgkmcnt(0)")
        a.vm_wait("tab")
        for l in st.ops: a(l)
        a("s_setprio 1")
        self.setup_done()
        if self.o.get("iw"):
            a("@IWARM@:")
        self.tm("ld", 5)
        fillers = []
        a("s_barrier")
        self.tm("ld", 7)
        a.lds("ds_read_b64 v[196:197], v195", "sw")
        a.lds("ds_read_b64 v[198:199], v195 offset:64", "sw")
        self.u_reads(0); self.u_reads(1)
        Lw = a.newlabel("Lwf")
        a(f"""s_cmp_lg_u32 {s(sI)}, 0
              s_cbranch_scc1 {Lw}
              v_xor_b32 v191, 64, v190
              ds_read_b64_tr_b16 v[176:177], v190
              ds_read_b64_tr_b16 v[178:179], v190 offset:1024
              ds_read_b64_tr_b16 v[180:181], v191
              ds_read_b64_tr_b16 v[182:183], v191 offset:1024
              s_lshl_b32 {s(sT0)}, {s(sHq)}, 5
              s_add_u32 {s(sT0)}, {s(sT0)}, {s(sRb)}
              s_lshl_b32 {s(sT0)}, {s(sT0)}, 11
              s_add_u32 {s(sT0)}, {s(sT0)}, {WFG}
              s_waitcnt lgkmcnt(0)
              buffer_store_dwordx4 v[176:179], v2, {s(sWS,4)}, {s(sT0)} offen sc1
              buffer_store_dwordx4 v[180:183], v2, {s(sWS,4)}, {s(sT0)} offen offset:1024 sc1""")
        a.label(Lw)
        self.u_math(0); self.u_math(1)
        self.tm("ld", 8)
        a("s_branch L_a1")
        a("@AEND@:")
        a.label("L_a1")
        fq = []
        def fill(n):
            while n > 0 and fq:
                l = fq.pop(0); n -= 1
                if self.o.get("nost") and l.startswith("@kvst"): continue
                if self.o.get("nolw") and l.startswith("#w ds_write_b128"): continue
                if l.startswith("@"):
                    tag, rest = l[1:].split(" ", 1); a.vmem(rest, tag)
                elif l.startswith("#"):
                    tag, rest = l[1:].split(" ", 1); a.lds(rest, tag)
                else:
                    a(l)
        nset = [0]
        def reads(st, n):
            slot = st % 6
            tag = f"s{st}_{n}"
            hi, so = (0, slot * 16384) if slot < 4 else (2, (slot - 4) * 16384)
            if st < 8 and n >= 4:
                gb = accV + 8 * (st & 1) + 4 * (n - 4)
                a.lds(f"ds_read_b128 {v(gb,4)}, v1 offset:{st*128 + (n-4)*32}", tag)
                return ("g", 4 * st + n - 4, gb, tag), 1
            wb = Wf + 4 * (nset[0] % NSET); nset[0] += 1
            base = (3 if hi else vWA) + ((n >> 1) & 1)
            if st < 8:
                k = 4 * st + n
                a.lds(f"ds_read_b128 {v(128+4*k,4)}, {v(vXA+n)} offset:{so}", tag)
                o = so + (n & 1) * 4096 + 2048
            else:
                k = 8 * ((st - 8) & 3) + n
                o = so + (n & 1) * 4096 + (n >> 2) * 2048
            a.lds(f"ds_read_b64_tr_b16 {v(wb,2)}, {v(base)} offset:{o}", tag)
            a.lds(f"ds_read_b64_tr_b16 {v(wb+2,2)}, {v(base)} offset:{o+512}", tag)
            return ("k" if st < 8 else "v" if st < 12 else "q", k, wb, tag), (3 if st < 8 else 2)
        def mm(g):
            kind, k, wb, tag = g
            a.lg_wait(tag)
            if kind == "g" and self.o.get("nogate"): return
            if kind in self.o.get("nomm", "") : return
            acc = {"k": accK, "v": accV, "q": accQ, "g": accQ}[kind]
            c = "0" if k == 0 else v(acc, 16)
            if kind == "v":
                a(f"v_mfma_f32_32x32x16_bf16 {v(acc,16)}, {v(128+4*k,4)}, {v(wb,4)}, {c}")
            else:
                a(f"v_mfma_f32_32x32x16_bf16 {v(acc,16)}, {v(wb,4)}, {v(128+4*k,4)}, {c}")
        def lines(t):
            return [x.strip() for x in t.split("\n") if x.strip()]
        pend = []
        UF = int(self.o.get("uflag", 3))
        KVF = int(self.o.get("kvflag", 14))
        DEF = int(self.o.get("defer", 4))
        BUD = int(self.o.get("budget", 5))
        for st in range(16):
            self.tss(st, True)
            a("s_barrier")
            self.tss(st, False)
            if st == 0: self.ts(1)
            if st == 0: self.tm("ld", 9)
            if st == 4: self.tm("ld", 10)
            if st == 8: self.ts(2)
            if st == 12: self.ts(3)
            nit = 6 if st < 8 else 8
            nd = 6 if st < 8 else 0 if st == 15 else DEF
            gs = []
            if st == 0:
                for n in range(6): gs.append(reads(st, n)[0])
            if st == 1:
                for f in fillers: fq += lines(f)
            npend = len(pend)
            for i in range(npend + nit - nd):
                used = 0
                if len(gs) < nit:
                    g, used = reads(st, len(gs)); gs.append(g)
                mm(pend[i] if i < npend else gs[i - npend])
                if st == 8 and i == 6:
                    fq += [f"v_cvt_pk_bf16_f32 {v(accK+q)}, {v(accK+2*q)}, {v(accK+2*q+1)}" for q in range(8)]
                    fq += [f"v_mov_b32 v1, {v(accQ)}"]
                if st == 12 and i == npend + 1:
                    fq += [f"v_cvt_pk_bf16_f32 {v(accV+q)}, {v(accV+2*q)}, {v(accV+2*q+1)}" for q in range(8)]
                stf = self.o.get("stf", "sc1").replace("+", " ")
                stores = [f"@kvst buffer_store_dwordx4 {v(accK,4)}, v2, {s(sWS,4)}, {s(sKO)} offen {stf}",
                          f"@kvst buffer_store_dwordx4 {v(accK+4,4)}, v2, {s(sWS,4)}, {s(sKO2)} offen {stf}",
                          f"@kvst buffer_store_dwordx4 {v(accV,4)}, v5, {s(sWS,4)}, {s(sKO)} offen offset:1024 {stf}",
                          f"@kvst buffer_store_dwordx4 {v(accV+4,4)}, v5, {s(sWS,4)}, {s(sKO)} offen offset:1536 {stf}"]
                SP = [int(x) for x in self.o.get("sp", "9,11,12,12").split(",")]
                for k in range(4):
                    if st == SP[k] and i == (6 if st == 8 else npend + 1):
                        fq.append(stores[k])
                if st == 15 and i >= 7:
                    fq += [[f"#w ds_write_b32 v114, v1"],
                           [f"#w ds_write_b128 v7, {v(accK,4)}"],
                           [f"#w ds_write_b128 v7, {v(accK+4,4)} offset:4096"],
                           [f"#w ds_write_b128 v6, {v(accV,4)} offset:1024"],
                           [f"#w ds_write_b128 v6, {v(accV+4,4)} offset:1536"]][i - 7]
                if st in (3, 5) and i == 4:
                    op = "v_add_u32" if st == 3 else "v_subrev_u32"
                    for n in range(4): a(f"{op} {v(vXA+n)}, 0x10000, {v(vXA+n)}")
                    used += 4
                fill(BUD - used - (1 if i >= npend else 0))
            assert len(gs) == nit
            if st in (7, 12, 14):
                fill(100)
            pend = gs[nit - nd:]
            if st < 15:
                a.lg_all()
            if st == UF:
                a.vm_wait("ust")
                a(f"v_readfirstlane_b32 {s(sTag)}, v253")
                a(f"s_add_u32 {s(sTag)}, {s(sTag)}, {TAGC}")
                self.flag_store(sUF, 255)
            if st == KVF:
                a.vm_all()
                self.flag_store(sKF, 115)
        assert not fq
        self.ts(4)
        a(f"""s_mov_b32 {s(sT0)}, {f2u(0.25 * LOG2E):#x}
              s_mov_b32 {s(sT1)}, {s(sT0)}
              v_add_u32 v3, {s(sQFw)}, v2""")
        for q in range(8):
            a(f"v_pk_mul_f32 {v(accQ+2*q,2)}, {v(accQ+2*q,2)}, {s(sT0,2)}")
        for q in range(8):
            a(f"v_cvt_pk_bf16_f32 {v(accQ+q)}, {v(accQ+2*q)}, {v(accQ+2*q+1)}")
            if q == 3:
                a(f"ds_write_b128 v3, {v(accQ,4)}")
        a(f"""ds_write_b128 v3, {v(accQ+4,4)} offset:2048
              v_mov_b32 v8, v112
              v_mov_b32 v9, v113
              s_setprio 0""")
        a.lg_all()
        a("s_barrier")
        self.ts(5)

    def conv(self):
        a = self.a
        a.lg = []
        vKA, vUA = 8, 9
        acc = 16
        KVC = int(self.o.get("kvconv", -1))
        def fr(buf, kind, i):
            return 128 + 64 * buf + (0 if kind == "k" else 32) + 4 * i
        issued = set()
        def rd(r, kind, i):
            issued.add((r, kind, i))
            buf = r & 1
            if kind == "k":
                a.lds(f"ds_read_b64 {v(fr(buf,'k',i),2)}, {v(vKA)} offset:{512*i + 64*r}", f"{r}k{i}")
                a.lds(f"ds_read_b64 {v(fr(buf,'k',i)+2,2)}, {v(vKA)} offset:{512*i + 64*r + 8}", f"{r}k{i}")
            else:
                a.lds(f"ds_read_b128 {v(fr(buf,'u',i),4)}, {v(vUA)} offset:{512*(7-i) + 64*r}", f"{r}u{i}")
        order = []
        for i in range(8):
            order += [("k", i), ("u", i)]
        NPRE = int(self.o.get("cpre", 33))
        pre = self.mask_ops(3, 7) + self.const_ops()
        if int(self.o.get("kvflag", 14)) == 16:
            a.vm_all()
            self.flag_store(sKF, 13)
        a.lds(f"ds_read_b128 {v(vQ,4)}, v14", "q")
        mo, co = self.mask_ops(3, 7), self.const_ops()
        for g in mo:
            for l in g[:3]: a(l)
        for g in co[:8]:
            for l in g: a(l)
        a(f"v_mov_b32 {v(vVf+8)}, {v(vVf)}")
        later = [[f"v_mov_b32 {v(vVf+r)}, {v(vVf+8)}"] for r in range(9, 16)]
        later += [["v_mov_b32 v13, 0xf149f2ca"]]
        for r in range(16):
            later += [mo[r+1][:2], [f"v_cndmask_b32 {v(vMU+r)}, 0, v13, vcc"]]
        self.attention("A", 0)
        if int(self.o.get("kvflag", 14)) == 17:
            a.vm_all()
            self.flag_store(sKF, 13)
        self.lds_spin(vCNT, C_CONV, 4, 3)
        if self.o.get("cvp"): a(f"s_setprio {self.o['cvp']}")
        self.ts(8)
        for kind, i in order[:8]:
            rd(0, kind, i)
        fill = [[x.strip()] for x in f"""v_and_b32 v10, 15, v0
              v_lshlrev_b32 v10, 3, v10
              v_lshrrev_b32 v11, 4, v0
              v_lshl_add_u32 v10, v11, 8, v10
              v_add_u32 v10, {s(sPw)}, v10
              s_lshl_b32 {s(sT2)}, {s(sI)}, 2
              v_add_u32 v12, {s(sT2)}, {v(vCNT)}
              s_nop 0""".split("\n")]
        fill += later
        pend_r = [(0, k, i) for k, i in order[8:]]
        first = [True] * 8
        for r in range(4):
            self.tm("p2", 1 + r)
            buf = r & 1
            nxt = [(r + 1, k, i) for k, i in order] if r < 3 else []
            queue = pend_r + nxt
            pend_r = []
            seq = []
            for m in range(8):
                for d in range(m + 1):
                    for s_ in range(m + 1):
                        if max(d, s_) == m and d + s_ <= 7:
                            seq.append((d, s_))
            assert len(seq) == 36
            if r == 3:
                seq = [(d, T - d) for T in range(8) for d in range(T + 1)]
                wr = [(T * (T + 3) // 2 + 5, lambda T=T, h=h: a.lds(f"ds_write_b64 v10, {v(acc+4*T+2*h,2)} offset:{1024*T + 128*h}", "pw"))
                      for T in range(8) for h in range(2)]
            for n, (d, s_) in enumerate(seq):
                T = d + s_
                if r * 36 + n == KVC:
                    a.vm_all()
                    self.flag_store(sKF, 13)
                assert (r, "k", d) in issued and (r, "u", s_) in issued
                a.lg_wait(f"{r}k{d}", f"{r}u{s_}")
                c = "0" if first[T] else v(acc + 4 * T, 4)
                first[T] = False
                a(f"v_mfma_f32_16x16x32_bf16 {v(acc+4*T,4)}, {v(fr(buf,'u',s_),4)}, {v(fr(buf,'k',d),4)}, {c}")
                if self.o.get("cvp2") and r * 36 + n == int(self.o["cvp2"]): a("s_setprio 0")
                KN = int(self.o.get("kn", 22))
                if r == 3 and n == KN:
                    a.lds(f"ds_read_b32 v7, v12 offset:{C_KVL}", "kvl")
                if r == 3 and n == KN + 6:
                    Lq, Lz = a.newlabel("Lkq"), a.newlabel("Lkz")
                    a.lg_wait("kvl")
                    a(f"""v_readfirstlane_b32 {s(sT5)}, v7
                          s_cmp_eq_u32 {s(sT5)}, 0
                          s_cbranch_scc1 {Lq}""")
                    a.label(Lz)
                    keep = (a.lines, list(a.lg))
                    a.lines = self.tail
                    a.label(Lq)
                    self.lds_spin(12, C_KVL, 1, 7)
                    a(f"s_branch {Lz}")
                    a.lines, a.lg = keep
                    pref = self.attention("A", 1)
                if r == 3 and n > KN + 6 and pref:
                    pref.pop(0)()
                if queue and (n % 2 == 0 or queue[0][0] == r):
                    rd(*queue.pop(0))
                elif r == 3 and wr and wr[0][0] <= n:
                    wr.pop(0)[1]()
                elif fill:
                    for l in fill.pop(0):
                        if l.startswith("#"):
                            tag, rest = l[1:].split(" ", 1); a.lds(rest, tag)
                        else:
                            a(l)
            pend_r = queue
            assert all(q[0] == r + 1 for q in pend_r)
        assert not fill and not pend_r
        self.tm("p2", 5)
        self.ts(6)
        a(f"s_setprio {self.o.get('aprio', 1)}")
        assert not pref
        wr = [w[1] for w in wr]
        wr.append(lambda: self.lds_signal(vCNT, C_FREE))
        self.attention("A", 2, wr)

    def wof(self, late, j, ct):
        return 128 + ((late * 8 + j) * 2 + ct) * 4

    def kv_dma(self, groups):
        a = self.a
        for g in groups:
            a(f"""s_add_u32 m0, {s(sRem)}, {4096*g}
                  s_add_u32 {s(sT2)}, {s(sKVS)}, {4096*g}
                  s_cmp_lt_u32 {s(sRb)}, {4-g}
                  s_cselect_b32 {s(sT2)}, {WS_BYTES}, {s(sT2)}""")
            for o in (2048, 3072, 0, 1024):
                a.vmem(f"buffer_load_dwordx4 v2, {s(sWS,4)}, {s(sT2)} offen offset:{o} sc1 lds", f"r{2*g + (o >> 11)}")

    def b_fetch(self):
        a = self.a
        a.vm_all()
        self.poll(39, 0, 5, 's[48:49]', first_done=True)
        self.ts(5)
        self.tm("p2", 2)
        self.kv_dma((3, 2))
        a(f"""s_lshl_b32 {s(sT2)}, {s(sI)}, 2
              v_add_u32 v5, {s(sT2)}, {v(vCNT)}""")
        self.tm("p2", 3)

    def b_start(self):
        a = self.a
        a.lg = []
        a(f"ds_read_b128 {v(vQ,4)}, v14")
        if self.o.get("bearly"):
            self.b_fetch()

    def attention(self, role, part=None, extra=()):
        a = self.a
        B = role == "B"
        if B: a.lg = []
        extra = list(extra)
        S = [16, 32] if (B or part == 0) else [144, 128]; O, P, Kf, Vf = vO, vP, [vKf, vKf + 4], [vVf, vVf + 8]
        HK = int(self.o.get("hook", 4))
        def kaddr(p):
            return (120, 0) if p == 0 else (121, 0) if p == 1 else (122, (8 - p) * 2048)
        def rdK(p):
            r, o = kaddr(p)
            a.lds(f"ds_read_b128 {v(Kf[p&1],4)}, {v(r)} offset:{o}", f"K{p}")
        def rdV(p):
            r, o = kaddr(p)
            if p == 0:
                a(f"s_mov_b64 exec, {s(sEx,2)}")
            else:
                a(f"""s_cmp_gt_u32 {s(sNt)}, {p}
                      s_cselect_b64 exec, {s(sEx,2)}, -1""")
            a.lds(f"ds_read_b128 {v(Vf[p&1],4)}, {v(r+3)} offset:{o}", f"V{p}")
            a.lds(f"ds_read_b128 {v(Vf[p&1]+4,4)}, {v(r+3)} offset:{o+512}", f"V{p}")
            a("s_mov_b64 exec, -1")
        def qk(p):
            c = v(vML, 16) if p == 0 else v(vMU, 16) if p == 8 else "0"
            a(f"v_mfma_f32_32x32x16_bf16 {v(S[p&1],16)}, {v(Kf[p&1],4)}, {v(vQ,4)}, {c}")
        def e(p, j):
            a(f"v_exp_f32 {v(S[p&1]+j)}, {v(S[p&1]+j)}")
            if extra: extra.pop(0)()
        def c(p, q): a(f"v_cvt_pk_bf16_f32 {v(P+q)}, {v(S[p&1]+2*q)}, {v(S[p&1]+2*q+1)}")
        def pv(p, hf):
            cc = "0" if (p == 0 and hf == 0) else v(O, 16)
            a(f"v_mfma_f32_32x32x16_bf16 {v(O,16)}, {v(Vf[p&1]+4*hf,4)}, {v(P+4*hf,4)}, {cc}")
        def vmw(q):
            if not B: return
            t = "r0" if q == HK + 2 else f"r{8-q}"
            if t in a.vm: a.vm_wait(t)
        wq = [(late, j) for late in range(2) for j in range(8)] if B else []
        W0 = int(self.o.get("w0", 0))
        def wload():
            if not wq: return
            late, j = wq.pop(0)
            a(f"v_add_u32 v3, {4096*j}, v2")
            for ct in range(2):
                so = [sWoS, 40, 41, 42][2 * late + ct]
                a.vmem(f"buffer_load_dwordx4 {v(self.wof(late,j,ct),4)}, v3, {s(sWS,4)}, {s(so)} offen sc1", "wf")
        self.wload, self.wq = wload, wq
        if part == 1:
            return [lambda: rdK(1), lambda: rdV(1), lambda: rdK(2)]
        vg = 84
        if part != 2:
            rdK(0)
            a.lds(f"ds_read_b64 {v(vg,2)}, v15", "g")
            rdV(0)
            a.lg_wait("K0")
            qk(0)
            a.lg_wait("g")
            a(f"""v_add_f32 {v(vg)}, {v(vg)}, {v(vg+1)}
                  v_mul_f32 {v(vg)}, {f2u(-LOG2E):#x}, {v(vg)}
                  v_exp_f32 {v(vg)}, {v(vg)}
                  s_nop 0
                  v_add_f32 {v(vg)}, 1.0, {v(vg)}""")
        if part == 0:
            for j in range(16):
                e(0, j)
                if j >= 3 and j & 1: c(0, (j - 3) // 2)
                if j == 11:
                    a.lg_wait("V0"); pv(0, 0)
            c(0, 7); pv(0, 1)
            return
        if part == 2:
            a.lg_wait("K1")
            qk(1)
            while extra:
                extra.pop(0)()
        for p in range(1 if part == 2 else 0, 9):
            nx = p + 1 <= 8
            if p % 2 == 0: self.tm("p2", 6 + p // 2)
            if p == 0:
                for j in range(8):
                    e(0, j)
                    if j >= 3 and j & 1: c(0, (j - 3) // 2)
                if not self.o.get("bearly"):
                    self.b_fetch()
                self.kv_dma((1, 0))
                vmw(1)
                rdK(1); rdV(1)
                e(0, 8); c(0, 3); e(0, 9); e(0, 10)
                a.lg_wait("V0")
                pv(0, 0)
                e(0, 11); c(0, 4); e(0, 12)
                a.lg_wait("K1")
                qk(1)
                vmw(2)
                rdK(2)
                e(0, 13); c(0, 5); e(0, 14); e(0, 15); c(0, 6)
                continue
            carry = not (part == 2 and p == 1)
            e(p, 0)
            if carry: c(p - 1, 7)
            e(p, 1)
            e(p, 2)
            if carry: pv(p - 1, 1)
            e(p, 3); c(p, 0)
            if p > W0: wload()
            e(p, 4)
            if nx: rdV(p + 1)
            e(p, 5); c(p, 1)
            e(p, 6)
            if nx: a.lg_wait(f"K{p+1}")
            e(p, 7)
            if nx: qk(p + 1)
            c(p, 2)
            e(p, 8); c(p, 3)
            e(p, 9)
            if p + 2 <= 8:
                vmw(p + 2)
            e(p, 10)
            if p + 2 <= 8:
                rdK(p + 2)
            if f"V{p}" in a.lg: a.lg_wait(f"V{p}")
            e(p, 11)
            pv(p, 0)
            c(p, 4)
            e(p, 12)
            if p == HK and B:
                self.lds_signal(5, C_KVL)
            if p >= W0 and int(self.o.get("w2x", 1)): wload()
            e(p, 13); c(p, 5)
            e(p, 14)
            e(p, 15); c(p, 6)
        c(8, 7); pv(8, 1)
        a.label(f"L_attn_fin{role}")
        a.lg = []
        a(f"""s_mov_b32 {s(sT4)}, {f2u(2.0**-30):#x}
              s_mov_b32 {s(sT5)}, {f2u(2.0**30):#x}
              s_waitcnt lgkmcnt(0)
              v_mul_f32 v85, v84, {v(O+8)}
              v_cmp_nle_f32 vcc, {s(sT4)}, {v(O+8)}
              v_cmp_nge_f32 {s(sT0,2)}, {s(sT5)}, {v(O+8)}
              v_rcp_f32 v86, v85
              s_or_b64 vcc, vcc, {s(sT0,2)}""")
        if self.o.get("force_slow"):
            a("s_mov_b64 vcc, -1")
        a(f"""s_cbranch_vccnz L_attn_slow""")
        a.label(f"L_attn_ok{role}")
        for q in range(8):
            a(f"v_mul_f32 {v(O+q)}, {v(O+q)}, v86")
        for q in range(4):
            a(f"v_cvt_pk_bf16_f32 {v(O+q)}, {v(O+2*q)}, {v(O+2*q+1)}")
        a.vmem(f"buffer_store_dwordx4 {v(O,4)}, v2, {s(sWS,4)}, {s(sOO)} offen sc1", "o")
        self.ts(10)

    def attn_slow(self):
        a = self.a
        S, ML, Kf, O, P = 16, 32, vKf, vO, vP
        sP, sM = sT2, sT3
        a.label("L_attn_slow")
        a(f"""s_cmp_lg_u32 {s(sRedo)}, 0
              s_cbranch_scc1 L_sl_ok
              s_mov_b32 {s(sRedo)}, 1
              s_mov_b32 {s(sM)}, 0
              s_mov_b32 {s(sT0)}, 0xf149f2ca
              v_mov_b32 v86, 0xff7fffff
              v_sub_u32 v87, v123, v120""")
        for r in range(16):
            a(f"v_xor_b32 {v(ML+r)}, {s(sT0)}, {v(vMU+r)}")
            a(f"v_mov_b32 {v(O+r)}, 0")
            a(f"v_mov_b32 {v(vVf+r)}, {s(sOne)}")
        a.label("L_sl_pass")
        a(f"s_mov_b32 {s(sP)}, 0")
        a.label("L_sl_tile")
        a(f"""s_sub_u32 {s(sT0)}, 8, {s(sP)}
              s_lshl_b32 {s(sT0)}, {s(sT0)}, 11
              v_add_u32 v3, {s(sT0)}, v122
              s_cmp_eq_u32 {s(sP)}, 1
              s_cselect_b64 vcc, -1, 0
              v_cndmask_b32 v3, v3, v121, vcc
              s_cmp_eq_u32 {s(sP)}, 0
              s_cselect_b64 vcc, -1, 0
              v_cndmask_b32 v3, v3, v120, vcc
              ds_read_b128 {v(Kf,4)}, v3
              v_add_u32 v3, v3, v87
              s_mov_b64 exec, {s(sEx,2)}
              ds_read_b128 {v(vVf,4)}, v3
              ds_read_b128 {v(vVf+4,4)}, v3 offset:512
              s_mov_b64 exec, -1
              s_waitcnt lgkmcnt(0)
              s_cbranch_scc1 L_sl_lo
              s_cmp_eq_u32 {s(sP)}, 8
              s_cbranch_scc1 L_sl_up
              v_mfma_f32_32x32x16_bf16 {v(S,16)}, {v(Kf,4)}, {v(vQ,4)}, 0
              s_branch L_sl_s""")
        a.label("L_sl_lo")
        a(f"""v_mfma_f32_32x32x16_bf16 {v(S,16)}, {v(Kf,4)}, {v(vQ,4)}, {v(ML,16)}
              s_branch L_sl_s""")
        a.label("L_sl_up")
        a(f"v_mfma_f32_32x32x16_bf16 {v(S,16)}, {v(Kf,4)}, {v(vQ,4)}, {v(vMU,16)}")
        a.label("L_sl_s")
        a(f"""s_cmp_lg_u32 {s(sM)}, 0
              s_cbranch_scc1 L_sl_pv""")
        for j in range(8):
            a(f"v_max3_f32 v86, v86, {v(S+2*j)}, {v(S+2*j+1)}")
        a("s_branch L_sl_next")
        a.label("L_sl_pv")
        for j in range(16):
            a(f"v_sub_f32 {v(S+j)}, {v(S+j)}, v86")
        for j in range(16):
            a(f"v_exp_f32 {v(S+j)}, {v(S+j)}")
        for q in range(8):
            a(f"v_cvt_pk_bf16_f32 {v(P+q)}, {v(S+2*q)}, {v(S+2*q+1)}")
        for hf in range(2):
            a(f"v_mfma_f32_32x32x16_bf16 {v(O,16)}, {v(vVf+4*hf,4)}, {v(P+4*hf,4)}, {v(O,16)}")
        a.label("L_sl_next")
        a(f"""s_add_u32 {s(sP)}, {s(sP)}, 1
              s_cmp_lt_u32 {s(sP)}, {s(sNt)}
              s_cbranch_scc1 L_sl_tile
              s_cmp_lg_u32 {s(sM)}, 0
              s_cbranch_scc1 L_sl_fin
              s_mov_b32 {s(sM)}, 1
              v_mov_b32 v85, v86
              v_permlane32_swap_b32 v85, v86
              v_max_f32 v86, v85, v86
              s_branch L_sl_pass""")
        for nm, tg in (("L_sl_ok", "L_attn_ok"), ("L_sl_fin", "L_attn_fin")):
            a.label(nm)
            a(f"""s_cmp_eq_u32 {s(sRole)}, 0
                  s_cbranch_scc1 {tg}A
                  s_branch {tg}B""")

    def p3(self):
        a = self.a
        acc = [16, 32]; OF = 48
        wof = self.wof
        SPL = int(self.o.get("split", 9))
        self.tm("p3", 1)
        self.lds_spin(vCNT, C_FREE, 4, 3)
        self.tm("p3", 2)
        self.ts(6)
        for k in range(4):
            a.lds(f"ds_read_b128 {v(16+4*k,4)}, v6 offset:{2048*(k>>1) + 16*(k&1)}", f"y{k>>1}")
            a.lds(f"ds_read_b128 {v(32+4*k,4)}, v7 offset:{2048*(k>>1) + 16*(k&1)}", f"y{k>>1}")
        for rd in range(2):
            a.lg_wait(f"y{rd}")
            for q in range(8):
                a(f"v_add_f32 {v(16+8*rd+q)}, {v(16+8*rd+q)}, {v(32+8*rd+q)}")
            for q in range(4):
                a(f"v_cvt_pk_bf16_f32 {v(vP+4*rd+q)}, {v(16+8*rd+2*q)}, {v(16+8*rd+2*q+1)}")
            a.vmem(f"buffer_store_dwordx4 {v(vP+4*rd,4)}, v2, {s(sWS,4)}, {s(sYO)} offen offset:{1024*rd} sc1", "ys")
        if self.o.get("unsafe_y"):
            self.flag_store(sYF, 3)
        a(f"""s_lshl_b32 {s(sT1)}, {s(sI)}, 11
              s_add_u32 m0, {s(sT1)}, {QF}
              s_add_u32 {s(sT0)}, {s(sXS)}, {16384 - 1024}""")
        a.vmem(f"buffer_load_dwordx4 v4, {s(sX,4)}, {s(sXS)} offen lds", "xm")
        a.vmem(f"buffer_load_dwordx4 v4, {s(sX,4)}, {s(sT0)} offen offset:1024 lds", "xm")
        nlate = 2 * len(self.wq)
        while self.wq: self.wload()
        a(f"s_setprio {self.o.get('bprio', 2)}")
        vYT, vYS, vFA, vXR, vOO, vG = 120, 121, 122, 14, 123, 124
        sPend, sTodo, sProc = sNt, sXc, sWc
        a(f"""v_rcp_f32 {v(vG)}, v84
              v_mov_b32 {v(vYT)}, v8
              v_mov_b32 {v(vYS)}, v9
              v_mov_b32 {v(vFA)}, v10
              v_mov_b32 v112, v12
              v_mov_b32 {v(vXR)}, v13
              v_mov_b32 {v(vOO)}, v1
              v_mov_b32 v32, v11
              v_xor_b32 v33, 16, v11
              v_xor_b32 v34, 32, v11
              v_xor_b32 v35, 48, v11
              v_sub_f32 {v(vG)}, 1.0, {v(vG)}
              v_xor_b32 {v(vXR+1)}, 16, {v(vXR)}
              v_mov_b32 {v(vG+1)}, {v(vG)}
              v_mov_b32 v116, 0
              v_mov_b32 v117, 0
              v_mov_b32 v118, 0
              v_mov_b32 v119, 0""")
        a.vm_wait("o")
        self.flag_store(sOF, 4)
        self.tm("p3", 3)
        a(f"""s_add_u32 {s(sRedo)}, {s(sOt)}, 8192
              s_add_u32 {s(sYF2)}, {s(sYS)}, {0x10000 - 1024}
              s_mov_b32 {s(sPend)}, 7
              s_mov_b32 {s(sTodo)}, 0
              s_mov_b32 {s(sProc)}, 8""")
        if not self.o.get("unsafe_y"):
            a.vm_wait("ys")
            self.flag_store(sYF, 4)
        self.ts(7)
        self.tm("p3", 4)
        OFS = [48, 80]
        def o_loads(late):
            so = sLO if late else sEO
            for j in range(8):
                a(f"buffer_load_dwordx4 {v(OFS[late]+4*j,4)}, v2, {s(sWS,4)}, {s(so)} offen offset:{2048*(j&1)} sc1")
                if j & 1 and j < 7:
                    a(f"s_add_u32 {s(so)}, {s(so)}, 4096")
        def o_mm(late):
            for j in range(8):
                for ct in range(2):
                    a(f"v_mfma_f32_32x32x16_bf16 {v(acc[ct],16)}, {v(wof(late,j,ct),4)}, {v(OFS[late]+4*j,4)}, {v(acc[ct],16)}")
        a("s_branch L_pl_p")
        a.label("L_pl_w")
        a(f"""s_mov_b32 {s(sProc)}, {s(sTodo)}
              s_sub_u32 {s(sBud)}, {s(sBud)}, 8
              s_waitcnt vmcnt(0)
              v_cmp_ne_u32 vcc, {s(sTag)}, v5
              s_cmp_gt_i32 {s(sBud)}, 0
              s_cselect_b64 vcc, vcc, 0
              s_cmp_eq_u32 vcc_lo, 0
              s_cselect_b32 {s(sT0)}, 1, 0
              s_and_b32 {s(sT1)}, vcc_hi, 0xff
              s_cselect_b32 {s(sT1)}, 0, 2
              s_or_b32 {s(sT0)}, {s(sT0)}, {s(sT1)}
              s_and_b32 {s(sT1)}, vcc_hi, 0xff00
              s_cselect_b32 {s(sT1)}, 0, 4
              s_or_b32 {s(sT0)}, {s(sT0)}, {s(sT1)}
              s_and_b32 {s(sTodo)}, {s(sT0)}, {s(sPend)}
              s_cbranch_scc0 L_pl_p
              s_andn2_b32 {s(sPend)}, {s(sPend)}, {s(sTodo)}
              s_bitcmp1_b32 {s(sTodo)}, 2
              s_cbranch_scc0 L_pl_i1""")
        self.ts(9)
        self.tm("p3", 9)
        self.tm("fin", 1)
        o_loads(1)
        a.label("L_pl_i1")
        a(f"""s_bitcmp1_b32 {s(sTodo)}, 1
              s_cbranch_scc0 L_pl_i0""")
        self.tm("p3", 8)
        o_loads(0)
        a.label("L_pl_i0")
        a(f"""s_bitcmp1_b32 {s(sTodo)}, 0
              s_cbranch_scc0 L_pl_p
              buffer_load_dwordx4 {v(vYS)}, {s(sWS,4)}, {s(sYS)} offen sc1 lds
              buffer_load_dwordx4 {v(vYS)}, {s(sWS,4)}, {s(sYF2)} offen offset:1024 sc1 lds""")
        self.tm("p3", 7)
        self.tm("fin", 9)
        a.label("L_pl_p")
        a(f"""s_cmp_eq_u32 {s(sPend)}, 0
              s_cbranch_scc1 L_pl_q
              v_mov_b32 v5, 0
              s_bitcmp1_b32 {s(sPend)}, 0
              s_cselect_b32 exec_lo, -1, 0
              s_mov_b32 exec_hi, 0xffff
              buffer_atomic_or v5, {v(vFA)}, {s(sWS,4)}, 0 offen sc0 sc1
              s_mov_b64 exec, -1""")
        a.label("L_pl_q")
        a(f"""s_cmp_eq_u32 {s(sProc)}, 0
              s_cbranch_scc1 L_pl_n
              s_bitcmp1_b32 {s(sProc)}, 3
              s_cbranch_scc0 L_pl_p0""")
        self.tm("p3", 5)
        a(f"s_waitcnt vmcnt({3 + nlate - (1 if self.o.get('unsafe_y') else 0)})")
        for q in range(4):
            a(f"ds_read_b64 {v(6+2*q,2)}, {v(32+q)}")
        Lx, Ly = a.newlabel("Lep"), a.newlabel("Leb")
        a(f"""s_or_b32 {s(sT0)}, s2, {s(sWave)}
              s_cmp_eq_u32 {s(sT0)}, 0
              s_cbranch_scc1 {Lx}""")
        a.label(Ly)
        keep = (a.lines, list(a.vm))
        a.lines = self.tail
        a.label(Lx)
        a(f"""v_and_b32 v3, 7, v0
              v_lshlrev_b32 v3, 3, v3
              v_bfe_u32 v4, v0, 3, 2
              v_lshl_add_u32 v3, v4, 7, v3
              v_lshrrev_b32 v4, 5, v0
              v_lshl_add_u32 v3, v4, 10, v3""")
        Le, Lf = a.newlabel("Lel"), a.newlabel("Lef")
        a.label(Le)
        for k in range(4):
            a(f"""s_mov_b32 {s(sT0)}, {FKV + 2048*k}
                  buffer_load_dword {v(16+k)}, v3, {s(sWS,4)}, {s(sT0)} offen sc1""")
        a(f"""s_waitcnt vmcnt(0)
              v_xor_b32 v16, {s(sTag)}, v16
              v_xor_b32 v17, {s(sTag)}, v17
              v_xor_b32 v18, {s(sTag)}, v18
              v_xor_b32 v19, {s(sTag)}, v19
              v_or3_b32 v16, v16, v17, v18
              v_or_b32 v16, v16, v19
              v_cmp_ne_u32 vcc, 0, v16
              s_cbranch_vccz {Lf}
              s_sub_u32 {s(sBud)}, {s(sBud)}, 8
              s_cmp_gt_i32 {s(sBud)}, 0
              s_cbranch_scc1 {Le}""")
        a.label(Lf)
        a(f"""v_mov_b32 v4, {s(sTag)}
              s_mov_b64 exec, 1
              buffer_store_dword v4, off, {s(sWS,4)}, 0
              s_mov_b64 exec, -1
              s_branch {Ly}""")
        a.lines, a.vm = keep
        a("s_waitcnt lgkmcnt(0)")
        for ct in range(2):
            a(f"v_mfma_f32_32x32x16_bf16 {v(acc[ct],16)}, v[116:119], v[116:119], 0")
        self.ts(8)
        self.tm("p3", 6)
        a("s_branch L_pl_n")
        a.label("L_pl_p0")
        a(f"""s_bitcmp1_b32 {s(sProc)}, 0
              s_cbranch_scc0 L_pl_p1""")
        yt = [114, 116, 118, 120]
        for q in range(4):
            a(f"ds_read_b64_tr_b16 {v(yt[q],2)}, {v(vYT)} offset:{512*q}")
        for q in range(4):
            for d in range(2):
                xr, yr = 6 + 2 * q + d, yt[q] + d
                a(f"""v_lshlrev_b32 v0, 16, {v(xr)}
                      v_and_b32 v1, {s(sHi)}, {v(xr)}""")
                if d == 0: a(f"s_waitcnt lgkmcnt({3-q})")
                a(f"""v_pk_mul_f32 v[0:1], v[0:1], {v(vG,2)}
                      v_lshlrev_b32 v126, 16, {v(yr)}
                      v_and_b32 v127, {s(sHi)}, {v(yr)}
                      v_pk_fma_f32 {v(acc[0]+4*q+2*d,2)}, v[0:1], v[126:127], {v(acc[0]+4*q+2*d,2)}""")
        for q in range(1, 8):
            a(f"v_xor_b32 {v(112+q)}, {32*q}, v112")
        a.label("L_pl_p1")
        a(f"""s_bitcmp1_b32 {s(sProc)}, 1
              s_cbranch_scc0 L_pl_p2""")
        o_mm(0)
        a.label("L_pl_p2")
        a(f"""s_bitcmp1_b32 {s(sProc)}, 2
              s_cbranch_scc0 L_pl_n""")
        o_mm(1)
        a.label("L_pl_n")
        if self.o.get("fast"):
            lk = lambda r: f"""v_mov_b32 v{r}, 0
                  buffer_atomic_or v{r}, {v(vFA)}, {s(sWS,4)}, 0 offen sc0 sc1"""
            ck = lambda r: f"""s_waitcnt vmcnt(1)
                  v_cmp_ne_u32 vcc, {s(sTag)}, v{r}
                  s_sub_u32 {s(sBud)}, {s(sBud)}, 4
                  s_cbranch_vccz L_fa_go"""
            a(f"""s_lshl4_add_u32 {s(sT0)}, {s(sTodo)}, {s(sPend)}
                  s_cmp_lg_u32 {s(sT0)}, 4
                  s_cbranch_scc1 L_pl_m
                  s_mov_b32 exec_lo, 0
                  s_mov_b32 exec_hi, 0xff00
                  s_cmp_lg_u32 {s(sProc)}, 0
                  s_cbranch_scc1 L_fa
                  s_sleep {int(self.o.get("fsleep", 5))}""")
            a.label("L_fa")
            a(lk(4)); a(ck(5)); a(lk(5)); a(ck(4))
            a(f"""s_cmp_gt_i32 {s(sBud)}, 0
                  s_cbranch_scc1 L_fa""")
            a.label("L_fa_go")
            a("s_mov_b64 exec, -1")
            self.ts(9); self.tm("p3", 9); self.tm("fin", 1)
            o_loads(1)
            a("s_branch L_pl_l")
            a.label("L_pl_m")
        a(f"""s_cmp_lg_u32 {s(sPend)}, 0
              s_cbranch_scc1 L_pl_w
              s_cmp_eq_u32 {s(sTodo)}, 0
              s_cbranch_scc1 L_pl_x
              s_cmp_lg_u32 {s(sTodo)}, 4
              s_cbranch_scc1 L_pl_w""")
        a.label("L_pl_l")
        for j in range(8):
            if j == 0: self.tm("fin", 2)
            a(f"s_waitcnt vmcnt({7-j})")
            if j == 0: self.tm("fin", 3)
            if j == 7: self.tm("fin", 4)
            for ct in range(2):
                a(f"v_mfma_f32_32x32x16_bf16 {v(acc[ct],16)}, {v(wof(1,j,ct),4)}, {v(OFS[1]+4*j,4)}, {v(acc[ct],16)}")
        a.label("L_pl_x")
        self.tm("p3", 10)
        self.tm("fin", 5)
        for ct in range(2):
            for q in range(4):
                a(f"ds_write_b128 {v(112+4*ct+q)}, {v(acc[ct]+4*q,4)}")
        a.lg_all()
        self.tm("fin", 6)
        a("s_barrier")
        self.tm("fin", 7)
        for rd in range(2):
            for src in range(2):
                for b in range(2):
                    a.lds(f"ds_read_b128 {v(48+16*rd+8*src+4*b,4)}, {v(vXR+b)} offset:{FXS*src + 2048*rd}", f"r{rd}")
        of = self.o.get("outflag", "sc1")
        of = " " + of.replace("+", " ") if of else ""
        for rd in range(2):
            a.lg_wait(f"r{rd}")
            b = 48 + 16 * rd
            for q in range(0, 8, 2):
                a(f"v_pk_add_f32 {v(b+q,2)}, {v(b+q,2)}, {v(b+8+q,2)}")
            for q in range(4):
                a(f"v_cvt_pk_bf16_f32 {v(b+q)}, {v(b+2*q)}, {v(b+2*q+1)}")
            a(f"buffer_store_dwordx4 {v(b,4)}, {v(vOO)}, {s(sOUT,4)}, {s(sOt if rd == 0 else sRedo)} offen{of}")
        self.tm("fin", 8)

    def dump_ts(self):
        a = self.a
        if self.o.get("padto") or (self.o.get("probe") and self.o["probe"][0] == self.role):
            self.o.setdefault("padto2", self.o.get("padto", 30))
            L = a.newlabel()
            a("s_waitcnt vmcnt(0)")
            if self.o.get("skew"):
                a("""v_mov_b32 v11, 0
                     v_mov_b32 v12, 0
                     s_mov_b64 exec, 1
                     global_load_dword v11, v12, s[96:97] sc1
                     s_waitcnt vmcnt(0)
                     v_readfirstlane_b32 s100, v11
                     s_not_b32 s100, s100""")
            a.label(L)
            a(f"""s_memrealtime s[4:5]
                  s_waitcnt lgkmcnt(0)
                  s_sub_u32 s4, s4, s100
                  s_cmp_lt_u32 s4, {int(self.o["padto2"])*100}
                  s_cbranch_scc1 {L}""")
        if not self.o.get("prof"):
            return
        a(f"""s_waitcnt vmcnt(0)
              s_memtime s[4:5]
              s_memrealtime s[6:7]
              s_waitcnt lgkmcnt(0)
              s_lshl_b32 {s(sT0)}, s2, 3
              s_add_u32 {s(sT0)}, {s(sT0)}, {s(sWave)}
              s_lshl_b32 {s(sT0)}, {s(sT0)}, 6
              s_add_u32 {s(sT0)}, {s(sT0)}, {DBG}
              v_mov_b32 v1, 0
              s_mov_b64 exec, 1""")
        for k in range(11):
            a(f"""v_mov_b32 v2, {s(sTS+2*k)}
                  buffer_store_dword v2, v1, {s(sWS,4)}, {s(sT0)} offen offset:{4*k}""")
        for k, r in ((11, 4), (12, 6), (13, sBud), (14, 26)):
            a(f"""v_mov_b32 v2, {s(r)}
                  buffer_store_dword v2, v1, {s(sWS,4)}, {s(sT0)} offen offset:{4*k}""")

    def insert_stubs(self):
        import subprocess, re as _re, tempfile, os
        a = self.a
        NP = 5
        k = a.lines.index("@IWARM@:")
        disp = []
        for p in range(NP):
            disp += [f"    s_cmp_eq_u32 {s(sI)}, {p % 4}", f"    s_cbranch_scc1 L_pg{p}", f"L_pgr{p}:"]
        a.lines = a.lines[:k] + disp + a.lines[k+1:]
        def sizes(lines):
            body = pad(lines)
            txt = ['.amdgcn_target "amdgcn-amd-amdhsa--gfx950"', ".text", "L_tab:", f"{NAME}_kernel:"]
            n = 0
            for l in body:
                txt.append(l.replace("@CODEMAX@", "0x4000"))
            for p in range(NP):
                if f"L_pg{p}:" not in lines: txt.append(f"L_pg{p}:")
            d = tempfile.mkdtemp()
            open(d + "/t.s", "w").write("\n".join(txt) + "\n")
            subprocess.run(["clang", "-x", "assembler", "-target", "amdgcn-amd-amdhsa", "-mcpu=gfx950", "-c", d + "/t.s", "-o", d + "/t.o"], check=True)
            out = subprocess.run(["llvm-objdump", "-t", d + "/t.o"], capture_output=True, text=True).stdout
            return {m.group(2): int(m.group(1), 16) for m in _re.finditer(r"^([0-9a-f]{16}) .*\s(\S+)$", out, _re.M)}
        for p in range(NP):
            marked = []
            for i, l in enumerate(a.lines):
                marked.append(f"M_{i}:"); marked.append(l)
            ad = sizes(marked)
            tgt = 4096 * (p + 1) - 768 - 4
            cand = [i for i in range(len(a.lines)) if ad[f"M_{i}"] >= tgt]
            if not cand:
                a.lines += [f"L_pg{p}:", f"    s_branch L_pgr{p}"]
                continue
            i = cand[0]
            a.lines = a.lines[:i] + [f"    s_branch L_pgs{p}", f"L_pg{p}:", f"    s_branch L_pgr{p}", f"L_pgs{p}:"] + a.lines[i:]
            if self.o.get("verbose"): print("stub", p, "before", a.lines[i+4], a.lines[i-1])

    def build(self):
        a = self.a
        if self.o.get("padto") or self.o.get("probe"):
            a("s_memrealtime s[100:101]")
        self.prologue()
        self.role = "B"
        self.loader_phase1()
        self.b_start()
        self.attention("B")
        self.p3()
        self.dump_ts()
        a.label("L_end")
        a("s_endpgm")
        self.role = "A"
        self.compute_phase1()
        self.conv()
        if not self.o.get("unsafe_hint"):
            a.vm_all()
        self.flag_store(sOF, 4)
        self.dump_ts()
        a("s_endpgm")
        a.lines += self.tail
        self.attn_slow()
        a.label("L_codeend")
        i0, i1 = a.lines.index("L_compute:"), a.lines.index("@AEND@:")
        blk = a.lines[i0:i1]
        a.lines = a.lines[:i0] + a.lines[i1+1:]
        k = a.lines.index("@ASTART@:")
        a.lines = a.lines[:k] + blk + a.lines[k+1:]
        if self.o.get("iw"):
            self.insert_stubs()
        body = pad(a.lines, verbose=True)
        hdr = open("cdna_kernels/" + NAME + ".s.ref").read().split("\n")
        head = [l for l in hdr if l.startswith(";") and "@launch" not in l and "Override" not in l and "grid=ceil" not in l]
        out = head + [f"; @launch grid=(256,1,1) block=(512,1,1) lds={LDS_BYTES}",
                      '.amdgcn_target "amdgcn-amd-amdhsa--gfx950"', ".text", f".globl {NAME}_kernel", ".p2align 12" if not self.o.get("noal") else ".p2align 8",
                      f".type {NAME}_kernel,@function", f"{NAME}_kernel:"] + body + [
            '.section .rodata,"a"', ".p2align 6", f".amdhsa_kernel {NAME}_kernel",
            "  .amdhsa_next_free_vgpr 256", "  .amdhsa_next_free_sgpr 102", "  .amdhsa_accum_offset 256",
            "  .amdhsa_group_segment_fixed_size 0", "  .amdhsa_kernarg_size 104", "  .amdhsa_user_sgpr_count 2",
            "  .amdhsa_user_sgpr_kernarg_segment_ptr 1", "  .amdhsa_system_sgpr_workgroup_id_x 1",
            ".end_amdhsa_kernel", ""]
        txt = "\n".join(out)
        tab = [".p2align 8", ".type L_tab,@object", "L_tab:"]
        def longs(vals):
            for k in range(0, len(vals), 16):
                tab.append(".long " + ",".join(str(x) if x < 100000 else hex(x) for x in vals[k:k+16]))
        for w in range(8):
            st = self.stB if w < 4 else self.stA
            longs([c[w & 3] for c in st.wc] + [0] * (16 - len(st.wc)))
        tab.append(f".zero {T_PB - 512}")
        for st in (self.stB, self.stA):
            longs(st.data())
            tab.append(f".zero {8192 - 1024 * st.nq()}")
        for wg in range(256):
            for w in range(4):
                t = wg_table(wg, w)
                longs(t)
                tab.append(f".zero {128 - 4 * len(t)}")
        txt += "\n".join(tab) + "\n"
        if self.o.get("rt"):
            txt = txt.replace("s_memtime", "s_memrealtime")
        txt = txt.replace("@CODEMAX@", f"(L_codeend - {NAME}_kernel - 260)")
        print("patterns A/B:", len(self.stA.pat), len(self.stB.pat), "wave consts", len(self.stA.wc), len(self.stB.wc))
        return txt

if __name__ == "__main__":
    opt = {}
    outp = "cdna_kernels/" + NAME + ".s"
    for arg in sys.argv[1:]:
        if arg.startswith("-o"):
            outp = arg[2:]
        elif "=" in arg:
            k, val = arg.split("=", 1)
            opt[k] = val
        else:
            opt[arg] = True
    txt = Gen(opt).build()
    open(outp, "w").write(txt)
    print("wrote", outp, len(txt.split("\n")), "lines")
```

```python
import sys, struct
from asmlib import *

NAME = "gated_mix__sliding_block__ssm_conv_h3__prompt"

LB = 65536
QF = 81920
EX0 = 90112
KC = 98304
KCS = 4224
PY = 115200
RR = 131584
RS = 4576
EX1 = 150016
GW = 158208
GP = 159232
SW = 159744
CNT = 160256
XM = 160000 - 160000 % 256 + 256
LDS_BYTES = 163840
C_KVL, C_PART, C_FREE, C_WO, C_CONV, C_RD2 = 0, 16, 32, 36, 40, 44
WOB = EX0
YXB = LB + 16384
XXB = 155648
FX = KC
FXS = RR - KC

FKV, FO, FY, FU = 0x2000, 0x4000, 0x8000, 0x1000
def fidx(n): return (n >> 4) * 128 + (n & 15) * 4
UG, KVG, YG, OG, DBG = 0x100000, 0x300000, 0x700000, 0x900000, 0xC00000
WFG = 0xB00000
for _a in sys.argv:
    if _a.startswith("kvoff="): KVG = int(_a[6:], 0)
HQX = 2
for _a in sys.argv:
    if _a.startswith('hqx='): HQX = int(_a[4:])
UX = 1
for _a in sys.argv:
    if _a.startswith('ux='): UX = int(_a[3:])
MAP = 1
for _a in sys.argv:
    if _a.startswith('map='): MAP = int(_a[4:])
WS_BYTES = 0x2000000
TAGC = 0x9E3779B9

sX, sW, sWO, sK, sV, sSK, sWS, sOUT = 32, 36, 40, 44, 48, 52, 56, 60
sWave, sRb, sHq, sRot, sTB, sTag, sI, sI4096, sBud, sHi = 64, 65, 66, 67, 68, 70, 71, 72, 73, 3
sT0, sT1, sT2, sT3, sT4, sT5 = 74, 75, 76, 77, 78, 79
sRole, sRedo, sOne = 31, 30, 27
sEx = 0
sOO, sOF, sNt = 4, 5, 6
sU0, sUF, sKO, sKO2, sKF = 7, 8, 9, 10, 11
sUS, sTs, sK4, sYO, sYF, sXS, sYS, sYF2, sOt, sEF, sEO, sKVF, sKVS, sWoS, sKt0 = 7, 9, 10, 11, 12, 13, 14, 15, 16, 17, 18, 19, 20, 21, 22
sD, sQFw, sPw, sKVLw = 32, 33, 34, 35
sTw = 23
sXc, sWc, sUbad, sRem, sKm, sWq1, sLO = 24, 25, 23, 44, 45, 46, 47
sWT = 80
sTS = 80
sFLS = [24, 13, 32, 33, 34, 35, 48, 49, 50]

def wg_decode(wg):
    xcd, loc = wg & 7, wg >> 3
    hb, rg = ((xcd & 1, xcd >> 1) if MAP < 2 else (xcd >> 2, xcd & 3))
    rb = 8 * rg + (loc & 7)
    hq = ((2 * (loc >> 3) + hb) if MAP & 1 else (4 * hb + (loc >> 3))) ^ HQX
    return rb, hq, 32 * xcd + loc

def wg_table(wg, w):
    rb, hq, cp = wg_decode(wg)
    i = w & 3
    qt = (i & 1) if w < 4 else (i & 1) ^ 1
    tt = 2 * rb + qt
    t = [OG + (tt * 32 + 4 * hq + i) * 1024, FO + fidx(tt * 32 + 4 * hq + i), min(tt + 1, 9)]
    if w >= 4:
        rt, ct = i >> 1, i & 1
        g16 = 4 * hq + i
        pair, kt = 2 * hq + ct, 2 * rb + rt
        ko = KVG + (pair * 128 + kt) * 2048
        t += [UG + g16 * 65536 + (248 - 8 * rb) * 64, FU + (g16 * 32 + rb) * 128, ko, ko + 0x20000, FKV + (pair * 64 + kt) * 128]
    else:
        kh, rt = i >> 1, i & 1
        ch = 2 * cp + kh
        cb = 2 * hq + kh
        e = tt * 32 + 16 * kh + rt
        t += [UG + (cp >> 1) * 16384 + (cp & 1) * 32 + i * 4096,
              FU + (cp >> 3) * 128 + max(23 - 8 * i, 0) * 4,
              cp * 8192, ch * 4096 + 4 * rt + 4,
              YG + ch * 4096 + rt * 2048, FY + fidx(rt * 512 + ch),
              tt * 32768 + cb * 64,
              YG + cb * 131072 + tt * 64,
              FY + fidx((rb >> 4) * 512 + cb * 32),
              tt * 32768 + kh * 16384 + hq * 128,
              FO + fidx(e), OG + e * 1024,
              FKV + cb * 512,
              KVG + ((4 * hq + i) * 64 + 2 * rb - 8) * 2048,
              WFG + hq * 65536 + (16 * kh + rt) * 2048 + kh * 1024,
              (2 * rb - 8) & 0xffffffff,
              FU + (hq ^ UX) * 512 + kh * 64 - 64]
    return t

class Setup:
    def __init__(self, tbase):
        self.pat = []; self.wc = []; self.ops = []; self.tbase = tbase
    def p(self, f):
        vals = [f(l) & 0xffffffff for l in range(64)]
        if vals not in self.pat: self.pat.append(vals)
        return self.tbase + self.pat.index(vals)
    def w(self, f):
        vals = [f(i) & 0xffffffff for i in range(4)]
        if vals not in self.wc: self.wc.append(vals)
        assert len(self.wc) <= 16
        return sWT + self.wc.index(vals)
    def add(self, d, pf, wf): self.ops.append(f"v_add_u32 {v(d)}, {s(self.w(wf))}, {v(self.p(pf))}")
    def xor(self, d, pf, wf): self.ops.append(f"v_xor_b32 {v(d)}, {s(self.w(wf))}, {v(self.p(pf))}")
    def mov(self, d, pf): self.ops.append(f"v_mov_b32 {v(d)}, {v(self.p(pf))}")
    def keep(self, d, wf): self.ops.append(f"s_mov_b32 {s(d)}, {s(self.w(wf))}")
    def raw(self, t): self.ops += [x.strip() for x in t.split("\n")]
    def nq(self): return (len(self.pat) + 3) // 4
    def data(self):
        pat = self.pat + [[0] * 64] * (4 * self.nq() - len(self.pat))
        return [pat[4 * q + c][l] for q in range(self.nq()) for l in range(64) for c in range(4)]
    def attn(self, qt):
        l16 = lambda l: l * 16
        vl = lambda l: 1024 + (l >> 5) * 256 + (l & 15) * 16
        pos = [lambda i: LB + i * 4096 + qt(i) * 2048,
               lambda i: LB + i * 4096 if qt(i) else i * 16384 + 7 * 2048,
               lambda i: i * 16384 + qt(i) * 2048]
        self.add(14, l16, lambda i: QF + (2 * i + qt(i)) * 1024)
        self.add(15, lambda l: (l & 31) * 8, lambda i: GP + qt(i) * 256)
        for k in range(3):
            self.add(120 + k, l16, pos[k]); self.add(123 + k, vl, pos[k])
        self.raw(f"""s_mov_b32 {s(sRedo)}, 0
                     s_mov_b32 {s(sOne)}, 0x3f803f80
                     s_mov_b32 {s(sEx)}, 0xffff
                     s_mov_b32 {s(sEx+1)}, 0xffff
                     s_mov_b32 {s(sBud)}, 0x40000
                     s_mov_b32 {s(sHi)}, 0xffff0000
                     v_mov_b32 {v(126)}, {CNT}
                     v_mov_b32 {v(127)}, 1""")

T_WAVE, T_PB, T_PA, T_WG = 0, 1024, 1024 + 8192, 1024 + 16384
NQ = 5

LOG2E = 1.4426950408889634

def f2u(x):
    return struct.unpack("<I", struct.pack("<f", x))[0]

vO, vVf, vQ, vP, vKf, vMU = 48, 64, 80, 88, 96, 104
vML = vO
vKA, vUA, vQA, vGA, vDF = 84, 85, 86, 87, 116
vAK, vAV, vCNT, vONE = 120, 123, 126, 127

class Gen:
    def __init__(self, opt):
        self.o = opt
        self.a = Asm()
        self.tail = []
        self.role = "*"

    def tss(self, st, pre):
        m = self.o.get("prof")
        if isinstance(m, str) and m.startswith("pre" if pre else "post"):
            base = int(m[3:] if pre else m[4:])
            if 0 <= st - base < 10:
                self.a(f"s_memtime {s(sTS + 2 * (st - base + 1), 2)}")

    def tm(self, mode, k):
        if self.o.get("prof") == mode:
            self.a(f"s_memtime {s(sTS + 2 * k, 2)}")

    def ts(self, k):
        pr = self.o.get("probe")
        if pr and int(pr[1:]) == k and (self.role == pr[0] or self.role == "*"):
            self.a("s_memrealtime s[100:101]")
        if self.o.get("prof") is True or (self.o.get("prof") and k == 0):
            self.a(f"s_memtime {s(sTS + 2 * k, 2)}")

    def lds_spin(self, vaddr, off, target, vt):
        a = self.a
        L, D = a.newlabel("Lsp"), a.newlabel("Lsd")
        a.label(L)
        a(f"""ds_read_b32 {v(vt)}, {v(vaddr)} offset:{off}
              s_waitcnt lgkmcnt(0)
              v_readfirstlane_b32 {s(sT5)}, {v(vt)}
              s_cmp_ge_u32 {s(sT5)}, {target}
              s_cbranch_scc1 {D}
              s_sleep 1
              s_sub_u32 {s(sBud)}, {s(sBud)}, 1
              s_cmp_gt_i32 {s(sBud)}, 0
              s_cbranch_scc1 {L}""")
        a.label(D)
        a.lg = []

    def lds_signal(self, vaddr, off):
        a = self.a
        a(f"""s_mov_b64 exec, 1
              ds_add_u32 {v(vaddr)}, {v(vONE)} offset:{off}
              s_mov_b64 exec, -1""")
        a.lg.append("sig")

    def look(self, vt, voff, soff, mask):
        return f"""v_mov_b32 {v(vt)}, {s(sTag)}
                   s_mov_b64 exec, {mask}
                   v_mov_b32 {v(vt)}, 0
                   buffer_atomic_or {v(vt)}, {v(voff)}, {s(sWS,4)}, {soff} offen sc0 sc1
                   s_mov_b64 exec, -1"""

    def poll(self, voff, soff, vt, mask, first_done=False):
        a = self.a
        L, C, D = a.newlabel("Lpl"), a.newlabel("Lpc"), a.newlabel("Lpd")
        if first_done:
            a(f"s_branch {C}")
        a.label(L)
        a(self.look(vt, voff, soff, mask))
        a("s_waitcnt vmcnt(0)")
        a.label(C)
        a(f"""v_cmp_ne_u32 vcc, {s(sTag)}, {v(vt)}
              s_cbranch_vccz {D}
              s_sleep {int(self.o.get("sleep", 1))}
              s_sub_u32 {s(sBud)}, {s(sBud)}, 8
              s_cmp_gt_i32 {s(sBud)}, 0
              s_cbranch_scc1 {L}""")
        a.label(D)
        if not first_done:
            a.vm = []

    def flag_store(self, soff, vt):
        a = self.a
        a(f"""v_mov_b32 {v(vt)}, {s(sTag)}
              s_mov_b64 exec, 1""")
        a.vmem(f"buffer_atomic_swap {v(vt)}, off, {s(sWS,4)}, {s(soff)} sc1", "flag")
        a("s_mov_b64 exec, -1")

    def srd_const(self, d, size):
        self.a(f"""s_mov_b32 {s(d+2)}, {size}
                   s_mov_b32 {s(d+3)}, 0x20000""")

    def srd_ptr(self, d, p):
        self.a(f"s_mov_b64 {s(d,2)}, {s(p,2)}")

    def prologue(self):
        a = self.a
        a(f"""s_load_dwordx16 s[4:19], s[0:1], 0
              s_load_dwordx8 s[20:27], s[0:1], 64
              s_load_dwordx2 s[28:29], s[0:1], 96
              s_cmp_ge_u32 s2, 256
              s_cbranch_scc1 L_end""")
        if self.o.get("prof"):
            a("s_memtime s[96:97]\ns_memrealtime s[98:99]")
        a(f"""v_lshrrev_b32 v1, 6, v0
              v_and_b32 v0, 63, v0
              v_readfirstlane_b32 {s(sWave)}, v1
              s_getpc_b64 {s(sTB,2)}
              s_add_u32 {s(sTB)}, {s(sTB)}, L_tab@rel32@lo+4
              s_addc_u32 {s(sTB+1)}, {s(sTB+1)}, L_tab@rel32@hi+12
              s_cmp_lt_u32 {s(sWave)}, 4
              s_cbranch_scc1 L_loader
              v_lshlrev_b32 v2, 4, v0
              v_add_u32 v1, {T_PA + 4096}, v2""")
        for q in range(NQ):
            a(f"global_load_dwordx4 {v(128+4*q,4)}, v1, {s(sTB,2)} offset:{1024*q - 4096}")
        if not self.o.get("notb"):
            a(f"""v_lshlrev_b32 v3, 7, v0
                  s_lshl_b32 {s(sT0)}, s2, 9
                  s_add_u32 {s(sT0)}, {s(sT0)}, {T_WG}
                  v_add_u32 v4, {s(sT0)}, v3
                  s_bfe_u32 {s(sT0)}, s2, 0x30003
                  s_lshl_b32 {s(sT0)}, {s(sT0)}, 9
                  s_add_u32 {s(sT0)}, {s(sT0)}, {T_PB - 512}
                  v_add_u32 v3, {s(sT0)}, v3
                  s_mov_b64 vcc, 15
                  v_cndmask_b32 v3, v3, v4, vcc
                  s_cmp_eq_u32 {s(sWave)}, 4
                  s_cselect_b64 exec, 0xff, 1
                  global_load_dword v255, v3, {s(sTB,2)}
                  s_mov_b64 exec, -1""")
        if (not self.o.get("nocw")):
            CWN = int(self.o.get("cwn", 8))
            a(f"""s_bfe_u32 {s(sT0)}, s2, {0x30003 if CWN == 8 else 0x40003}
                  s_mul_i32 {s(sT0)}, {s(sT0)}, {(192 // CWN) * 128}
                  v_lshlrev_b32 v3, 7, v0
                  v_add_u32 v3, {s(sT0)}, v3
                  v_min_u32 v3, @CODEMAX@, v3
                  s_getpc_b64 {s(sT2,2)}
                  s_and_b32 {s(sT2)}, {s(sT2)}, 0xffffff00
                  s_cmp_eq_u32 {s(sWave)}, 5
                  s_cselect_b64 exec, {(1 << (192 // CWN)) - 1}, 1
                  global_load_dword v255, v3, {s(sT2,2)}
                  s_mov_b64 exec, -1""")
        if not self.o.get("lateA"):
            self.scalar_tables()
        a("s_branch L_compute")
        a.label("L_loader")

    def decode(self):
        self.a(f"""s_bfe_u32 {s(sRb)}, s2, {0x20001 if MAP < 2 else 0x20000}
              s_bfe_u32 {s(sT2)}, s2, 0x30003                ; local & 7
              s_lshl3_add_u32 {s(sRb)}, {s(sRb)}, {s(sT2)}
              s_bfe_u32 {s(sHq)}, s2, {0x10000 if MAP < 2 else 0x10002}
              s_lshr_b32 {s(sT2)}, s2, 6
              s_lshl1_add_u32 {s(sRot)}, {s(sT2)}, {s(sRb)}
              {"s_lshl1_add_u32 %s, %s, %s" % (s(sHq), s(sT2), s(sHq)) if MAP & 1 else "s_lshl2_add_u32 %s, %s, %s" % (s(sHq), s(sHq), s(sT2))}
              {"s_xor_b32 %s, %s, %d" % (s(sHq), s(sHq), HQX) if HQX else ""}
              s_and_b32 {s(sRot)}, {s(sRot)}, 7
              s_and_b32 {s(sI)}, {s(sWave)}, 3""")

    def scalar_tables(self):
        self.a(f"""s_lshl_b32 {s(sT0)}, {s(sWave)}, 6
              s_load_dwordx16 {s(sWT,16)}, {s(sTB,2)}, {s(sT0)}""")

    def setup_done(self):
        if self.o.get("prof"):
            self.a(f"s_mov_b32 {s(sTS)}, s96\ns_mov_b32 s26, s98")
            for k in range(1, 11):
                self.a(f"s_mov_b32 {s(sTS+2*k)}, 0")

    def mask_ops(self, vn, vz):
        out = [[f"v_mov_b32 {v(vn)}, 0xf149f2ca", f"v_mov_b32 {v(vz)}, 0"]]
        for r in range(16):
            jj = (r & 3) + 8 * (r >> 2)
            out.append([f"s_lshl_b32 vcc_lo, -1, {jj}", f"s_lshl_b32 vcc_hi, -1, {jj+4}",
                        f"v_cndmask_b32 {v(vML+r)}, {v(vn)}, {v(vz)}, vcc",
                        f"v_cndmask_b32 {v(vMU+r)}, {v(vz)}, {v(vn)}, vcc"])
        return out

    def const_ops(self):
        if self.o.get("allones"):
            return [[f"v_mov_b32 {v(vVf+r)}, {s(sOne)}"] for r in range(16)]
        out = [["s_mov_b32 vcc_lo, 0x110000", "s_mov_b32 vcc_hi, 0x110000", f"v_mov_b32 {v(vVf+1)}, {s(sOne)}",
                f"v_cndmask_b32 {v(vVf)}, 0, {v(vVf+1)}, vcc"]]
        for r in range(1, 16):
            out.append([f"v_mov_b32 {v(vVf+r)}, {v(vVf)}"])
        return out

    def u_reads(self, j):
        a = self.a
        kq, vq = 200 + 10 * j, 206 + 10 * j
        if j == 1:
            a("v_xor_b32 v192, 16, v192\nv_xor_b32 v193, 16, v193")
        a.lds(f"ds_read_b64_tr_b16 {v(kq,2)}, v192 offset:512", f"u{j}")
        a.lds(f"ds_read_b64_tr_b16 {v(kq+2,2)}, v193 offset:1024", f"u{j}")
        a.lds(f"ds_read_b64_tr_b16 {v(kq+4,2)}, v193 offset:1536", f"u{j}")
        a.lds(f"ds_read_b64_tr_b16 {v(vq,2)}, v192 offset:9216", f"u{j}")
        a.lds(f"ds_read_b64_tr_b16 {v(vq+2,2)}, v192 offset:9728", f"u{j}")

    def u_math(self, j):
        a = self.a
        kq, vq, sw, kx, ks, vf, pk = 200 + 10 * j, 206 + 10 * j, 196 + 2 * j, 220, 226, 234, 244 + 4 * j
        a.lg_wait(f"u{j}")
        a(f"""v_alignbit_b32 {v(sw)}, {v(sw)}, {v(sw)}, 16
              v_alignbit_b32 {v(sw+1)}, {v(sw+1)}, {v(sw+1)}, 16""")
        for q in range(5):
            a(f"v_alignbit_b32 {v(kx+q)}, {v(kq+q+1)}, {v(kq+q)}, 16")
        def lo(t): return kq + (t + 1) // 2 if t & 1 else kx + t // 2
        def hi(t): return kq + (t + 3) // 2 if t & 1 else kx + (t + 2) // 2
        order = [1, 3, 5, 7, 0, 2, 4, 6]
        for t in order:
            a(f"v_dot2_f32_bf16 {v(ks+t)}, {v(lo(t))}, {v(sw+1)}, 0")
        for t in order:
            a(f"v_dot2_f32_bf16 {v(ks+t)}, {v(hi(t))}, {v(sw)}, {v(ks+t)}")
        for t in range(8):
            src = vq + (t >> 1)
            if t & 1: a(f"v_and_b32 {v(vf+t)}, {s(sHi)}, {v(src)}")
            else:     a(f"v_lshlrev_b32 {v(vf+t)}, 16, {v(src)}")
        for t in range(0, 8, 2):
            a(f"v_pk_mul_f32 {v(ks+t,2)}, {v(ks+t,2)}, {v(vf+t,2)}")
        for q in range(4):
            a(f"v_cvt_pk_bf16_f32 {v(pk+q)}, {v(ks+7-2*q)}, {v(ks+6-2*q)}")
        if j == 1:
            a(f"s_add_u32 {s(sU0)}, {s(sU0)}, 0x8000")
        a.vmem(f"buffer_store_dwordx4 {v(pk,4)}, v194, {s(sWS,4)}, {s(sU0)} offen sc1", "ust")

    def loader_phase1(self):
        a = self.a
        vXa, vXb, vWa, vWb, vKVo, vK0 = 16, 17, 18, 19, 20, 21
        vHd, vHa, vUo, vFo, vRa, vFu, vKc = 22, 23, 24, 25, 26, 27, 28
        a.vm = []; a.lg = []
        ldf = " nt" if self.o.get("ntkv") else ""
        ldx = " nt" if self.o.get("ntx") else ""
        ldw = " nt" if self.o.get("ntw") else ""
        st = self.stB = Setup(128)
        kh = lambda i: i >> 1
        rt = lambda i: i & 1
        l16 = lambda l: l * 16
        st.attn(rt)
        st.mov(2, l16)
        st.mov(28, lambda l: ((((l >> 4) & 1) + (l & 15) - 15) * 4) | ((l >> 5) << 12))
        st.mov(vHa, lambda l: KC + (l >> 4) * KCS + (l & 15) * 4)
        st.add(31, l16, lambda i: RR + 4096 + i * RS)
        st.add(vRa, lambda l: RR + (l & 1) * 2 * RS + (l >> 1) * 16, lambda i: i * 1024)
        st.mov(vUo, lambda l: (l >> 1) * 64 + (l & 1) * 16)
        st.mov(4, lambda l: (l >> 2) * 1024 + (((l >> 4) ^ l) & 3) * 16)
        st.add(11, lambda l: QF + (l & 31) * 64 + ((l >> 2) & 3) * 16 + (l >> 5) * 8, lambda i: i * 2048)
        ex = lambda i: (EX1 if kh(i) else EX0)
        st.add(6, lambda l: l * 32, lambda i: ex(i) + rt(i) * 4096)
        st.add(7, lambda l: l * 32, lambda i: PY + i * 4096)
        trc = lambda l: (l & 3) * 8 + ((l >> 4) & 1) * 32
        trr = lambda l: 4 * (l >> 5) + ((l >> 2) & 3)
        st.add(8, lambda l: QF + trr(l) * 64 + trc(l), lambda i: i * 2048)
        st.mov(9, lambda l: (l >> 2) * 4096 + (l & 3) * 16)
        st.mov(10, lambda l: fidx(l) if l < 32 else (l & 7) * 8 + ((l >> 3) & 1) * 4)
        st.add(12, lambda l: (l & 31) * 256 + (((l >> 5) ^ l) & 7) * 16, lambda i: FX + rt(i) * 8192 + kh(i) * (FXS + 128))
        st.add(13, lambda l: (l >> 3) * 256 + ((2 * (l & 7)) ^ (l >> 3)) * 16, lambda i: FX + rt(i) * 8192 + kh(i) * 4096)
        st.mov(1, lambda l: (l >> 3) * 1024 + (l & 7) * 16)
        st.keep(sKm, lambda i: KC + 64 + i * KCS)
        a("s_setprio 3")
        self.decode()
        a(f"""v_lshrrev_b32 v2, 3, v0            ; r
              v_and_b32 v3, 7, v0                ; c'
              v_lshrrev_b32 v4, 4, v0            ; r>>1
              v_and_b32 v5, 1, v4                ; (r>>1)&1
              s_lshl_b32 {s(sT0)}, {s(sI)}, 3
              v_add_u32 v6, {s(sT0)}, v2         ; 8i + r
              s_lshl_b32 {s(sT1)}, {s(sI)}, 1
              v_add_u32 v7, {s(sT1)}, v5
              v_xor_b32 v7, v7, v3
              v_lshlrev_b32 v7, 4, v7
              v_lshl_add_u32 {v(vKVo)}, v6, 10, v7
              s_lshl_b32 {s(sT2)}, {s(sRb)}, 16
              s_lshl_b32 {s(sT5)}, {s(sHq)}, 7
              s_add_u32 {s(sT2)}, {s(sT2)}, {s(sT5)}
              {"s_xor_b32 %s, %s, %d" % (s(sT2), s(sT2), UX * 128) if UX else ""}
              s_add_u32 {s(sT3)}, {s(sI)}, 1                 ; k rows sit one piece further in the staging area
              s_xor_b32 {s(sT3)}, {s(sT3)}, {s(sI)}
              s_and_b32 {s(sT3)}, {s(sT3)}, 3
              s_lshl_b32 {s(sT3)}, {s(sT3)}, 5
              v_xor_b32 {v(vK0)}, {s(sT3)}, {v(vKVo)}
              s_lshr_b32 {s(sT3)}, {s(sI)}, 1
              v_xor_b32 v8, {s(sT3)}, v0
              v_lshlrev_b32 v8, 4, v8
              s_lshl_b32 {s(sT3)}, {s(sI)}, 10
              s_add_u32 {s(sT3)}, {s(sT3)}, {s(sT2)}
              s_sub_u32 {s(sT3)}, {s(sT3)}, 0x1000
              v_add_u32 v8, {s(sT3)}, v8
              s_lshl2_add_u32 {s(sT3)}, {s(sHq)}, {s(sI)}
              {"s_xor_b32 %s, %s, %d" % (s(sT3), s(sT3), UX * 4) if UX else ""}
              s_lshl_b32 {s(sT3)}, {s(sT3)}, 7
              v_lshlrev_b32 v9, 4, v0
              v_add_u32 v9, {s(sT3)}, v9
              s_add_u32 {s(sT3)}, {s(sT1)}, {s(sRot)}
              v_add_u32 v10, {s(sT3)}, v2
              v_and_b32 v10, 7, v10
              v_lshlrev_b32 v10, 7, v10
              v_lshl_add_u32 v10, v3, 4, v10
              v_lshlrev_b32 v11, 2, v5
              v_xor_b32 v11, v11, v3
              v_lshlrev_b32 v11, 4, v11
              v_lshl_add_u32 v11, v2, 10, v11
              s_lshl2_add_u32 {s(sT3)}, {s(sRb)}, {s(sI)}
              s_lshl_b32 {s(sT3)}, {s(sT3)}, 12
              s_add_u32 {s(sT3)}, {s(sT3)}, {s(sT5)}
              v_add_u32 v11, {s(sT3)}, v11
              v_add_u32 v6, {s(sT0)}, v6         ; 16i + r
              v_xor_b32 v7, v4, v3
              v_lshlrev_b32 v7, 4, v7
              v_lshl_add_u32 {v(vXa)}, v6, 10, v7
              v_xor_b32 {v(vXb)}, 64, {v(vXa)}
              v_add_u32 {v(vXb)}, 7168, {v(vXb)}
              v_lshlrev_b32 v7, 2, v5
              v_xor_b32 v7, v7, v3
              v_lshlrev_b32 v7, 4, v7
              v_mul_u32_u24 {v(vWa)}, 0xc00, v6
              v_add_u32 {v(vWa)}, {v(vWa)}, v7
              v_add_u32 {v(vWb)}, 23552, {v(vWa)}
              s_lshl_b32 {s(sI4096)}, {s(sI)}, 12
              s_lshl_b32 {s(sT1)}, {s(sI)}, 10
              s_lshl_b32 {s(sT3)}, {s(sI)}, 7
              s_add_u32 {s(sT4)}, {s(sT2)}, 0x8000""")
        self.srd_const(sK, 0x200000); self.srd_const(sV, 0x200000)
        self.srd_const(sX, 0x200000); self.srd_const(sW, 0x180000 + 2048); self.srd_const(sOUT, 0x200000)
        a(f"""s_add_u32 m0, {s(sT3)}, {SW}
              s_mov_b64 exec, 0xff
              s_waitcnt lgkmcnt(0)""")
        if not self.o.get("notiny"): a.vmem("global_load_lds_dwordx4 v9, s[16:17]", "kv")
        a(f"s_add_u32 m0, {s(sT3)}, {RR + 512}")
        self.srd_ptr(sK, 12)
        a.vmem(f"buffer_load_dwordx4 v8, {s(sK,4)}, 0 offen{ldf} lds", "kv")
        a(f"""s_lshl2_add_u32 m0, {s(sT3)}, {EX1}
              s_mov_b32 exec_lo, -1""")
        if not self.o.get("notiny"): a.vmem("global_load_lds_dwordx4 v11, s[8:9]", "kv")
        a(f"""s_mov_b64 exec, -1
              s_add_u32 m0, {s(sT1)}, {RR + 1024}""")
        self.srd_ptr(sV, 14)
        a.vmem(f"buffer_load_dwordx4 {v(vK0)}, {s(sK,4)}, {s(sT2)} offen{ldf} lds", "kv")
        a(f"s_add_u32 m0, {s(sT1)}, {RR + 1024 + 4096}")
        self.srd_ptr(sX, 4)
        a.vmem(f"buffer_load_dwordx4 {v(vK0)}, {s(sK,4)}, {s(sT4)} offen{ldf} lds", "kv")
        a(f"""s_add_u32 m0, {s(sT1)}, {RR + 9216}
              s_lshl_b32 {s(sT3)}, {s(sT3)}, 1""")
        a.vmem(f"buffer_load_dwordx4 {v(vKVo)}, {s(sV,4)}, {s(sT2)} offen{ldf} lds", "kv")
        a(f"""s_add_u32 m0, {s(sT1)}, {RR + 9216 + 4096}
              s_nop 0""")
        a.vmem(f"buffer_load_dwordx4 {v(vKVo)}, {s(sV,4)}, {s(sT4)} offen{ldf} lds", "kv")
        a(f"""s_add_u32 m0, {s(sT3)}, {GW}
              s_mov_b64 exec, 0xffff""")
        if not self.o.get("notiny"): a.vmem("global_load_lds_dwordx4 v10, s[22:23]", "st0")
        a(f"""s_mov_b64 exec, -1
              s_sub_u32 {s(sW)}, s6, 2048""")
        self.srd_ptr(sOUT, 24)
        a(f"""s_subb_u32 {s(sW+1)}, s7, 0
              s_lshl_b32 {s(sXc)}, {s(sRot)}, 7
              s_lshl_b32 {s(sT0)}, {s(sRb)}, 16
              s_add_u32 {s(sXc)}, {s(sXc)}, {s(sT0)}
              s_mul_i32 {s(sWc)}, {s(sRot)}, 0x30000
              s_add_u32 {s(sWc)}, {s(sWc)}, {s(sT5)}
              s_add_u32 {s(sWc)}, {s(sWc)}, 1024""")

        def adv_w():
            a(f"""s_add_u32 {s(sWc)}, {s(sWc)}, 0x30000
                  s_sub_u32 {s(sT0)}, {s(sWc)}, 0x180000
                  s_cselect_b32 {s(sWc)}, {s(sWc)}, {s(sT0)}""")
        def issue_stage(st):
            tag = f"st{st}"
            a(f"s_add_u32 m0, {s(sI4096)}, {(st % 6) * 16384}")
            if st < 8:
                a("s_nop 0")
                a.vmem(f"buffer_load_dwordx4 {v(vXa)}, {s(sX,4)}, {s(sXc)} offen{ldx} lds", tag)
                a.vmem(f"buffer_load_dwordx4 {v(vWa)}, {s(sW,4)}, {s(sWc)} offen offset:2048{ldw} lds", tag)
                a.vmem(f"buffer_load_dwordx4 {v(vXb)}, {s(sX,4)}, {s(sXc)} offen offset:1024{ldx} lds", tag)
                a.vmem(f"buffer_load_dwordx4 {v(vWb)}, {s(sW,4)}, {s(sWc)} offen offset:3072{ldw} lds", tag)
                a(f"""s_add_u32 {s(sT0)}, {s(sXc)}, 128
                      s_and_b32 {s(sT0)}, {s(sT0)}, 0x3ff
                      s_andn2_b32 {s(sXc)}, {s(sXc)}, 0x3ff
                      s_or_b32 {s(sXc)}, {s(sXc)}, {s(sT0)}""")
                adv_w()
            else:
                a(f"s_add_u32 {s(sT1)}, {s(sWc)}, 2048")
                a.vmem(f"buffer_load_dwordx4 {v(vWa)}, {s(sW,4)}, {s(sT1)} offen{ldw} lds", tag)
                a.vmem(f"buffer_load_dwordx4 {v(vWb)}, {s(sW,4)}, {s(sT1)} offen offset:1024{ldw} lds", tag)
                adv_w()
                a.vmem(f"buffer_load_dwordx4 {v(vWa)}, {s(sW,4)}, {s(sWc)} offen offset:2048{ldw} lds", tag)
                a.vmem(f"buffer_load_dwordx4 {v(vWb)}, {s(sW,4)}, {s(sWc)} offen offset:3072{ldw} lds", tag)
                adv_w()
            if st == int(self.o.get("fake3", -1)):
                a(f"""s_cmp_eq_u32 {s(sHq)}, 3
                      s_cselect_b32 {s(sT0)}, 128, 0
                      s_sub_u32 {s(sWc)}, {s(sWc)}, {s(sT0)}""")
            if st == 7:
                a(f"s_add_u32 {s(sWc)}, {s(sWc)}, 1024")
            if st == 11:
                a(f"s_sub_u32 {s(sWc)}, {s(sWc)}, 2048")

        D = int(self.o.get("depth", 3))
        D0 = int(self.o.get("depth0", 0))
        issue_stage(0)
        for st in range(1, D0 + 1):
            issue_stage(st)
        nissued = D0 + 1
        a("s_setprio 0")
        if self.o.get("skew"):
            a("""s_mov_b64 s[96:97], s[26:27]
                 s_not_b32 s98, s100
                 v_mov_b32 v11, s98
                 v_mov_b32 v12, 0
                 s_lshr_b32 s99, s2, 3
                 s_or_b32 s99, s99, s64
                 s_cmp_eq_u32 s99, 0
                 s_cselect_b32 s99, 0, 128
                 v_mov_b32 v12, s99
                 s_mov_b64 exec, 1
                 s_cbranch_scc0 L_nosk
                 global_atomic_umax v12, v11, s[96:97] sc1
                 L_nosk:""")
            a("s_mov_b64 exec, -1")
        self.srd_const(sWS, WS_BYTES); self.srd_ptr(sWS, 28)
        self.srd_const(sSK, 0x200000); self.srd_ptr(sSK, 18)
        self.scalar_tables()
        a(f"""s_load_dword {s(sTag)}, s[28:29], 0
              s_lshl2_add_u32 {s(sT0)}, s2, {s(sI)}
              s_lshl_b32 {s(sT0)}, {s(sT0)}, 7
              s_load_dwordx16 s[4:19], {s(sTB,2)}, {s(sT0)} offset:{T_WG}
              s_load_dwordx4 s[20:23], {s(sTB,2)}, {s(sT0)} offset:{T_WG + 64}""")
        a(f"""s_mov_b32 {s(sRole)}, 1
              s_lshl_b32 {s(sRem)}, {s(sI)}, 14
              v_mov_b32 v44, 0
              v_mov_b32 v45, 0
              v_mov_b32 v46, 0
              v_mov_b32 v47, 0
              v_lshlrev_b32 v8, 2, v0
              v_add_u32 v8, {CNT}, v8
              ds_write_b32 v8, v44
              v_and_b32 v39, 7, v0""")
        a(f"s_mov_b32 {s(sOne)}, 0x3f803f80")
        for g in self.mask_ops(4, 5) + self.const_ops():
            for l in g: a(l)
        a.vm_wait("kv")
        a("s_barrier")
        a("s_branch L_b1")
        a("@ASTART@:")
        a.label("L_b1")
        for st in range(nissued, int(self.o.get("depthk", 3)) + 1):
            issue_stage(st); nissued += 1
        a(f"""v_lshlrev_b32 v1, 4, v0
              v_add_u32 v1, {T_PB + 4096}, v1""")
        for q in range(self.stB.nq()):
            a.vmem(f"global_load_dwordx4 {v(128+4*q,4)}, v1, {s(sTB,2)} offset:{1024*q - 4096}", "tab")
        idle = [[l] for l in self.stB.ops]
        setup_open = True
        IB = int(self.o.get("idleb", 14))
        D1 = int(self.o.get("depth1", 3))

        def u_loads():
            a.vmem(f"buffer_load_dwordx4 v[128:131], {v(vUo)}, {s(sWS,4)}, {s(sUS)} offen sc1", "u")
            a.vmem(f"buffer_load_dwordx4 v[136:139], {v(vUo)}, {s(sWS,4)}, {s(sUS)} offen offset:2048 sc1", "u")
            a(f"""s_cmp_eq_u32 {s(sI)}, 3
                  s_cselect_b32 {s(sT1)}, {WS_BYTES}, {s(sUS)}
                  s_lshl_b64 exec, 3, 62""")
            a.vmem(f"buffer_load_dword v141, {v(vUo)}, {s(sWS,4)}, {s(sT1)} offen offset:{2048+64} sc1", "u")
            a("s_mov_b64 exec, -1")

        KC0 = int(self.o.get("kc0", 14))
        UL = int(self.o.get("ulook", 14))
        T0 = int(self.o.get("t0", 5))
        idle += [[f"s_add_u32 {s(sTag)}, {s(sTag)}, {TAGC}"], [f"s_xor_b32 {s(sLO)}, {s(sEO)}, 1024"],
                 [f"s_xor_b32 s40, {s(sWoS)}, 1024"], [f"s_xor_b32 s41, {s(sWoS)}, 2048"], [f"s_xor_b32 s42, {s(sWoS)}, 3072"],
                 ["s_mov_b32 s48, 0xffff00ff", "s_mov_b32 s49, 0", f"s_cmp_eq_u32 {s(sRb)}, 0", "s_cselect_b32 s48, 0xffff0000, s48"],
                 [f"v_lshlrev_b32 {v(vFo)}, 2, v0"],
                 [f"v_add_u32 v39, {s(sKt0)}, v39"], ["v_max_i32 v39, 0, v39"],
                 ["v_and_b32 v3, 0x70, v39", "v_add_lshl_u32 v39, v39, v3, 2"],
                 [f"v_add_u32 v39, {s(sKVF)}, v39", "s_mov_b32 exec_lo, 0xffff0000", f"v_add_u32 v39, {s(sTw)}, {v(vFo)}", "s_mov_b32 exec_lo, -1"],
                 ["s_mov_b32 exec_hi, 0", f"v_add_u32 v10, {s(sYF2)}, v10", "s_not_b64 exec, exec",
                  f"v_xor_b32 v10, {s(sEF)}, v10", "s_mov_b64 exec, -1"]]
        US = int(self.o.get('uscal', 12))
        for st in range(17):
            while nissued <= min(st + (D0 if st == 0 else D1 if st == 1 else D), 15):
                issue_stage(nissued); nissued += 1
            if st == US:
                assert not idle
                a(f"""s_load_dwordx8 s[88:95], s[28:29], {s(sUF)}
                      s_load_dword s51, s[28:29], {s(sUF)} offset:32""")
            if st == KC0:
                a(f"s_mov_b32 m0, {s(sKm)}")
                a.vmem(f"buffer_load_dword {v(vHd)}, v28, {s(sSK,4)}, {s(sTs)} offen", "kc")
                for p in range(4):
                    a.vmem(f"buffer_load_dwordx4 v2, {s(sSK,4)}, {s(sK4)} offen offset:{1024*p}{ldf} lds", "kc")
            if st == UL:
                a("s_waitcnt lgkmcnt(0)")
                u_loads()
            if st == 16:
                break
            if st == T0:
                a("s_waitcnt lgkmcnt(0)")
            if "tab" not in a.vm and idle and st >= T0:
                n = 0
                while idle and n + len(idle[0]) <= IB:
                    for l in idle.pop(0):
                        n += 1; a(l)
                if not idle:
                    self.setup_done(); setup_open = False
            if f"st{st}" in a.vm:
                a.vm_wait(f"st{st}")
            if not setup_open and st >= 14: self.tss(st, True)
            a("s_barrier")
            if st == 12: self.ts(3)
        a(f"s_xor_b32 s50, s51, {s(sTag)}")
        for k in range(8):
            a(f"""s_xor_b32 {s(sT0)}, s{88+k}, {s(sTag)}
                  s_or_b32 s50, s50, {s(sT0)}""")
        if self.o.get("prof"):
            for k in range(4): a(f"s_mov_b32 s{88+2*k}, 0")
        if self.o.get("klook", "0") == "1":
            a.vmem(self.look(5, 39, 0, 's[48:49]'), "fkv")
        a("s_barrier")
        self.tm("p2", 1)
        self.ts(4)
        Lr, Lb = a.newlabel("Lur"), a.newlabel("Lub")
        a(f"""s_setprio 2
              s_cmp_lg_u32 s50, 0
              s_cbranch_scc1 {Lr}""")
        a.label(Lb)
        keep = (a.lines, list(a.vm))
        a.lines = self.tail
        a.label(Lr)
        self.poll(vFo, s(sUF), vFu, 0x1ff)
        u_loads()
        a(f"""s_waitcnt vmcnt(0)
              s_branch {Lb}""")
        a.lines, a.vm = keep
        if self.o.get("klook", "0") != "1":
            a.vmem(self.look(5, 39, 0, 's[48:49]'), "fkv")
        a("""s_mov_b64 exec, 0xfffffff
             ds_write_b128 v31, v[44:47]
             s_mov_b64 exec, -1""")
        a.vm_wait("u", "kc")
        dp = "wave_rol:1 row_mask:0xf bank_mask:0xf"
        a(f"""ds_write_b32 {v(vHa)}, {v(vHd)}
              v_mov_b32_dpp v133, v128 {dp}
              v_mov_b32_dpp v134, v136 {dp}
              s_lshl_b64 vcc, 3, 62
              v_mov_b32_dpp v132, v133 {dp}
              v_mov_b32_dpp v140, v134 {dp}
              v_cndmask_b32 v132, v132, v140, vcc
              v_cndmask_b32 v140, v140, v141, vcc""")
        for j, b in ((0, 128), (1, 136)):
            a(f"ds_write_b128 {v(vRa)}, {v(b,4)} offset:{RS + 512*j}")
            for q in range(4):
                a(f"v_alignbit_b32 {v(144+4*j+q)}, {v(b+q+1)}, {v(b+q)}, 16")
            a(f"ds_write_b128 {v(vRa)}, {v(144+4*j,4)} offset:{512*j}")
        self.lds_signal(vCNT, C_CONV)
        self.ts(2)

    def compute_phase1(self):
        a = self.a
        a.label("L_compute")
        self.decode()
        a.vm = []; a.lg = []
        vXA, vWA = 8, 12
        accK, accV, accQ, Wf = 16, 32, 48, 64
        NSET = 12
        st = self.stA = Setup(128)
        rt = lambda i: i >> 1
        ct = lambda i: i & 1
        l16 = lambda l: l * 16
        def ua(l, d):
            blk = 2 * (l >> 4) + (l & 1); r = (l >> 2) & 3
            return RR + (8 * blk + r) * 128 + ((((blk + d) & 3) * 2 + (r >> 1)) * 16) + ((l >> 1) & 1) * 8
        st.xor(192, lambda l: ua(l, 0), lambda i: i * 32)
        st.xor(193, lambda l: ua(l, 1), lambda i: i * 32)
        st.mov(194, lambda l: (7 - (2 * (l >> 4) + ((l >> 2) & 1))) * 64 + (l & 3) * 16 + ((l >> 3) & 1) * 16384)
        st.xor(vXA, lambda l: ((l >> 4) & 1) * 4096 + ((l >> 3) & 1) * 1024 + (l & 7) * 128 + ((((l >> 1) & 7) ^ (l >> 5)) * 16),
               lambda i: rt(i) * 8192 + ct(i) * 64)
        st.raw(f"v_xor_b32 {v(vXA+1)}, 32, {v(vXA)}\nv_xor_b32 {v(vXA+2)}, 64, {v(vXA)}\nv_xor_b32 {v(vXA+3)}, 0x60, {v(vXA)}")
        st.xor(vWA, lambda l: (8 * (l >> 5) + ((l >> 2) & 3)) * 128 + (l & 3) * 8 + ((l >> 4) & 1) * 32 + ((l >> 3) & 1) * 64,
               lambda i: ct(i) * (8192 + 64))
        st.raw(f"v_xor_b32 {v(vWA+1)}, 0x2000, {v(vWA)}\nv_add_u32 v3, 0x10000, {v(vWA)}\nv_add_u32 v4, 0x10000, {v(vWA+1)}")
        st.add(1, lambda l: GW + (l >> 5) * 16, lambda i: ct(i) * 64)
        st.mov(5, lambda l: ((l >> 4) & 1) * 131072 + (l >> 5) * 256 + (l & 15) * 16)
        st.add(6, lambda l: ((l >> 4) & 1) * 4096 + (l >> 5) * 256 + (l & 15) * 16, lambda i: LB + ct(i) * 8192 + rt(i) * 2048)
        st.add(7, l16, lambda i: LB + ct(i) * 8192 + rt(i) * 2048)
        st.add(114, lambda l: (l & 31) * 8, lambda i: GP + rt(i) * 256 + ct(i) * 4)
        st.add(112, lambda l: KC + (l & 1) * KCS + ((l >> 1) & 7) * 8 + (l >> 4) * 16, lambda i: rt(i) * 2 * KCS + ct(i) * 256)
        st.add(113, lambda l: RR + 448 + (l & 1) * RS + (l >> 4) * 16 - ((l >> 1) & 7) * 64, lambda i: rt(i) * 2 * RS + ct(i) * 256)
        st.attn(lambda i: ct(i) ^ 1)
        st.keep(sQFw, lambda i: QF + ct(i) * 4096 + rt(i) * 1024)
        st.keep(sPw, lambda i: (PY + rt(i) * 8192) if ct(i) else (EX1 if rt(i) else EX0))
        for rr in range(4):
            st.ops.append(f"v_and_b32 {v(116+rr)}, {s(sD)}, {v(st.p(lambda l: 0xffff if (l & 15) + 4 * (l >> 4) == 15 - rr else 0))}")
        st.mov(190, lambda l: EX1 + (4 * (l >> 5) + ((l >> 2) & 3)) * 128 + (l & 3) * 8 + ((l >> 4) & 1) * 32 + ((l >> 3) & 1) * 64)
        st.add(195, lambda l: SW + ((l & 3) + 4 * ((l >> 3) & 1)) * 8, lambda i: i * 128)
        assert st.nq() == NQ
        a.vm = ["tab"] * NQ + ([] if self.o.get("notb") else ["tb"]) + (["tb"] if (not self.o.get("nocw")) else [])
        a(f"""
              s_and_b32 {s(sT2)}, s2, 7
              s_lshl_b32 {s(sT2)}, {s(sT2)}, 5
              s_lshr_b32 {s(sT1)}, s2, 3
              s_add_u32 {s(sT2)}, {s(sT2)}, {s(sT1)}
              s_lshr_b32 {s(sT1)}, {s(sI)}, 1
              s_lshl1_add_u32 {s(sT2)}, {s(sT2)}, {s(sT1)}
              s_lshl_b32 {s(sT2)}, {s(sT2)}, 1
              s_lshl_b32 s46, {s(sT2)}, 11
              v_mov_b32 v252, {s(sT2)}
              v_mov_b32 v253, 0
              s_bitcmp0_b32 {s(sI)}, 0
              s_cselect_b32 {s(sD)}, -1, 0
              s_mov_b32 {s(sRole)}, 0""")
        a(f"""s_and_b32 {s(sT0)}, {s(sI)}, 1                 ; ct
              s_lshr_b32 {s(sT1)}, {s(sI)}, 1                ; rt
              s_lshl2_add_u32 {s(sT2)}, {s(sHq)}, {s(sI)}
              s_xor_b32 {s(sT4)}, {s(sT2)}, {UX * 4}
              s_lshl_b32 {s(sU0+32)}, {s(sT4)}, 16
              s_lshl_b32 {s(sT3)}, {s(sRb)}, 9
              s_sub_u32 {s(sU0+32)}, {s(sU0+32)}, {s(sT3)}
              s_add_u32 {s(sU0+32)}, {s(sU0+32)}, {UG + 248*64}
              s_lshl_b32 {s(sUF+32)}, {s(sT4)}, 5
              s_add_u32 {s(sUF+32)}, {s(sUF+32)}, {s(sRb)}
              s_lshl_b32 {s(sUF+32)}, {s(sUF+32)}, 2
              s_add_u32 {s(sUF+32)}, {s(sUF+32)}, {FU}
              s_xor_b32 {s(sT3)}, {s(sT0)}, 1
              s_lshl1_add_u32 {s(sT3)}, {s(sRb)}, {s(sT3)}   ; tt
              s_add_u32 {s(sNt+32)}, {s(sT3)}, 1
              s_min_u32 {s(sNt+32)}, {s(sNt+32)}, 9
              s_lshl_b32 {s(sT3)}, {s(sT3)}, 5
              s_add_u32 {s(sT3)}, {s(sT3)}, {s(sT2)}
              s_lshl_b32 {s(sOO+32)}, {s(sT3)}, 10
              s_add_u32 {s(sOO+32)}, {s(sOO+32)}, {OG}
              s_andn2_b32 {s(sOF+32)}, {s(sT3)}, 15
              s_add_u32 {s(sOF+32)}, {s(sOF+32)}, {s(sT3)}
              s_lshl_b32 {s(sOF+32)}, {s(sOF+32)}, 2
              s_add_u32 {s(sOF+32)}, {s(sOF+32)}, {FO}
              s_lshl1_add_u32 {s(sT2)}, {s(sHq)}, {s(sT0)}   ; pair
              s_lshl1_add_u32 {s(sT3)}, {s(sRb)}, {s(sT1)}   ; kt
              s_lshl_b32 {s(sKO+32)}, {s(sT2)}, 7
              s_add_u32 {s(sKO+32)}, {s(sKO+32)}, {s(sT3)}
              s_lshl_b32 {s(sKO+32)}, {s(sKO+32)}, 11
              s_add_u32 {s(sKO+32)}, {s(sKO+32)}, {KVG}
              s_add_u32 {s(sKO2+32)}, {s(sKO+32)}, 0x20000
              s_lshl_b32 {s(sKF+32)}, {s(sT2)}, 6
              s_add_u32 {s(sKF+32)}, {s(sKF+32)}, {s(sT3)}
              s_andn2_b32 {s(sT3)}, {s(sKF+32)}, 15
              s_add_u32 {s(sKF+32)}, {s(sKF+32)}, {s(sT3)}
              s_lshl_b32 {s(sKF+32)}, {s(sKF+32)}, 2
              s_add_u32 {s(sKF+32)}, {s(sKF+32)}, {FKV}""")
        if self.o.get("pg"):
            a(f"""v_mov_b32 v254, {s(sU0+32)}
                  v_writelane_b32 v254, {s(sKO+32)}, 1
                  v_writelane_b32 v254, {s(sOO+32)}, 2
                  s_lshl_b32 {s(sT0)}, {s(sHq)}, 5
                  s_add_u32 {s(sT0)}, {s(sT0)}, {s(sRb)}
                  s_lshl_b32 {s(sT0)}, {s(sT0)}, 11
                  s_add_u32 {s(sT0)}, {s(sT0)}, {WFG}
                  v_writelane_b32 v254, {s(sT0)}, 3
                  v_lshlrev_b32 v251, 11, v252
                  v_add_u32 v250, {YG}, v251
                  s_mov_b64 vcc, 16
                  v_cndmask_b32 v254, v254, v250, vcc
                  s_lshl_b32 {s(sT0)}, {s(sRb)}, 9
                  s_add_u32 {s(sT0)}, {s(sT0)}, {s(sHq)}
                  s_lshl_b32 {s(sT0)}, {s(sT0)}, 7
                  v_mov_b32 v250, {s(sT0)}""")
        if self.o.get("lateA"):
            a("s_setprio 3")
        self.srd_const(sWS, WS_BYTES)
        a("s_waitcnt lgkmcnt(0)")
        if self.o.get("pg"):
            a("s_mov_b64 exec, 31")
            a.vmem("global_load_dword v255, v254, s[28:29]", "ed")
            a("s_mov_b64 exec, 1")
            a.vmem("global_load_dword v255, v251, s[18:19]", "ed")
            a.vmem("global_load_dword v255, v250, s[24:25]", "ed")
            a("s_mov_b64 exec, -1")
        a.vmem("global_load_ushort v252, v252, s[20:21]", "ed")
        a.vmem("global_load_dword v253, v253, s[28:29]", "ed")
        self.srd_ptr(sWS, 28)
        def wtouch():
            kinds = self.o.get("wt", "")
            if kinds.startswith("c"):
                a(f"""s_lshr_b32 {s(sT1)}, s2, 3
                      s_lshl2_add_u32 {s(sT1)}, {s(sT1)}, {s(sI)}
                      s_mul_i32 {s(sT1)}, {s(sT1)}, {4*3072}
                      s_or_b32 {s(sT0)}, {s(sHq)}, 3
                      s_lshl_b32 {s(sT0)}, {s(sT0)}, 7
                      s_add_u32 {s(sT1)}, {s(sT1)}, {s(sT0)}
                      v_and_b32 v188, 3, v0
                      v_mul_u32_u24 v188, 0xc00, v188
                      v_bfe_u32 v189, v0, 2, 1
                      v_lshl_add_u32 v188, v189, 11, v188
                      v_bfe_u32 v189, v0, 3, 1
                      v_lshl_add_u32 v188, v189, 10, v188
                      v_add_u32 v188, {s(sT1)}, v188
                      s_mov_b64 exec, {0xfff if kinds == "ck" else 0xff}""")
                a.vmem("global_load_dword v115, v188, s[44:45]", "ed")
                a("s_mov_b64 exec, -1")
                return
            a(f"""s_lshl2_add_u32 {s(sT1)}, {s(sRot)}, {s(sI)}
                  s_mul_i32 {s(sT1)}, {s(sT1)}, {16*3072}
                  s_lshl_b32 {s(sT0)}, {s(sHq)}, 7
                  s_add_u32 {s(sT1)}, {s(sT1)}, {s(sT0)}
                  v_and_b32 v188, 15, v0
                  v_mul_u32_u24 v188, 0xc00, v188
                  v_xor_b32 v189, 16, v0
                  v_and_b32 v189, 16, v189
                  v_lshl_add_u32 v188, v189, 7, v188
                  v_add_u32 v188, {s(sT1)}, v188
                  s_mov_b32 exec_hi, 0
                  s_mov_b32 exec_lo, {"-1" if "q" in kinds else "0xffff"}""")
            a.vmem("global_load_dword v115, v188, s[44:45]", "ed")
            if "s" in kinds:
                a(f"""s_mov_b32 exec_lo, 0xffff
                      v_lshlrev_b32 v188, 7, v0
                      s_and_b32 {s(sT0)}, {s(sI)}, 1
                      s_lshl_b32 {s(sT0)}, {s(sT0)}, 11
                      s_add_u32 {s(sT0)}, {s(sT0)}, s46
                      v_add_u32 v188, {s(sT0)}, v188""")
                a.vmem("global_load_dword v115, v188, s[18:19]", "ed")
            a("s_mov_b64 exec, -1")
        a("s_mov_b64 s[44:45], s[6:7]")
        if self.o.get("wt") and self.o.get("wtp", "0") == "0": wtouch()
        a("s_mov_b64 s[4:5], s[36:37]\ns_mov_b64 s[6:7], s[38:39]\ns_mov_b64 s[8:9], s[40:41]\ns_mov_b64 s[10:11], s[42:43]")
        if self.o.get("lateA"):
            self.scalar_tables()
            a("s_setprio 0\ns_waitcnt lgkmcnt(0)")
        a.vm_wait("tab")
        for l in st.ops: a(l)
        a("s_setprio 1")
        self.setup_done()
        if self.o.get("iw"):
            a("@IWARM@:")
        self.tm("ld", 5)
        if self.o.get("wt") and self.o.get("wtp") == "1": wtouch()
        fillers = []
        a("s_barrier")
        self.tm("ld", 7)
        a.lds("ds_read_b64 v[196:197], v195", "sw")
        a.lds("ds_read_b64 v[198:199], v195 offset:64", "sw")
        self.u_reads(0); self.u_reads(1)
        Lw = a.newlabel("Lwf")
        a(f"""s_cmp_lg_u32 {s(sI)}, 0
              s_cbranch_scc1 {Lw}
              v_xor_b32 v191, 64, v190
              ds_read_b64_tr_b16 v[176:177], v190
              ds_read_b64_tr_b16 v[178:179], v190 offset:1024
              ds_read_b64_tr_b16 v[180:181], v191
              ds_read_b64_tr_b16 v[182:183], v191 offset:1024
              s_lshl_b32 {s(sT0)}, {s(sHq)}, 5
              s_add_u32 {s(sT0)}, {s(sT0)}, {s(sRb)}
              s_lshl_b32 {s(sT0)}, {s(sT0)}, 11
              s_add_u32 {s(sT0)}, {s(sT0)}, {WFG}
              s_waitcnt lgkmcnt(0)
              buffer_store_dwordx4 v[176:179], v2, {s(sWS,4)}, {s(sT0)} offen sc1
              buffer_store_dwordx4 v[180:183], v2, {s(sWS,4)}, {s(sT0)} offen offset:1024 sc1""")
        a.label(Lw)
        self.u_math(0); self.u_math(1)
        if self.o.get("wt") and self.o.get("wtp") == "2":
            a("s_nop 1"); wtouch()
        self.tm("ld", 8)
        a("s_branch L_a1")
        a("@AEND@:")
        a.label("L_a1")
        fq = []
        def fill(n):
            while n > 0 and fq:
                l = fq.pop(0); n -= 1
                if self.o.get("nost") and l.startswith("@kvst"): continue
                if self.o.get("nolw") and l.startswith("#w ds_write_b128"): continue
                if l.startswith("@"):
                    tag, rest = l[1:].split(" ", 1); a.vmem(rest, tag)
                elif l.startswith("#"):
                    tag, rest = l[1:].split(" ", 1); a.lds(rest, tag)
                else:
                    a(l)
        nset = [0]
        def reads(st, n):
            slot = st % 6
            tag = f"s{st}_{n}"
            hi, so = (0, slot * 16384) if slot < 4 else (2, (slot - 4) * 16384)
            if st < 8 and n >= 4:
                gb = accV + 8 * (st & 1) + 4 * (n - 4)
                a.lds(f"ds_read_b128 {v(gb,4)}, v1 offset:{st*128 + (n-4)*32}", tag)
                return ("g", 4 * st + n - 4, gb, tag), 1
            wb = Wf + 4 * (nset[0] % NSET); nset[0] += 1
            base = (3 if hi else vWA) + ((n >> 1) & 1)
            if st < 8:
                k = 4 * st + n
                a.lds(f"ds_read_b128 {v(128+4*k,4)}, {v(vXA+n)} offset:{so}", tag)
                o = so + (n & 1) * 4096 + 2048
            else:
                k = 8 * ((st - 8) & 3) + n
                o = so + (n & 1) * 4096 + (n >> 2) * 2048
            a.lds(f"ds_read_b64_tr_b16 {v(wb,2)}, {v(base)} offset:{o}", tag)
            a.lds(f"ds_read_b64_tr_b16 {v(wb+2,2)}, {v(base)} offset:{o+512}", tag)
            return ("k" if st < 8 else "v" if st < 12 else "q", k, wb, tag), (3 if st < 8 else 2)
        def mm(g):
            kind, k, wb, tag = g
            a.lg_wait(tag)
            if kind == "g" and self.o.get("nogate"): return
            if kind in self.o.get("nomm", "") : return
            acc = {"k": accK, "v": accV, "q": accQ, "g": accQ}[kind]
            c = "0" if k == 0 else v(acc, 16)
            if kind == "v":
                a(f"v_mfma_f32_32x32x16_bf16 {v(acc,16)}, {v(128+4*k,4)}, {v(wb,4)}, {c}")
            else:
                a(f"v_mfma_f32_32x32x16_bf16 {v(acc,16)}, {v(wb,4)}, {v(128+4*k,4)}, {c}")
        def lines(t):
            return [x.strip() for x in t.split("\n") if x.strip()]
        pend = []
        UF = int(self.o.get("uflag", 3))
        KVF = int(self.o.get("kvflag", 14))
        DEF = int(self.o.get("defer", 4))
        BUD = int(self.o.get("budget", 5))
        for st in range(16):
            self.tss(st, True)
            a("s_barrier")
            self.tss(st, False)
            if st == 0: self.ts(1)
            if st == 0: self.tm("ld", 9)
            if st == 4: self.tm("ld", 10)
            if st == 8: self.ts(2)
            if st == 12: self.ts(3)
            nit = 6 if st < 8 else 8
            nd = 6 if st < 8 else 0 if st == 15 else DEF
            gs = []
            if st == 0:
                for n in range(6): gs.append(reads(st, n)[0])
            if st == 1:
                for f in fillers: fq += lines(f)
            npend = len(pend)
            for i in range(npend + nit - nd):
                used = 0
                if len(gs) < nit:
                    g, used = reads(st, len(gs)); gs.append(g)
                mm(pend[i] if i < npend else gs[i - npend])
                if st == 8 and i == 6:
                    fq += [f"v_cvt_pk_bf16_f32 {v(accK+q)}, {v(accK+2*q)}, {v(accK+2*q+1)}" for q in range(8)]
                    fq += [f"v_mov_b32 v1, {v(accQ)}"]
                if st == 12 and i == npend + 1:
                    fq += [f"v_cvt_pk_bf16_f32 {v(accV+q)}, {v(accV+2*q)}, {v(accV+2*q+1)}" for q in range(8)]
                stf = self.o.get("stf", "sc1").replace("+", " ")
                stores = [f"@kvst buffer_store_dwordx4 {v(accK,4)}, v2, {s(sWS,4)}, {s(sKO)} offen {stf}",
                          f"@kvst buffer_store_dwordx4 {v(accK+4,4)}, v2, {s(sWS,4)}, {s(sKO2)} offen {stf}",
                          f"@kvst buffer_store_dwordx4 {v(accV,4)}, v5, {s(sWS,4)}, {s(sKO)} offen offset:1024 {stf}",
                          f"@kvst buffer_store_dwordx4 {v(accV+4,4)}, v5, {s(sWS,4)}, {s(sKO)} offen offset:1536 {stf}"]
                SP = [int(x) for x in self.o.get("sp", "9,11,12,12").split(",")]
                for k in range(4):
                    if st == SP[k] and i == (6 if st == 8 else npend + 1):
                        fq.append(stores[k])
                if st == 15 and i >= 7:
                    fq += [[f"#w ds_write_b32 v114, v1"],
                           [f"#w ds_write_b128 v7, {v(accK,4)}"],
                           [f"#w ds_write_b128 v7, {v(accK+4,4)} offset:4096"],
                           [f"#w ds_write_b128 v6, {v(accV,4)} offset:1024"],
                           [f"#w ds_write_b128 v6, {v(accV+4,4)} offset:1536"]][i - 7]
                if st in (3, 5) and i == 4:
                    op = "v_add_u32" if st == 3 else "v_subrev_u32"
                    for n in range(4): a(f"{op} {v(vXA+n)}, 0x10000, {v(vXA+n)}")
                    used += 4
                fill(BUD - used - (1 if i >= npend else 0))
            assert len(gs) == nit
            if st in (7, 12, 14):
                fill(100)
            pend = gs[nit - nd:]
            if st < 15:
                a.lg_all()
            if st == UF:
                a.vm_wait("ust")
                a(f"v_readfirstlane_b32 {s(sTag)}, v253")
                for rr in range(4):
                    a(f"v_and_b32 {v(116+rr)}, {v(116+rr)}, v252")
                a(f"s_add_u32 {s(sTag)}, {s(sTag)}, {TAGC}")
                self.flag_store(sUF, 255)
            if st == KVF:
                a.vm_all()
                self.flag_store(sKF, 115)
        assert not fq
        self.ts(4)
        a(f"""s_mov_b32 {s(sT0)}, {f2u(0.25 * LOG2E):#x}
              s_mov_b32 {s(sT1)}, {s(sT0)}
              v_add_u32 v3, {s(sQFw)}, v2""")
        for q in range(8):
            a(f"v_pk_mul_f32 {v(accQ+2*q,2)}, {v(accQ+2*q,2)}, {s(sT0,2)}")
        for q in range(8):
            a(f"v_cvt_pk_bf16_f32 {v(accQ+q)}, {v(accQ+2*q)}, {v(accQ+2*q+1)}")
            if q == 3:
                a(f"ds_write_b128 v3, {v(accQ,4)}")
        a(f"""ds_write_b128 v3, {v(accQ+4,4)} offset:2048
              v_mov_b32 v8, v112
              v_mov_b32 v9, v113
              v_mov_b32 v84, v116
              v_mov_b32 v85, v117
              v_mov_b32 v86, v118
              v_mov_b32 v87, v119
              s_setprio 0""")
        a.lg_all()
        a("s_barrier")
        self.ts(5)

    def conv(self):
        a = self.a
        a.lg = []
        vKA, vUA = 8, 9
        acc = 16
        KVC = int(self.o.get("kvconv", -1))
        def fr(buf, kind, i):
            return 128 + 64 * buf + (0 if kind == "k" else 32) + 4 * i
        issued = set()
        def rd(r, kind, i):
            issued.add((r, kind, i))
            buf = r & 1
            if kind == "k":
                a.lds(f"ds_read_b64 {v(fr(buf,'k',i),2)}, {v(vKA)} offset:{512*i + 64*r}", f"{r}k{i}")
                a.lds(f"ds_read_b64 {v(fr(buf,'k',i)+2,2)}, {v(vKA)} offset:{512*i + 64*r + 8}", f"{r}k{i}")
            else:
                a.lds(f"ds_read_b128 {v(fr(buf,'u',i),4)}, {v(vUA)} offset:{512*(7-i) + 64*r}", f"{r}u{i}")
        order = []
        for i in range(8):
            order += [("k", i), ("u", i)]
        NPRE = int(self.o.get("cpre", 33))
        pre = self.mask_ops(3, 7) + self.const_ops()
        if int(self.o.get("kvflag", 14)) == 16:
            a.vm_all()
            self.flag_store(sKF, 13)
        a.lds(f"ds_read_b128 {v(vQ,4)}, v14", "q")
        mo, co = self.mask_ops(3, 7), self.const_ops()
        for g in mo:
            for l in g[:3]: a(l)
        for g in co[:8]:
            for l in g: a(l)
        a(f"v_mov_b32 {v(vVf+8)}, {v(vVf)}")
        later = [[f"v_mov_b32 {v(vVf+r)}, {v(vVf+8)}"] for r in range(9, 16)]
        later += [["v_mov_b32 v13, 0xf149f2ca"]]
        for r in range(16):
            later += [mo[r+1][:2], [f"v_cndmask_b32 {v(vMU+r)}, 0, v13, vcc"]]
        self.attention("A", 0)
        if int(self.o.get("kvflag", 14)) == 17:
            a.vm_all()
            self.flag_store(sKF, 13)
        self.lds_spin(vCNT, C_CONV, 4, 3)
        self.ts(8)
        for kind, i in order[:8]:
            rd(0, kind, i)
        fill = [[x.strip()] for x in f"""v_and_b32 v10, 15, v0
              v_lshlrev_b32 v10, 3, v10
              v_lshrrev_b32 v11, 4, v0
              v_lshl_add_u32 v10, v11, 8, v10
              v_add_u32 v10, {s(sPw)}, v10
              s_lshl_b32 {s(sT2)}, {s(sI)}, 2
              v_add_u32 v12, {s(sT2)}, {v(vCNT)}
              s_nop 0""".split("\n")]
        fill += later
        pend_r = [(0, k, i) for k, i in order[8:]]
        first = [True] * 8
        for r in range(4):
            self.tm("p2", 1 + r)
            buf = r & 1
            nxt = [(r + 1, k, i) for k, i in order] if r < 3 else []
            queue = pend_r + nxt
            pend_r = []
            seq = []
            for m in range(8):
                for d in range(m + 1):
                    for s_ in range(m + 1):
                        if max(d, s_) == m and d + s_ <= 7:
                            seq.append((d, s_))
            assert len(seq) == 36
            if r == 3:
                seq = [(d, T - d) for T in range(8) for d in range(T + 1)]
                wr = [(T * (T + 3) // 2 + 5, lambda T=T, h=h: a.lds(f"ds_write_b64 v10, {v(acc+4*T+2*h,2)} offset:{1024*T + 128*h}", "pw"))
                      for T in range(8) for h in range(2)]
            for n, (d, s_) in enumerate(seq):
                T = d + s_
                if r * 36 + n == KVC:
                    a.vm_all()
                    self.flag_store(sKF, 13)
                assert (r, "k", d) in issued and (r, "u", s_) in issued
                a.lg_wait(f"{r}k{d}", f"{r}u{s_}")
                c = "0" if first[T] else v(acc + 4 * T, 4)
                first[T] = False
                a(f"v_mfma_f32_16x16x32_bf16 {v(acc+4*T,4)}, {v(fr(buf,'u',s_),4)}, {v(fr(buf,'k',d),4)}, {c}")
                KN = int(self.o.get("kn", 22))
                if r == 3 and n == KN:
                    a.lds(f"ds_read_b32 v7, v12 offset:{C_KVL}", "kvl")
                if r == 3 and n == KN + 6:
                    Lq, Lz = a.newlabel("Lkq"), a.newlabel("Lkz")
                    a.lg_wait("kvl")
                    a(f"""v_readfirstlane_b32 {s(sT5)}, v7
                          s_cmp_eq_u32 {s(sT5)}, 0
                          s_cbranch_scc1 {Lq}""")
                    a.label(Lz)
                    keep = (a.lines, list(a.lg))
                    a.lines = self.tail
                    a.label(Lq)
                    self.lds_spin(12, C_KVL, 1, 7)
                    a(f"s_branch {Lz}")
                    a.lines, a.lg = keep
                    pref = self.attention("A", 1)
                if r == 3 and n > KN + 6 and pref:
                    pref.pop(0)()
                if queue and (n % 2 == 0 or queue[0][0] == r):
                    rd(*queue.pop(0))
                elif r == 3 and wr and wr[0][0] <= n:
                    wr.pop(0)[1]()
                elif fill:
                    for l in fill.pop(0):
                        if l.startswith("#"):
                            tag, rest = l[1:].split(" ", 1); a.lds(rest, tag)
                        else:
                            a(l)
            if r == 0:
                for T in range(8):
                    a(f"v_mfma_f32_16x16x32_bf16 {v(acc+4*T,4)}, {v(fr(0,'u',T),4)}, v[84:87], {v(acc+4*T,4)}")
            pend_r = queue
            assert all(q[0] == r + 1 for q in pend_r)
        assert not fill and not pend_r
        self.tm("p2", 5)
        self.ts(6)
        a(f"s_setprio {self.o.get('aprio', 1)}")
        assert not pref
        wr = [w[1] for w in wr]
        wr.append(lambda: self.lds_signal(vCNT, C_FREE))
        self.attention("A", 2, wr)

    def wof(self, late, j, ct):
        return 128 + ((late * 8 + j) * 2 + ct) * 4

    def kv_dma(self, groups):
        a = self.a
        for g in groups:
            a(f"""s_add_u32 m0, {s(sRem)}, {4096*g}
                  s_add_u32 {s(sT2)}, {s(sKVS)}, {4096*g}
                  s_cmp_lt_u32 {s(sRb)}, {4-g}
                  s_cselect_b32 {s(sT2)}, {WS_BYTES}, {s(sT2)}""")
            for o in (2048, 3072, 0, 1024):
                a.vmem(f"buffer_load_dwordx4 v2, {s(sWS,4)}, {s(sT2)} offen offset:{o} sc1 lds", f"r{2*g + (o >> 11)}")

    def b_fetch(self):
        a = self.a
        a.vm_all()
        self.poll(39, 0, 5, 's[48:49]', first_done=True)
        self.ts(5)
        self.tm("p2", 2)
        self.kv_dma((3, 2))
        a(f"""s_lshl_b32 {s(sT2)}, {s(sI)}, 2
              v_add_u32 v5, {s(sT2)}, {v(vCNT)}""")
        self.tm("p2", 3)

    def b_start(self):
        a = self.a
        a.lg = []
        a(f"ds_read_b128 {v(vQ,4)}, v14")
        if self.o.get("bearly"):
            self.b_fetch()

    def attention(self, role, part=None, extra=()):
        a = self.a
        B = role == "B"
        if B: a.lg = []
        extra = list(extra)
        S = [16, 32] if (B or part == 0) else [144, 128]; O, P, Kf, Vf = vO, vP, [vKf, vKf + 4], [vVf, vVf + 8]
        HK = int(self.o.get("hook", 4))
        def kaddr(p):
            return (120, 0) if p == 0 else (121, 0) if p == 1 else (122, (8 - p) * 2048)
        def rdK(p):
            r, o = kaddr(p)
            a.lds(f"ds_read_b128 {v(Kf[p&1],4)}, {v(r)} offset:{o}", f"K{p}")
        def rdV(p):
            r, o = kaddr(p)
            if p == 0:
                a(f"s_mov_b64 exec, {s(sEx,2)}")
            else:
                a(f"""s_cmp_gt_u32 {s(sNt)}, {p}
                      s_cselect_b64 exec, {s(sEx,2)}, -1""")
            a.lds(f"ds_read_b128 {v(Vf[p&1],4)}, {v(r+3)} offset:{o}", f"V{p}")
            a.lds(f"ds_read_b128 {v(Vf[p&1]+4,4)}, {v(r+3)} offset:{o+512}", f"V{p}")
            a("s_mov_b64 exec, -1")
        def qk(p):
            c = v(vML, 16) if p == 0 else v(vMU, 16) if p == 8 else "0"
            a(f"v_mfma_f32_32x32x16_bf16 {v(S[p&1],16)}, {v(Kf[p&1],4)}, {v(vQ,4)}, {c}")
        def e(p, j):
            a(f"v_exp_f32 {v(S[p&1]+j)}, {v(S[p&1]+j)}")
            if extra: extra.pop(0)()
        def c(p, q): a(f"v_cvt_pk_bf16_f32 {v(P+q)}, {v(S[p&1]+2*q)}, {v(S[p&1]+2*q+1)}")
        def pv(p, hf):
            cc = "0" if (p == 0 and hf == 0) else v(O, 16)
            a(f"v_mfma_f32_32x32x16_bf16 {v(O,16)}, {v(Vf[p&1]+4*hf,4)}, {v(P+4*hf,4)}, {cc}")
        def vmw(q):
            if not B: return
            t = "r0" if q == HK + 2 else f"r{8-q}"
            if t in a.vm: a.vm_wait(t)
        wq = [(late, j) for late in range(2) for j in range(8)] if B else []
        W0 = int(self.o.get("w0", 0))
        def wload():
            if not wq: return
            late, j = wq.pop(0)
            a(f"v_add_u32 v3, {4096*j}, v2")
            for ct in range(2):
                so = [sWoS, 40, 41, 42][2 * late + ct]
                a.vmem(f"buffer_load_dwordx4 {v(self.wof(late,j,ct),4)}, v3, {s(sWS,4)}, {s(so)} offen sc1", "wf")
        self.wload, self.wq = wload, wq
        if part == 1:
            return [lambda: rdK(1), lambda: rdV(1), lambda: rdK(2)]
        vg = 84 if B else 4
        if part != 2:
            rdK(0)
            a.lds(f"ds_read_b64 {v(vg,2)}, v15", "g")
            rdV(0)
            a.lg_wait("K0")
            qk(0)
            a.lg_wait("g")
            a(f"""v_add_f32 {v(vg)}, {v(vg)}, {v(vg+1)}
                  v_mul_f32 {v(vg)}, {f2u(-LOG2E):#x}, {v(vg)}
                  v_exp_f32 {v(vg)}, {v(vg)}
                  s_nop 0
                  v_add_f32 {v(vg)}, 1.0, {v(vg)}""")
        if part == 0:
            for j in range(16):
                e(0, j)
                if j >= 3 and j & 1: c(0, (j - 3) // 2)
                if j == 11:
                    a.lg_wait("V0"); pv(0, 0)
            c(0, 7); pv(0, 1)
            return
        if part == 2:
            a.lg_wait("K1")
            qk(1)
            while extra:
                extra.pop(0)()
            a(f"v_mov_b32 v84, {v(vg)}")
        for p in range(1 if part == 2 else 0, 9):
            nx = p + 1 <= 8
            if p % 2 == 0: self.tm("p2", 6 + p // 2)
            if p == 0:
                for j in range(8):
                    e(0, j)
                    if j >= 3 and j & 1: c(0, (j - 3) // 2)
                if not self.o.get("bearly"):
                    self.b_fetch()
                self.kv_dma((1, 0))
                vmw(1)
                rdK(1); rdV(1)
                e(0, 8); c(0, 3); e(0, 9); e(0, 10)
                a.lg_wait("V0")
                pv(0, 0)
                e(0, 11); c(0, 4); e(0, 12)
                a.lg_wait("K1")
                qk(1)
                vmw(2)
                rdK(2)
                e(0, 13); c(0, 5); e(0, 14); e(0, 15); c(0, 6)
                continue
            carry = not (part == 2 and p == 1)
            e(p, 0)
            if carry: c(p - 1, 7)
            e(p, 1)
            e(p, 2)
            if carry: pv(p - 1, 1)
            e(p, 3); c(p, 0)
            if p > W0: wload()
            e(p, 4)
            if nx: rdV(p + 1)
            e(p, 5); c(p, 1)
            e(p, 6)
            if nx: a.lg_wait(f"K{p+1}")
            e(p, 7)
            if nx: qk(p + 1)
            c(p, 2)
            e(p, 8); c(p, 3)
            e(p, 9)
            if p + 2 <= 8:
                vmw(p + 2)
            e(p, 10)
            if p + 2 <= 8:
                rdK(p + 2)
            if f"V{p}" in a.lg: a.lg_wait(f"V{p}")
            e(p, 11)
            pv(p, 0)
            c(p, 4)
            e(p, 12)
            if p == HK and B:
                self.lds_signal(5, C_KVL)
            if p >= W0 and int(self.o.get("w2x", 1)): wload()
            e(p, 13); c(p, 5)
            e(p, 14)
            e(p, 15); c(p, 6)
        c(8, 7); pv(8, 1)
        a.label(f"L_attn_fin{role}")
        a.lg = []
        a(f"""s_mov_b32 {s(sT4)}, {f2u(2.0**-30):#x}
              s_mov_b32 {s(sT5)}, {f2u(2.0**30):#x}
              s_waitcnt lgkmcnt(0)
              v_mul_f32 v85, v84, {v(O+8)}
              v_cmp_nle_f32 vcc, {s(sT4)}, {v(O+8)}
              v_cmp_nge_f32 {s(sT0,2)}, {s(sT5)}, {v(O+8)}
              v_rcp_f32 v86, v85
              s_or_b64 vcc, vcc, {s(sT0,2)}""")
        if self.o.get("force_slow"):
            a("s_mov_b64 vcc, -1")
        a(f"""s_cbranch_vccnz L_attn_slow""")
        a.label(f"L_attn_ok{role}")
        for q in range(8):
            a(f"v_mul_f32 {v(O+q)}, {v(O+q)}, v86")
        for q in range(4):
            a(f"v_cvt_pk_bf16_f32 {v(O+q)}, {v(O+2*q)}, {v(O+2*q+1)}")
        a.vmem(f"buffer_store_dwordx4 {v(O,4)}, v2, {s(sWS,4)}, {s(sOO)} offen sc1", "o")
        self.ts(10)

    def attn_slow(self):
        a = self.a
        S, ML, Kf, O, P = 16, 32, vKf, vO, vP
        sP, sM = sT2, sT3
        a.label("L_attn_slow")
        a(f"""s_cmp_lg_u32 {s(sRedo)}, 0
              s_cbranch_scc1 L_sl_ok
              s_mov_b32 {s(sRedo)}, 1
              s_mov_b32 {s(sM)}, 0
              s_mov_b32 {s(sT0)}, 0xf149f2ca
              v_mov_b32 v86, 0xff7fffff
              v_sub_u32 v87, v123, v120""")
        for r in range(16):
            a(f"v_xor_b32 {v(ML+r)}, {s(sT0)}, {v(vMU+r)}")
            a(f"v_mov_b32 {v(O+r)}, 0")
            a(f"v_mov_b32 {v(vVf+r)}, {s(sOne)}")
        a.label("L_sl_pass")
        a(f"s_mov_b32 {s(sP)}, 0")
        a.label("L_sl_tile")
        a(f"""s_sub_u32 {s(sT0)}, 8, {s(sP)}
              s_lshl_b32 {s(sT0)}, {s(sT0)}, 11
              v_add_u32 v3, {s(sT0)}, v122
              s_cmp_eq_u32 {s(sP)}, 1
              s_cselect_b64 vcc, -1, 0
              v_cndmask_b32 v3, v3, v121, vcc
              s_cmp_eq_u32 {s(sP)}, 0
              s_cselect_b64 vcc, -1, 0
              v_cndmask_b32 v3, v3, v120, vcc
              ds_read_b128 {v(Kf,4)}, v3
              v_add_u32 v3, v3, v87
              s_mov_b64 exec, {s(sEx,2)}
              ds_read_b128 {v(vVf,4)}, v3
              ds_read_b128 {v(vVf+4,4)}, v3 offset:512
              s_mov_b64 exec, -1
              s_waitcnt lgkmcnt(0)
              s_cbranch_scc1 L_sl_lo
              s_cmp_eq_u32 {s(sP)}, 8
              s_cbranch_scc1 L_sl_up
              v_mfma_f32_32x32x16_bf16 {v(S,16)}, {v(Kf,4)}, {v(vQ,4)}, 0
              s_branch L_sl_s""")
        a.label("L_sl_lo")
        a(f"""v_mfma_f32_32x32x16_bf16 {v(S,16)}, {v(Kf,4)}, {v(vQ,4)}, {v(ML,16)}
              s_branch L_sl_s""")
        a.label("L_sl_up")
        a(f"v_mfma_f32_32x32x16_bf16 {v(S,16)}, {v(Kf,4)}, {v(vQ,4)}, {v(vMU,16)}")
        a.label("L_sl_s")
        a(f"""s_cmp_lg_u32 {s(sM)}, 0
              s_cbranch_scc1 L_sl_pv""")
        for j in range(8):
            a(f"v_max3_f32 v86, v86, {v(S+2*j)}, {v(S+2*j+1)}")
        a("s_branch L_sl_next")
        a.label("L_sl_pv")
        for j in range(16):
            a(f"v_sub_f32 {v(S+j)}, {v(S+j)}, v86")
        for j in range(16):
            a(f"v_exp_f32 {v(S+j)}, {v(S+j)}")
        for q in range(8):
            a(f"v_cvt_pk_bf16_f32 {v(P+q)}, {v(S+2*q)}, {v(S+2*q+1)}")
        for hf in range(2):
            a(f"v_mfma_f32_32x32x16_bf16 {v(O,16)}, {v(vVf+4*hf,4)}, {v(P+4*hf,4)}, {v(O,16)}")
        a.label("L_sl_next")
        a(f"""s_add_u32 {s(sP)}, {s(sP)}, 1
              s_cmp_lt_u32 {s(sP)}, {s(sNt)}
              s_cbranch_scc1 L_sl_tile
              s_cmp_lg_u32 {s(sM)}, 0
              s_cbranch_scc1 L_sl_fin
              s_mov_b32 {s(sM)}, 1
              v_mov_b32 v85, v86
              v_permlane32_swap_b32 v85, v86
              v_max_f32 v86, v85, v86
              s_branch L_sl_pass""")
        for nm, tg in (("L_sl_ok", "L_attn_ok"), ("L_sl_fin", "L_attn_fin")):
            a.label(nm)
            a(f"""s_cmp_eq_u32 {s(sRole)}, 0
                  s_cbranch_scc1 {tg}A
                  s_branch {tg}B""")

    def p3(self):
        a = self.a
        acc = [16, 32]; OF = 48
        wof = self.wof
        SPL = int(self.o.get("split", 9))
        self.tm("p3", 1)
        self.lds_spin(vCNT, C_FREE, 4, 3)
        self.tm("p3", 2)
        self.ts(6)
        for k in range(4):
            a.lds(f"ds_read_b128 {v(16+4*k,4)}, v6 offset:{2048*(k>>1) + 16*(k&1)}", f"y{k>>1}")
            a.lds(f"ds_read_b128 {v(32+4*k,4)}, v7 offset:{2048*(k>>1) + 16*(k&1)}", f"y{k>>1}")
        for rd in range(2):
            a.lg_wait(f"y{rd}")
            for q in range(8):
                a(f"v_add_f32 {v(16+8*rd+q)}, {v(16+8*rd+q)}, {v(32+8*rd+q)}")
            for q in range(4):
                a(f"v_cvt_pk_bf16_f32 {v(vP+4*rd+q)}, {v(16+8*rd+2*q)}, {v(16+8*rd+2*q+1)}")
            a.vmem(f"buffer_store_dwordx4 {v(vP+4*rd,4)}, v2, {s(sWS,4)}, {s(sYO)} offen offset:{1024*rd} sc1", "ys")
        if self.o.get("unsafe_y"):
            self.flag_store(sYF, 3)
        a(f"""s_lshl_b32 {s(sT1)}, {s(sI)}, 11
              s_add_u32 m0, {s(sT1)}, {QF}
              s_add_u32 {s(sT0)}, {s(sXS)}, {16384 - 1024}""")
        a.vmem(f"buffer_load_dwordx4 v4, {s(sX,4)}, {s(sXS)} offen lds", "xm")
        a.vmem(f"buffer_load_dwordx4 v4, {s(sX,4)}, {s(sT0)} offen offset:1024 lds", "xm")
        nlate = 2 * len(self.wq)
        while self.wq: self.wload()
        a(f"s_setprio {self.o.get('bprio', 2)}")
        vYT, vYS, vFA, vXR, vOO, vG = 120, 121, 122, 14, 123, 124
        sPend, sTodo, sProc = sNt, sXc, sWc
        a(f"""v_rcp_f32 {v(vG)}, v84
              v_mov_b32 {v(vYT)}, v8
              v_mov_b32 {v(vYS)}, v9
              v_mov_b32 {v(vFA)}, v10
              v_mov_b32 v112, v12
              v_mov_b32 {v(vXR)}, v13
              v_mov_b32 {v(vOO)}, v1
              v_mov_b32 v32, v11
              v_xor_b32 v33, 16, v11
              v_xor_b32 v34, 32, v11
              v_xor_b32 v35, 48, v11
              v_sub_f32 {v(vG)}, 1.0, {v(vG)}
              v_xor_b32 {v(vXR+1)}, 16, {v(vXR)}
              v_mov_b32 {v(vG+1)}, {v(vG)}
              v_mov_b32 v116, 0
              v_mov_b32 v117, 0
              v_mov_b32 v118, 0
              v_mov_b32 v119, 0""")
        a.vm_wait("o")
        self.flag_store(sOF, 4)
        self.tm("p3", 3)
        a(f"""s_add_u32 {s(sRedo)}, {s(sOt)}, 8192
              s_add_u32 {s(sYF2)}, {s(sYS)}, {0x10000 - 1024}
              s_mov_b32 {s(sPend)}, 7
              s_mov_b32 {s(sTodo)}, 0
              s_mov_b32 {s(sProc)}, 8""")
        if not self.o.get("unsafe_y"):
            a.vm_wait("ys")
            self.flag_store(sYF, 4)
        self.ts(7)
        self.tm("p3", 4)
        OFS = [48, 80]
        def o_loads(late):
            so = sLO if late else sEO
            for j in range(8):
                a(f"buffer_load_dwordx4 {v(OFS[late]+4*j,4)}, v2, {s(sWS,4)}, {s(so)} offen offset:{2048*(j&1)} sc1")
                if j & 1 and j < 7:
                    a(f"s_add_u32 {s(so)}, {s(so)}, 4096")
        def o_mm(late):
            for j in range(8):
                for ct in range(2):
                    a(f"v_mfma_f32_32x32x16_bf16 {v(acc[ct],16)}, {v(wof(late,j,ct),4)}, {v(OFS[late]+4*j,4)}, {v(acc[ct],16)}")
        a("s_branch L_pl_p")
        a.label("L_pl_w")
        a(f"""s_mov_b32 {s(sProc)}, {s(sTodo)}
              s_sub_u32 {s(sBud)}, {s(sBud)}, 8
              s_waitcnt vmcnt(0)
              v_cmp_ne_u32 vcc, {s(sTag)}, v5
              s_cmp_gt_i32 {s(sBud)}, 0
              s_cselect_b64 vcc, vcc, 0
              s_cmp_eq_u32 vcc_lo, 0
              s_cselect_b32 {s(sT0)}, 1, 0
              s_and_b32 {s(sT1)}, vcc_hi, 0xff
              s_cselect_b32 {s(sT1)}, 0, 2
              s_or_b32 {s(sT0)}, {s(sT0)}, {s(sT1)}
              s_and_b32 {s(sT1)}, vcc_hi, 0xff00
              s_cselect_b32 {s(sT1)}, 0, 4
              s_or_b32 {s(sT0)}, {s(sT0)}, {s(sT1)}
              s_and_b32 {s(sTodo)}, {s(sT0)}, {s(sPend)}
              s_cbranch_scc0 L_pl_p
              s_andn2_b32 {s(sPend)}, {s(sPend)}, {s(sTodo)}
              s_bitcmp1_b32 {s(sTodo)}, 2
              s_cbranch_scc0 L_pl_i1""")
        self.ts(9)
        self.tm("p3", 9)
        self.tm("fin", 1)
        o_loads(1)
        a.label("L_pl_i1")
        a(f"""s_bitcmp1_b32 {s(sTodo)}, 1
              s_cbranch_scc0 L_pl_i0""")
        self.tm("p3", 8)
        o_loads(0)
        a.label("L_pl_i0")
        a(f"""s_bitcmp1_b32 {s(sTodo)}, 0
              s_cbranch_scc0 L_pl_p
              buffer_load_dwordx4 {v(vYS)}, {s(sWS,4)}, {s(sYS)} offen sc1 lds
              buffer_load_dwordx4 {v(vYS)}, {s(sWS,4)}, {s(sYF2)} offen offset:1024 sc1 lds""")
        self.tm("p3", 7)
        self.tm("fin", 9)
        a.label("L_pl_p")
        a(f"""s_cmp_eq_u32 {s(sPend)}, 0
              s_cbranch_scc1 L_pl_q
              v_mov_b32 v5, 0
              s_bitcmp1_b32 {s(sPend)}, 0
              s_cselect_b32 exec_lo, -1, 0
              s_mov_b32 exec_hi, 0xffff
              buffer_atomic_or v5, {v(vFA)}, {s(sWS,4)}, 0 offen sc0 sc1
              s_mov_b64 exec, -1""")
        a.label("L_pl_q")
        a(f"""s_cmp_eq_u32 {s(sProc)}, 0
              s_cbranch_scc1 L_pl_n
              s_bitcmp1_b32 {s(sProc)}, 3
              s_cbranch_scc0 L_pl_p0""")
        self.tm("p3", 5)
        a(f"s_waitcnt vmcnt({3 + nlate - (1 if self.o.get('unsafe_y') else 0)})")
        for q in range(4):
            a(f"ds_read_b64 {v(6+2*q,2)}, {v(32+q)}")
        Lx, Ly = a.newlabel("Lep"), a.newlabel("Leb")
        a(f"""s_or_b32 {s(sT0)}, s2, {s(sWave)}
              s_cmp_eq_u32 {s(sT0)}, 0
              s_cbranch_scc1 {Lx}""")
        a.label(Ly)
        keep = (a.lines, list(a.vm))
        a.lines = self.tail
        a.label(Lx)
        a(f"""v_and_b32 v3, 7, v0
              v_lshlrev_b32 v3, 3, v3
              v_bfe_u32 v4, v0, 3, 2
              v_lshl_add_u32 v3, v4, 7, v3
              v_lshrrev_b32 v4, 5, v0
              v_lshl_add_u32 v3, v4, 10, v3""")
        Le, Lf = a.newlabel("Lel"), a.newlabel("Lef")
        a.label(Le)
        for k in range(4):
            a(f"""s_mov_b32 {s(sT0)}, {FKV + 2048*k}
                  buffer_load_dword {v(16+k)}, v3, {s(sWS,4)}, {s(sT0)} offen sc1""")
        a(f"""s_waitcnt vmcnt(0)
              v_xor_b32 v16, {s(sTag)}, v16
              v_xor_b32 v17, {s(sTag)}, v17
              v_xor_b32 v18, {s(sTag)}, v18
              v_xor_b32 v19, {s(sTag)}, v19
              v_or3_b32 v16, v16, v17, v18
              v_or_b32 v16, v16, v19
              v_cmp_ne_u32 vcc, 0, v16
              s_cbranch_vccz {Lf}
              s_sub_u32 {s(sBud)}, {s(sBud)}, 8
              s_cmp_gt_i32 {s(sBud)}, 0
              s_cbranch_scc1 {Le}""")
        a.label(Lf)
        a(f"s_mov_b32 {s(sT0)}, 0")
        self.flag_store(sT0, 4)
        a(f"s_branch {Ly}")
        a.lines, a.vm = keep
        a("s_waitcnt lgkmcnt(0)")
        for ct in range(2):
            a(f"v_mfma_f32_32x32x16_bf16 {v(acc[ct],16)}, v[116:119], v[116:119], 0")
        self.ts(8)
        self.tm("p3", 6)
        a("s_branch L_pl_n")
        a.label("L_pl_p0")
        a(f"""s_bitcmp1_b32 {s(sProc)}, 0
              s_cbranch_scc0 L_pl_p1""")
        yt = [114, 116, 118, 120]
        for q in range(4):
            a(f"ds_read_b64_tr_b16 {v(yt[q],2)}, {v(vYT)} offset:{512*q}")
        for q in range(4):
            for d in range(2):
                xr, yr = 6 + 2 * q + d, yt[q] + d
                a(f"""v_lshlrev_b32 v0, 16, {v(xr)}
                      v_and_b32 v1, {s(sHi)}, {v(xr)}""")
                if d == 0: a(f"s_waitcnt lgkmcnt({3-q})")
                a(f"""v_pk_mul_f32 v[0:1], v[0:1], {v(vG,2)}
                      v_lshlrev_b32 v126, 16, {v(yr)}
                      v_and_b32 v127, {s(sHi)}, {v(yr)}
                      v_pk_fma_f32 {v(acc[0]+4*q+2*d,2)}, v[0:1], v[126:127], {v(acc[0]+4*q+2*d,2)}""")
        for q in range(1, 8):
            a(f"v_xor_b32 {v(112+q)}, {32*q}, v112")
        a.label("L_pl_p1")
        a(f"""s_bitcmp1_b32 {s(sProc)}, 1
              s_cbranch_scc0 L_pl_p2""")
        o_mm(0)
        a.label("L_pl_p2")
        a(f"""s_bitcmp1_b32 {s(sProc)}, 2
              s_cbranch_scc0 L_pl_n""")
        o_mm(1)
        a.label("L_pl_n")
        if self.o.get("fast"):
            lk = lambda r: f"""v_mov_b32 v{r}, 0
                  buffer_atomic_or v{r}, {v(vFA)}, {s(sWS,4)}, 0 offen sc0 sc1"""
            ck = lambda r: f"""s_waitcnt vmcnt(1)
                  v_cmp_ne_u32 vcc, {s(sTag)}, v{r}
                  s_sub_u32 {s(sBud)}, {s(sBud)}, 4
                  s_cbranch_vccz L_fa_go"""
            a(f"""s_lshl4_add_u32 {s(sT0)}, {s(sTodo)}, {s(sPend)}
                  s_cmp_lg_u32 {s(sT0)}, 4
                  s_cbranch_scc1 L_pl_m
                  s_mov_b32 exec_lo, 0
                  s_mov_b32 exec_hi, 0xff00
                  s_cmp_lg_u32 {s(sProc)}, 0
                  s_cbranch_scc1 L_fa
                  s_sleep {int(self.o.get("fsleep", 5))}""")
            a.label("L_fa")
            a(lk(4)); a(ck(5)); a(lk(5)); a(ck(4))
            a(f"""s_cmp_gt_i32 {s(sBud)}, 0
                  s_cbranch_scc1 L_fa""")
            a.label("L_fa_go")
            a("s_mov_b64 exec, -1")
            self.ts(9); self.tm("p3", 9); self.tm("fin", 1)
            o_loads(1)
            a("s_branch L_pl_l")
            a.label("L_pl_m")
        a(f"""s_cmp_lg_u32 {s(sPend)}, 0
              s_cbranch_scc1 L_pl_w
              s_cmp_eq_u32 {s(sTodo)}, 0
              s_cbranch_scc1 L_pl_x
              s_cmp_lg_u32 {s(sTodo)}, 4
              s_cbranch_scc1 L_pl_w""")
        a.label("L_pl_l")
        for j in range(8):
            if j == 0: self.tm("fin", 2)
            a(f"s_waitcnt vmcnt({7-j})")
            if j == 0: self.tm("fin", 3)
            if j == 7: self.tm("fin", 4)
            for ct in range(2):
                a(f"v_mfma_f32_32x32x16_bf16 {v(acc[ct],16)}, {v(wof(1,j,ct),4)}, {v(OFS[1]+4*j,4)}, {v(acc[ct],16)}")
        a.label("L_pl_x")
        self.tm("p3", 10)
        self.tm("fin", 5)
        for ct in range(2):
            for q in range(4):
                a(f"ds_write_b128 {v(112+4*ct+q)}, {v(acc[ct]+4*q,4)}")
        a.lg_all()
        self.tm("fin", 6)
        a("s_barrier")
        self.tm("fin", 7)
        for rd in range(2):
            for src in range(2):
                for b in range(2):
                    a.lds(f"ds_read_b128 {v(48+16*rd+8*src+4*b,4)}, {v(vXR+b)} offset:{FXS*src + 2048*rd}", f"r{rd}")
        of = self.o.get("outflag", "sc1")
        of = " " + of.replace("+", " ") if of else ""
        for rd in range(2):
            a.lg_wait(f"r{rd}")
            b = 48 + 16 * rd
            for q in range(0, 8, 2):
                a(f"v_pk_add_f32 {v(b+q,2)}, {v(b+q,2)}, {v(b+8+q,2)}")
            for q in range(4):
                a(f"v_cvt_pk_bf16_f32 {v(b+q)}, {v(b+2*q)}, {v(b+2*q+1)}")
            a(f"buffer_store_dwordx4 {v(b,4)}, {v(vOO)}, {s(sOUT,4)}, {s(sOt if rd == 0 else sRedo)} offen{of}")
        self.tm("fin", 8)

    def dump_ts(self):
        a = self.a
        if self.o.get("padto") or (self.o.get("probe") and self.o["probe"][0] == self.role):
            self.o.setdefault("padto2", self.o.get("padto", 30))
            L = a.newlabel()
            a("s_waitcnt vmcnt(0)")
            if self.o.get("skew"):
                a("""v_mov_b32 v11, 0
                     v_mov_b32 v12, 0
                     s_mov_b64 exec, 1
                     global_load_dword v11, v12, s[96:97] sc1
                     s_waitcnt vmcnt(0)
                     v_readfirstlane_b32 s100, v11
                     s_not_b32 s100, s100""")
            a.label(L)
            a(f"""s_memrealtime s[4:5]
                  s_waitcnt lgkmcnt(0)
                  s_sub_u32 s4, s4, s100
                  s_cmp_lt_u32 s4, {int(self.o["padto2"])*100}
                  s_cbranch_scc1 {L}""")
        if not self.o.get("prof"):
            return
        a(f"""s_waitcnt vmcnt(0)
              s_memtime s[4:5]
              s_memrealtime s[6:7]
              s_waitcnt lgkmcnt(0)
              s_lshl_b32 {s(sT0)}, s2, 3
              s_add_u32 {s(sT0)}, {s(sT0)}, {s(sWave)}
              s_lshl_b32 {s(sT0)}, {s(sT0)}, 6
              s_add_u32 {s(sT0)}, {s(sT0)}, {DBG}
              v_mov_b32 v1, 0
              s_mov_b64 exec, 1""")
        for k in range(11):
            a(f"""v_mov_b32 v2, {s(sTS+2*k)}
                  buffer_store_dword v2, v1, {s(sWS,4)}, {s(sT0)} offen offset:{4*k}""")
        for k, r in ((11, 4), (12, 6), (13, sBud), (14, 26)):
            a(f"""v_mov_b32 v2, {s(r)}
                  buffer_store_dword v2, v1, {s(sWS,4)}, {s(sT0)} offen offset:{4*k}""")

    def insert_stubs(self):
        import subprocess, re as _re, tempfile, os
        a = self.a
        NP = 5
        k = a.lines.index("@IWARM@:")
        disp = []
        for p in range(NP):
            disp += [f"    s_cmp_eq_u32 {s(sI)}, {p % 4}", f"    s_cbranch_scc1 L_pg{p}", f"L_pgr{p}:"]
        a.lines = a.lines[:k] + disp + a.lines[k+1:]
        def sizes(lines):
            body = pad(lines)
            txt = ['.amdgcn_target "amdgcn-amd-amdhsa--gfx950"', ".text", "L_tab:", f"{NAME}_kernel:"]
            n = 0
            for l in body:
                txt.append(l.replace("@CODEMAX@", "0x4000"))
            for p in range(NP):
                if f"L_pg{p}:" not in lines: txt.append(f"L_pg{p}:")
            d = tempfile.mkdtemp()
            open(d + "/t.s", "w").write("\n".join(txt) + "\n")
            subprocess.run(["clang", "-x", "assembler", "-target", "amdgcn-amd-amdhsa", "-mcpu=gfx950", "-c", d + "/t.s", "-o", d + "/t.o"], check=True)
            out = subprocess.run(["llvm-objdump", "-t", d + "/t.o"], capture_output=True, text=True).stdout
            return {m.group(2): int(m.group(1), 16) for m in _re.finditer(r"^([0-9a-f]{16}) .*\s(\S+)$", out, _re.M)}
        for p in range(NP):
            marked = []
            for i, l in enumerate(a.lines):
                marked.append(f"M_{i}:"); marked.append(l)
            ad = sizes(marked)
            tgt = 4096 * (p + 1) - 768 - 4
            cand = [i for i in range(len(a.lines)) if ad[f"M_{i}"] >= tgt]
            if not cand:
                a.lines += [f"L_pg{p}:", f"    s_branch L_pgr{p}"]
                continue
            i = cand[0]
            a.lines = a.lines[:i] + [f"    s_branch L_pgs{p}", f"L_pg{p}:", f"    s_branch L_pgr{p}", f"L_pgs{p}:"] + a.lines[i:]
            if self.o.get("verbose"): print("stub", p, "before", a.lines[i+4], a.lines[i-1])

    def build(self):
        a = self.a
        if self.o.get("padto") or self.o.get("probe"):
            a("s_memrealtime s[100:101]")
        self.prologue()
        self.role = "B"
        self.loader_phase1()
        self.b_start()
        self.attention("B")
        self.p3()
        self.dump_ts()
        a.label("L_end")
        a("s_endpgm")
        self.role = "A"
        self.compute_phase1()
        self.conv()
        if not self.o.get("unsafe_hint"):
            a.vm_all()
        self.flag_store(sOF, 4)
        self.dump_ts()
        a("s_endpgm")
        a.lines += self.tail
        self.attn_slow()
        a.label("L_codeend")
        i0, i1 = a.lines.index("L_compute:"), a.lines.index("@AEND@:")
        blk = a.lines[i0:i1]
        a.lines = a.lines[:i0] + a.lines[i1+1:]
        k = a.lines.index("@ASTART@:")
        a.lines = a.lines[:k] + blk + a.lines[k+1:]
        if self.o.get("iw"):
            self.insert_stubs()
        body = pad(a.lines, verbose=True)
        hdr = open("cdna_kernels/" + NAME + ".s.ref").read().split("\n")
        head = [l for l in hdr if l.startswith(";") and "@launch" not in l and "Override" not in l and "grid=ceil" not in l]
        out = head + [f"; @launch grid=(256,1,1) block=(512,1,1) lds={LDS_BYTES}",
                      '.amdgcn_target "amdgcn-amd-amdhsa--gfx950"', ".text", f".globl {NAME}_kernel", ".p2align 12" if not self.o.get("noal") else ".p2align 8",
                      f".type {NAME}_kernel,@function", f"{NAME}_kernel:"] + body + [
            '.section .rodata,"a"', ".p2align 6", f".amdhsa_kernel {NAME}_kernel",
            "  .amdhsa_next_free_vgpr 256", "  .amdhsa_next_free_sgpr 102", "  .amdhsa_accum_offset 256",
            "  .amdhsa_group_segment_fixed_size 0", "  .amdhsa_kernarg_size 104", "  .amdhsa_user_sgpr_count 2",
            "  .amdhsa_user_sgpr_kernarg_segment_ptr 1", "  .amdhsa_system_sgpr_workgroup_id_x 1",
            ".end_amdhsa_kernel", ""]
        txt = "\n".join(out)
        tab = [".p2align 8", ".type L_tab,@object", "L_tab:"]
        def longs(vals):
            for k in range(0, len(vals), 16):
                tab.append(".long " + ",".join(str(x) if x < 100000 else hex(x) for x in vals[k:k+16]))
        for w in range(8):
            st = self.stB if w < 4 else self.stA
            longs([c[w & 3] for c in st.wc] + [0] * (16 - len(st.wc)))
        tab.append(f".zero {T_PB - 512}")
        for st in (self.stB, self.stA):
            longs(st.data())
            tab.append(f".zero {8192 - 1024 * st.nq()}")
        for wg in range(256):
            for w in range(4):
                t = wg_table(wg, w)
                longs(t)
                tab.append(f".zero {128 - 4 * len(t)}")
        txt += "\n".join(tab) + "\n"
        if self.o.get("rt"):
            txt = txt.replace("s_memtime", "s_memrealtime")
        txt = txt.replace("@CODEMAX@", f"(L_codeend - {NAME}_kernel - 260)")
        print("patterns A/B:", len(self.stA.pat), len(self.stB.pat), "wave consts", len(self.stA.wc), len(self.stB.wc))
        return txt

if __name__ == "__main__":
    opt = {}
    outp = "cdna_kernels/" + NAME + ".s"
    for arg in sys.argv[1:]:
        if arg.startswith("-o"):
            outp = arg[2:]
        elif "=" in arg:
            k, val = arg.split("=", 1)
            opt[k] = val
        else:
            opt[arg] = True
    txt = Gen(opt).build()
    open(outp, "w").write(txt)
    print("wrote", outp, len(txt.split("\n")), "lines")
```
